```python
import torch

def _softmax(x, axis=-1):
    return torch.softmax(x, dim=axis)
def _gelu(x):
    return torch.nn.functional.gelu(x, approximate="tanh")
def _silu(x):
    return torch.nn.functional.silu(x)
def _sigmoid(x):
    return torch.sigmoid(x)
def _layernorm(x, axis=-1, eps=1e-5):
    m = x.mean(dim=axis, keepdim=True)
    v = x.var(dim=axis, keepdim=True, unbiased=False)
    return (x - m) / torch.sqrt(v + eps)
def _scatter_add(tgt, idx, src, axis=0):
    return tgt.clone().index_add_(axis, idx, src)
def _segment_sum(src, seg, n):
    out = torch.zeros((n,) + src.shape[1:], dtype=src.dtype)
    return out.index_add_(0, seg, src)
def _pad(x, pw):
    flat = tuple(v for pair in reversed(pw) for v in pair)
    return torch.nn.functional.pad(x, flat)

kernel_name = 'gated_mix__gqa_block_cached__dense_activation_gelu__decode'

def setup_inputs():

    _w = (lambda a: (lambda t: t.to(torch.bfloat16) if t.is_floating_point() else t)(torch.as_tensor(a)))
    def _A_setup():
        B, Sq, D = 8, 1, 512
        Hq, Hkv, Sk, Dh = 32, 8, 4096, 128
        assert Hq % Hkv == 0, (Hq, Hkv)
        return {
            "x": _w((lambda *s: torch.randn(*s, dtype=torch.bfloat16) * 0.05)(B, Sq, D)),
            "k_cache": _w((lambda *s: torch.randn(*s, dtype=torch.bfloat16) * 6.4)(B, Hkv, Sk, Dh)),
            "v_cache": _w((lambda *s: torch.randn(*s, dtype=torch.bfloat16) * 0.2)(B, Hkv, Sk, Dh)),
            "wq": _w((lambda *s: torch.randn(*s, dtype=torch.bfloat16) * 6.4)(D, Hq * Dh) * (D ** -0.5)),
            "wo": _w((lambda *s: torch.randn(*s, dtype=torch.bfloat16) * 0.2)(Hq * Dh, D) * ((Hq * Dh) ** -0.5)),
        }
    _A_in = _A_setup()

    def _B_setup():
        B, S, D, F = 8, 1, 512, 1792
        return {
            "x": _w((lambda *s: torch.randn(*s, dtype=torch.bfloat16) * 0.05)(B, S, D)),
            "w1": _w((lambda *s: torch.randn(*s, dtype=torch.bfloat16) * 3.2)(D, F) * (D ** -0.5)),
            "b1": _w((lambda *s: torch.randn(*s, dtype=torch.bfloat16) * 3.2)(F) * 0.01),
            "w2": _w((lambda *s: torch.randn(*s, dtype=torch.bfloat16) * 0.2)(F, D) * (F ** -0.5)),
            "b2": _w((lambda *s: torch.randn(*s, dtype=torch.bfloat16) * 0.4)(D) * 0.01),
        }
    _B_in = _B_setup()

    return {
        "A_x": _A_in["x"],
        "A_k_cache": _A_in["k_cache"],
        "A_v_cache": _A_in["v_cache"],
        "A_wq": _A_in["wq"],
        "A_wo": _A_in["wo"],
        "B_x": _B_in["x"],
        "B_w1": _B_in["w1"],
        "B_b1": _B_in["b1"],
        "B_w2": _B_in["w2"],
        "B_b2": _B_in["b2"],
        "gate_w": _w((lambda *s: torch.randn(*s, dtype=torch.bfloat16) * 0.05)(512) * 16.0),
    }

def reference(A_x, A_k_cache, A_v_cache, A_wq, A_wo, B_x, B_w1, B_b1, B_w2, B_b2, gate_w):
    def _A_ref(x, k_cache, v_cache, wq, wo):
        B, Sq, D = x.shape
        Hq, Dh = 32, 128
        Hkv = k_cache.shape[1]
        rep = Hq // Hkv
        q = (lambda x, *d: x.permute(*d))((x @ wq).reshape(B, Sq, Hq, Dh), 0, 2, 1, 3)
        k = (lambda x, n, axis: torch.repeat_interleave(x, n, dim=axis))(k_cache, rep, axis=1)
        v = (lambda x, n, axis: torch.repeat_interleave(x, n, dim=axis))(v_cache, rep, axis=1)
        scores = torch.einsum("bhqd,bhkd->bhqk", q, k) * (Dh ** -0.5)
        p = _softmax(scores, axis=-1)
        o = torch.einsum("bhqk,bhkd->bhqd", p, v)
        return (lambda x, *d: x.permute(*d))(o, 0, 2, 1, 3).reshape(B, Sq, Hq * Dh) @ wo

    def _B_ref(x, w1, b1, w2, b2):
        h = torch.einsum("bsd,df->bsf", x, w1) + b1
        h = _gelu(h)
        return torch.einsum("bsf,fd->bsd", h, w2) + b2

    x = A_x
    g = _sigmoid((x * gate_w).sum(-1, keepdims=True))
    a = _A_ref(x, A_k_cache, A_v_cache, A_wq, A_wo)
    b = _B_ref(x, B_w1, B_b1, B_w2, B_b2)
    return g * a + (1 - g) * b
```

```python
import re

TRANS = ("v_exp_f32", "v_log_f32", "v_rcp_f32", "v_rsq_f32", "v_sqrt_f32", "v_sin_f32", "v_cos_f32")

def _regs(tok):
    tok = tok.strip()
    tok = tok.lstrip("-")
    m = re.fullmatch(r"abs\((.*)\)", tok)
    if m: tok = m.group(1)
    m = re.fullmatch(r"\|(.*)\|", tok)
    if m: tok = m.group(1)
    m = re.fullmatch(r"([vsa])(\d+)", tok)
    if m: return [m.group(1) + m.group(2)]
    m = re.fullmatch(r"([vsa])\[(\d+):(\d+)\]", tok)
    if m: return [m.group(1) + str(i) for i in range(int(m.group(2)), int(m.group(3)) + 1)]
    if tok in ("vcc", "vcc_lo", "vcc_hi"): return ["vcc"]
    if tok in ("exec", "exec_lo", "exec_hi"): return ["exec"]
    if tok == "m0": return ["m0"]
    return []

def _split_ops(s):
    out, depth, cur = [], 0, ""
    for ch in s:
        if ch in "[(": depth += 1
        if ch in "])": depth -= 1
        if ch == "," and depth == 0:
            out.append(cur); cur = ""
        else:
            cur += ch
    if cur.strip(): out.append(cur)
    return [o.strip() for o in out]

class Ins:
    def __init__(self, text):
        self.text = text
        t = text.split(";")[0].strip()
        parts = t.split(None, 1)
        self.op = parts[0]
        rest = parts[1] if len(parts) > 1 else ""
        ops = _split_ops(rest)
        self.mods = ""
        if ops:
            last = ops[-1].split(None, 1)
            ops[-1] = last[0]
            self.mods = last[1] if len(last) > 1 else ""
        self.ops = ops
        op = self.op
        self.mfma = op.startswith("v_mfma")
        self.valu = op.startswith("v_") and not self.mfma
        self.trans = op.replace("_e32", "").replace("_e64", "") in TRANS
        self.dpp = "_dpp" in op
        self.perml = op.startswith("v_permlane")
        self.rdlane = op.startswith("v_readlane") or op.startswith("v_readfirstlane")
        self.vmem = op.startswith(("buffer_", "global_", "flat_"))
        self.ds = op.startswith("ds_")
        self.salu = op.startswith("s_")
        self.ldsdma = self.vmem and ("lds" in self.mods.split() or "_lds_" in op)
        R = [_regs(o) for o in ops]
        self.dst, self.src = [], []
        self.srcC = []
        self.stdata = []
        if self.mfma:
            self.dst = R[0]; self.src = R[1] + R[2]; self.srcC = R[3]
        elif self.valu:
            if self.perml:
                self.dst = R[0] + R[1]; self.src = R[0] + R[1]
            elif op.startswith("v_cmp"):
                self.dst = R[0]; self.src = sum(R[1:], [])
            elif op.startswith(("v_add_co", "v_sub_co", "v_addc_co", "v_subb_co")):
                self.dst = R[0] + R[1]; self.src = sum(R[2:], [])
            else:
                self.dst = R[0]; self.src = sum(R[1:], [])
                if op.startswith(("v_fmac", "v_writelane", "v_pk_fmac")) or self.dpp: self.src += R[0]
        elif self.vmem:
            if "store" in op:
                self.src = sum(R, [])
                if op.startswith("buffer"): data = R[0]
                else: data = R[1]
                if "x4" in op or "x3" in op: self.stdata = data
            elif self.ldsdma:
                self.src = sum(R, []) + ["m0"]
            elif "atomic" in op:
                if "sc0" in self.mods.split() and op.startswith("global"):
                    self.dst = R[0]; self.src = sum(R[1:], [])
                else:
                    self.src = sum(R, [])
            else:
                self.dst = R[0]; self.src = sum(R[1:], [])
        elif self.ds:
            if "read" in op or "permute" in op or "swizzle" in op:
                self.dst = R[0]; self.src = sum(R[1:], [])
            else:
                self.src = sum(R, [])
        elif self.salu:
            if op.startswith(("s_cmp", "s_cbranch", "s_branch", "s_waitcnt", "s_nop", "s_barrier", "s_endpgm", "s_sleep", "s_setprio")):
                self.src = sum(R, [])
            else:
                self.dst = R[0] if R else []; self.src = sum(R[1:], [])
                if "saveexec" in op: self.dst = self.dst + ["exec"]
        self.ws = 1
        if op == "s_nop": self.ws = int(ops[0], 0) + 1
        self.passes = 0
        if self.mfma:
            self.passes = 8 if "32x32" in op else 4

def need(p, c):
    n = 0
    pd = set(p.dst)
    pv = {r for r in pd if r[0] in "va" and r != "vcc"}
    ps = {r for r in pd if r[0] == "s" or r == "vcc"}
    cs = set(c.src); cc = set(c.srcC); cd = set(c.dst)
    if p.valu:
        if pv & (cs | cc):
            if c.dpp or c.perml: n = max(n, 2)
            if c.mfma: n = max(n, 2)
            if c.rdlane: n = max(n, 1)
            if p.trans and (c.valu or c.mfma): n = max(n, 1)
            if p.op.startswith("v_dot"): n = max(n, 0 if (c.op == p.op and _regs(c.ops[3]) == p.dst and not (pv & set(_regs(c.ops[1]) + _regs(c.ops[2])))) else 3)
        if ps & cs:
            if c.valu or c.mfma: n = max(n, 4 if c.op.startswith(("v_readlane", "v_writelane")) else 2)
            if c.vmem: n = max(n, 5)
        if "exec" in pd:
            n = max(n, 5)
    if p.mfma:
        t = {4: (6, 8, 3), 8: (10, 12, 7)}[p.passes]
        if c.mfma:
            if pv & cs: n = max(n, t[1])
            if pv & cc and not (p.dst == c.srcC and p.passes == c.passes): n = max(n, t[0])
            if pv & cd and not (p.dst == c.srcC): n = max(n, t[1])
        else:
            if pv & (cs | cd): n = max(n, t[1])
            if c.valu and set(p.srcC) & cd: n = max(n, t[2])
    if p.salu and "m0" in pd and c.ldsdma: n = max(n, 1)
    if p.stdata and set(p.stdata) & cd: n = max(n, 2)
    return n

class Asm:
    def __init__(self):
        self.lines = []
        self.hist = []
        self.vm = []
        self.nops = 0
    def raw(self, s):
        self.lines.append(s)
    def label(self, name, pad=True):
        self.lines.append(name + ":")
    def __call__(self, text, name=None):
        for t in text.strip().split("\n"):
            t = t.strip()
            if not t or t.startswith(";"):
                if t: self.lines.append("  " + t)
                continue
            if t.endswith(":"):
                self.lines.append(t); continue
            ins = Ins(t)
            dist = 0; req = 0
            for p in reversed(self.hist[-24:]):
                r = need(p, ins) - dist
                req = max(req, r)
                dist += p.ws
                if dist >= 20: break
            while req > 0:
                k = min(req, 16)
                nop = Ins("s_nop %d" % (k - 1))
                self.lines.append("  s_nop %d" % (k - 1)); self.hist.append(nop); self.nops += 1
                req -= k
            self.lines.append("  " + t)
            self.hist.append(ins)
            if ins.vmem and name is not False:
                self.vm.append(name or "_")
    def optional(self, text):
        self(text, name=False)
    def wait_vm(self, name, extra=""):
        idx = max(i for i, n in enumerate(self.vm) if n == name)
        k = len(self.vm) - 1 - idx
        assert k <= 63, (name, k)
        self("s_waitcnt vmcnt(%d)%s" % (k, extra))
    def text(self):
        return "\n".join(self.lines) + "\n"
```

```python
import sys, argparse, struct, math
sys.path.insert(0, "tools")
from asmlib import Asm
NAME = "gated_mix__gqa_block_cached__dense_activation_gelu__decode"
HDR = open("cdna_kernels/%s.s.ref" % NAME).read().split("; Override")[0]

def f2u(x): return struct.unpack("<I", struct.pack("<f", x))[0]
LOG2E = 1.4426950408889634

WS_QG = 0x10000
WS_HG = 0x30000
WS_OG = 0x80000
WS_PG = 0x100000
WS_STAMP = 0x8000000
L_WQ = 0
L_W1 = 16384
L_WO = 32768
L_W2 = 49152
L_PQ = 65536
L_PH = 73728
L_PZ = 81920
L_QC = 83968
L_ML = 84992
L_GT = 85248
L_LSE = 85280
L_OC = 85504
L_OP = 86528
L_END = L_OP + 16384

def gen(N=6, N0=8, qpos=14, vpos=8, stamps=False, kvflag="nt", wflag="nt", wqflag="nt", spin=20000, sleep=2):
    A = Asm()
    nst = [0]
    STREGS = [90, 92, 94, 96, 98, 100, 6, 8, 10, 12, 16, 18]
    def stamp():
        if stamps:
            r = STREGS[nst[0]]
            A(f"s_memrealtime s[{r}:{r+1}]")
            nst[0] += 1
    LANE, VLIN, VKP, MX, MY = 1, 2, 3, 4, 5
    VTRQ, VQF, VTRWO, VTRW2, VOCA = 6, 7, 8, 9, 10
    T0 = 11
    QF = 16; SP = 32; OA = 64; D2 = 72; TT = 76; TMP = 92; XF = 108; GF = 116; B1 = 124; B2 = 126; FAC = 127
    RING = 128
    HGR = 108
    def ring(i): r = RING + (i % 32) * 4; return r
    WV, XI, RR, BB, SS, TAG, KG, NG, FG, HI, HTAG = 32, 33, 34, 35, 36, 37, 38, 39, 40, 41, 42
    ST = 43
    SK, SV, SWQ, SW1, SWO, SW2, SHS, SHL, SB1 = 44, 48, 52, 56, 60, 64, 68, 72, 76
    M55, MAA, M33, MCC = 80, 82, 84, 86
    SOFF, SC = 88, 89
    A.raw(HDR.rstrip("\n"))
    A.raw(f"; @launch grid=(256,1,1) block=(512,1,1) lds={L_END}")
    A.raw('.amdgcn_target "amdgcn-amd-amdhsa--gfx950"')
    A.raw(".text")
    A.raw(f".globl {NAME}_kernel")
    A.raw(".p2align 8")
    A.raw(f".type {NAME}_kernel,@function")
    A.raw(f"{NAME}_kernel:")
    stamp()
    A(f"""
    s_cmp_ge_u32 s2, 256
    s_cbranch_scc1 L_end
    s_load_dwordx16 s[4:19], s[0:1], 0
    s_load_dwordx8 s[20:27], s[0:1], 64
    s_load_dwordx4 s[28:31], s[0:1], 96
    v_lshrrev_b32 v{T0}, 6, v0
    v_and_b32 v{LANE}, 63, v0
    s_and_b32 s{XI}, s2, 7
    v_readfirstlane_b32 s{WV}, v{T0}
    s_lshr_b32 s{RR}, s2, 3
    s_lshr_b32 s{BB}, s{RR}, 2
    s_and_b32 s{SS}, s{RR}, 3
    v_lshlrev_b32 v{VLIN}, 4, v{LANE}
    v_and_b32 v{T0}, 3, v{LANE}
    v_bfe_u32 v{T0+1}, v{LANE}, 2, 2
    v_lshrrev_b32 v{T0+2}, 4, v{LANE}
    v_lshlrev_b32 v{VKP}, 4, v{T0}
    v_lshl_add_u32 v{VKP}, v{T0+1}, 8, v{VKP}
    v_lshl_add_u32 v{VKP}, v{T0+2}, 6, v{VKP}
    s_lshl_b32 s{ST}, s{BB}, 3
    s_add_u32 s{ST}, s{ST}, s{XI}
    s_lshl_b32 s{ST}, s{ST}, 2
    s_add_u32 s{ST}, s{ST}, s{SS}
    s_lshl_b32 s{ST}, s{ST}, 18
    s_lshl_b32 s3, s{WV}, 7
    v_lshl_add_u32 v{TMP+1}, v{T0+2}, 4, s3
    v_and_b32 v{TMP}, 7, v{LANE}
    v_lshl_add_u32 v{TMP}, v{TMP}, 10, v{TMP+1}
    s_lshl_b32 s3, s{WV}, 6
    v_lshrrev_b32 v{TMP+2}, 1, v{LANE}
    v_add_u32 v{TMP+2}, s3, v{TMP+2}
    v_and_b32 v{TMP+3}, 1, v{LANE}
    v_lshlrev_b32 v{TMP+3}, 4, v{TMP+3}
    v_mul_u32_u24 v{TMP+4}, 3584, v{TMP+2}
    v_add_u32 v{TMP+4}, v{TMP+4}, v{TMP+3}
    v_lshl_add_u32 v{TMP+3}, v{TMP+2}, 13, v{TMP+3}
    ; roles
    s_lshr_b32 s{KG}, s{RR}, 2
    s_lshl_b32 s{FG}, s{KG}, 3
    s_add_u32 s{FG}, s{FG}, s{XI}
    s_lshl_b32 s3, s{XI}, 3
    s_add_u32 s{KG}, s{KG}, s3
    s_and_b32 s{NG}, s{RR}, 3
    s_mul_i32 s{HI}, s{XI}, 14
    s_add_u32 s{HI}, s{HI}, s{RR}
    s_sub_u32 s{HI}, s{HI}, 16
    s_lshl_b32 s{SOFF}, s{WV}, 12
    s_lshl_b32 m0, s{WV}, 11
    s_mov_b32 s{SK+3}, 0x20000
    s_mov_b32 s{SV+3}, 0x20000
    s_mov_b32 s{SWQ+3}, 0x20000
    s_mov_b32 s{SW1+3}, 0x20000
    s_mov_b32 s{SWO+3}, 0x20000
    s_mov_b32 s{SW2+3}, 0x20000
    s_mov_b32 s{SHS+3}, 0x20000
    s_mov_b32 s{SHL+3}, 0x20000
    s_mov_b32 s{SB1+3}, 0x20000
    s_mov_b32 s{SK+2}, 0x40000
    s_mov_b32 s{SV+2}, 0x40000
    s_waitcnt lgkmcnt(0)
    s_load_dword s{TAG}, s[30:31], 0
    s_lshl_b32 s3, s{XI}, 5
    s_add_u32 s3, s3, s{RR}
    s_lshl_b32 s3, s3, 5
    s_add_u32 s{SWQ}, s10, s3
    s_addc_u32 s{SWQ+1}, s11, 0
    s_sub_u32 s{SWQ+2}, 0x400000, s3
    s_mov_b32 s14, 0x40000
    """)
    A(f"buffer_load_dwordx4 v{TMP+3}, s[{SWQ}:{SWQ+3}], 0 offen {wqflag} lds", "wq0")
    A(f"s_add_u32 m0, m0, 1024")
    A(f"buffer_load_dwordx4 v{TMP+3}, s[{SWQ}:{SWQ+3}], s14 offen {wqflag} lds", "wq1")
    A(f"global_load_dwordx4 v[{XF}:{XF+3}], v{TMP}, s[4:5]", "x0")
    A(f"global_load_dwordx4 v[{XF+4}:{XF+7}], v{TMP}, s[4:5] offset:64", "x1")
    A(f"""
    s_add_u32 s{SK}, s6, s{ST}
    s_addc_u32 s{SK+1}, s7, 0
    s_add_u32 s{SV}, s8, s{ST}
    s_addc_u32 s{SV+1}, s9, 0
    s_lshl_b32 s3, s{HI}, 5
    s_add_u32 s{SW1}, s16, s3
    s_addc_u32 s{SW1+1}, s17, 0
    s_sub_u32 s{SW1+2}, {512*3584}, s3
    s_add_u32 s{SB1}, s18, s3
    s_addc_u32 s{SB1+1}, s19, 0
    s_mov_b32 s{SB1+2}, 32
    s_add_u32 s{SHS}, s30, {WS_HG}
    s_addc_u32 s{SHS+1}, s31, 0
    s_mov_b32 s{SHS+2}, {28*2048}
    s_sub_u32 s3, s{RR}, 16
    s_cmp_lt_u32 s3, 14
    s_cselect_b32 s{SW1+2}, s{SW1+2}, 0
    s_cselect_b32 s{SB1+2}, s{SB1+2}, 0
    s_cselect_b32 s{SHS+2}, s{SHS+2}, 0
    s_cselect_b32 s{SW1}, s{SW1}, s16
    s_cselect_b32 s{SW1+1}, s{SW1+1}, s17
    s_cselect_b32 s{SB1}, s{SB1}, s18
    s_cselect_b32 s{SB1+1}, s{SB1+1}, s19
    s_add_u32 m0, m0, {L_W1 - L_WQ - 1024}
    s_mov_b32 s14, {32*3584}
    """)
    A(f"global_load_dwordx4 v[{GF}:{GF+3}], v{TMP+1}, s[24:25]", "g0")
    A(f"global_load_dwordx4 v[{GF+4}:{GF+7}], v{TMP+1}, s[24:25] offset:64", "g1")
    A(f"buffer_load_dwordx4 v{TMP+4}, s[{SW1}:{SW1+3}], 0 offen {wqflag} lds", "w10")
    A(f"s_add_u32 m0, m0, 1024")
    A(f"buffer_load_dwordx4 v{TMP+4}, s[{SW1}:{SW1+3}], s14 offen {wqflag} lds", "w11")

    stream = []
    for i in range(32):
        if i == qpos: stream += ["Q0", "Q1"]
        stream.append(f"K{i}")
    for j in range(32):
        if j == vpos: stream += ["W2a", "W2b", "H0", "H1", "H2", "H3"]
        stream.append(f"V{j}")
    stream += ["WOa", "WOb"]
    done = set()
    arrived = set()
    issued = []

    QR = TMP
    VQA, VHA, VW2A, VWOA = 100, 101, 102, 103
    XY = 104

    def issue(nm):
        if nm[0] == "K" and nm[1:].isdigit():
            i = int(nm[1:]); r = ring(i)
            A(f"buffer_load_dwordx4 v[{r}:{r+3}], v{VKP}, s[{SK}:{SK+3}], s{SOFF} offen offset:{(i%4)*1024} {kvflag}", nm)
            if i % 4 == 3:
                if i == 31: A(f"s_lshl_b32 s{SOFF}, s{WV}, 12")
                else: A(f"s_add_u32 s{SOFF}, s{SOFF}, 32768")
        elif nm[0] == "V":
            j = int(nm[1:]); r = ring(j)
            assert f"KT{j//4}" in done, nm
            A(f"buffer_load_dwordx4 v[{r}:{r+3}], v{VLIN}, s[{SV}:{SV+3}], s{SOFF} offen offset:{(j%4)*1024} {kvflag}", nm)
            if j % 4 == 3 and j != 31: A(f"s_add_u32 s{SOFF}, s{SOFF}, 32768")
        elif nm == "Q0":
            A(f"global_load_dwordx4 v[{QR}:{QR+3}], v{VQA}, s[30:31] sc1", nm)
        elif nm == "Q1":
            A(f"global_load_dwordx4 v[{QR+4}:{QR+7}], v{VQA}, s[30:31] offset:1024 sc1", nm)
        elif nm == "W2a":
            A(f"s_lshl_b32 s3, s{WV}, 11")
            A(f"s_add_u32 m0, s3, {L_W2}")
            A(f"buffer_load_dwordx4 v{VW2A}, s[{SW2}:{SW2+3}], 0 offen {wflag} lds", nm)
        elif nm == "W2b":
            A(f"s_add_u32 m0, m0, 1024")
            A(f"v_xor_b32 v{VW2A}, 128, v{VW2A}")
            A(f"s_movk_i32 s3, 4096")
            A(f"buffer_load_dwordx4 v{VW2A}, s[{SW2}:{SW2+3}], s3 offen {wflag} lds", nm)
        elif nm[0] == "H":
            i = int(nm[1:]); r = HGR + 4 * i
            A(f"buffer_load_dwordx4 v[{r}:{r+3}], v{VHA}, s[{SHL}:{SHL+3}], 0 offen offset:{i*64} sc1", nm)
        elif nm == "WOa":
            A(f"s_lshl_b32 s3, s{WV}, 11")
            A(f"s_add_u32 m0, s3, {L_WO}")
            A(f"buffer_load_dwordx4 v{VWOA}, s[{SWO}:{SWO+3}], 0 offen {wflag} lds", nm)
        elif nm == "WOb":
            A(f"s_add_u32 m0, m0, 1024")
            A(f"s_movk_i32 s3, 4096")
            A(f"buffer_load_dwordx4 v{VWOA}, s[{SWO}:{SWO+3}], s3 offen {wflag} lds", nm)
        issued.append(nm)

    def wait(nm):
        if nm in arrived: return
        A.wait_vm(nm)
        for x in issued[:issued.index(nm) + 1]: arrived.add(x)

    A(f"v_lshlrev_b32 v{T0+3}, 3, v{T0}")
    A(f"buffer_load_dwordx2 v[{B1}:{B1+1}], v{T0+3}, s[{SB1}:{SB1+3}], 0 offen", "b1")
    A(f"""
    s_and_b32 s3, s2, 127
    s_lshl_b32 s3, s3, 3
    v_lshl_add_u32 v{T0+3}, v{T0}, 1, s3
    """)
    A(f"global_load_ushort v{B2}, v{T0+3}, s[22:23]", "b2")
    pos = 0
    while pos < N0:
        issue(stream[pos]); pos += 1
    A(f"""
    s_mov_b32 s{M55}, 0x55555555
    s_mov_b32 s{M55+1}, 0x55555555
    s_mov_b32 s{MAA}, 0xaaaaaaaa
    s_mov_b32 s{MAA+1}, 0xaaaaaaaa
    s_mov_b32 s{M33}, 0x33333333
    s_mov_b32 s{M33+1}, 0x33333333
    s_mov_b32 s{MCC}, 0xcccccccc
    s_mov_b32 s{MCC+1}, 0xcccccccc
    s_mov_b32 s{SC}, {hex(f2u(LOG2E * 128 ** -0.5))}
    s_lshl_b32 s3, s{WV}, 11
    v_lshl_add_u32 v{VTRQ}, v{T0}, 3, s3
    v_lshl_add_u32 v{VTRQ}, v{T0+1}, 5, v{VTRQ}
    v_lshl_add_u32 v{VTRQ}, v{T0+2}, 8, v{VTRQ}
    v_lshlrev_b32 v{VQF}, 8, v{T0+1}
    v_lshl_add_u32 v{VQF}, v{T0+2}, 6, v{VQF}
    v_add_u32 v{VQF}, {L_QC}, v{VQF}
    ; masks: e2 = l&3
    v_and_b32 v{T0+3}, 1, v{LANE}
    v_lshlrev_b32 v{T0+3}, 4, v{T0+3}
    v_mov_b32 v{T0+4}, 0xffff
    v_lshlrev_b32 v{T0+3}, v{T0+3}, v{T0+4}
    v_cndmask_b32 v{MX}, 0, v{T0+3}, s[{M33}:{M33+1}]
    v_cndmask_b32 v{MY}, 0, v{T0+3}, s[{MCC}:{MCC+1}]
    v_and_b32 v{T0+3}, 1, v{T0+2}
    v_lshl_or_b32 v{T0+4}, v{T0+1}, 1, v{T0+3}
    v_xor_b32 v{T0+4}, s{WV}, v{T0+4}
    v_lshlrev_b32 v{VTRWO}, 3, v{T0}
    v_lshl_add_u32 v{VTRWO}, v{T0+4}, 5, v{VTRWO}
    v_lshl_add_u32 v{VTRWO}, v{T0+1}, 11, v{VTRWO}
    v_lshl_add_u32 v{VTRWO}, v{T0+2}, 9, v{VTRWO}
    v_lshl_or_b32 v{T0+4}, v{T0+3}, 2, v{T0+1}
    v_xor_b32 v{T0+4}, s{WV}, v{T0+4}
    v_lshlrev_b32 v{VTRW2}, 3, v{T0}
    v_lshl_add_u32 v{VTRW2}, v{T0+4}, 5, v{VTRW2}
    v_lshl_add_u32 v{VTRW2}, v{T0+1}, 8, v{VTRW2}
    v_lshl_add_u32 v{VTRW2}, v{T0+2}, 10, v{VTRW2}
    v_and_b32 v{T0+3}, 7, v{LANE}
    v_lshlrev_b32 v{VOCA}, 7, v{T0+3}
    v_lshl_add_u32 v{VOCA}, v{T0+2}, 4, v{VOCA}
    v_add_u32 v{VOCA}, {L_OC}, v{VOCA}
    v_lshlrev_b32 v{VHA}, 8, v{T0+3}
    v_lshl_add_u32 v{VHA}, v{T0+2}, 4, v{VHA}
    s_lshl_b32 s3, s{XI}, 3
    s_add_u32 s3, s3, s{BB}
    s_lshl_b32 s3, s3, 11
    s_add_u32 s3, s3, {WS_QG}
    v_add_u32 v{VQA}, s3, v{VLIN}
    s_and_b32 s3, s{WV}, 3
    s_lshl_b32 s3, s3, 2
    v_lshrrev_b32 v{T0+3}, 5, v{LANE}
    v_lshl_or_b32 v{T0+3}, v{T0+3}, 1, s3
    v_and_b32 v{T0+4}, 15, v{LANE}
    v_xor_b32 v{T0+3}, v{T0+3}, v{T0+4}
    s_lshl_b32 s3, s{WV}, 13
    v_lshl_add_u32 v{VWOA}, v{T0+2}, 10, s3
    v_lshl_add_u32 v{VW2A}, v{T0+2}, 10, s3
    v_lshl_add_u32 v{VWOA}, v{T0+3}, 4, v{VWOA}
    ; w2: f = 4i + (l>>4): chunk16 = (l&15) ^ (f<<1)
    v_lshlrev_b32 v{T0+3}, 1, v{T0+2}
    v_xor_b32 v{T0+3}, v{T0+3}, v{T0+4}
    v_lshl_add_u32 v{VW2A}, v{T0+3}, 4, v{VW2A}
    s_lshl_b32 s3, s{KG}, 16
    s_lshl_b32 s14, s{NG}, 8
    s_add_u32 s3, s3, s14
    s_add_u32 s{SWO}, s12, s3
    s_addc_u32 s{SWO+1}, s13, 0
    s_sub_u32 s{SWO+2}, 0x400000, s3
    s_cmp_lt_u32 s{FG}, 28
    s_cselect_b32 s15, s{FG}, 0
    s_lshl_b32 s3, s15, 16
    s_add_u32 s3, s3, s14
    s_add_u32 s{SW2}, s20, s3
    s_addc_u32 s{SW2+1}, s21, 0
    s_sub_u32 s{SW2+2}, {1792*1024}, s3
    s_lshl_b32 s3, s15, 11
    s_add_u32 s3, s3, {WS_HG}
    s_add_u32 s{SHL}, s30, s3
    s_addc_u32 s{SHL+1}, s31, 0
    s_cmp_lt_u32 s{FG}, 28
    s_cselect_b32 s{SW2+2}, s{SW2+2}, 0
    s_cselect_b32 s{SHL+2}, 2048, 0
    s_waitcnt lgkmcnt(0)
    s_add_u32 s{TAG}, s{TAG}, 0x9e3779b9
    s_cmp_lt_u32 s{FG}, 28
    s_cselect_b32 s{HTAG}, s{TAG}, 0
    """)
    A.wait_vm("x1")
    W = TT
    for u in range(2):
        for hf in range(2):
            A(f"ds_read_b64_tr_b16 v[{W+u*4+hf*2}:{W+u*4+hf*2+1}], v{VTRQ} offset:{L_WQ + u*1024 + hf*128}")
    A.wait_vm("w11")
    for u in range(2):
        for hf in range(2):
            A(f"ds_read_b64_tr_b16 v[{W+8+u*4+hf*2}:{W+8+u*4+hf*2+1}], v{VTRQ} offset:{L_W1 + u*1024 + hf*128}")
    PQ, PH, PZ = SP, SP + 4, SP + 8
    A(f"""
    v_mfma_f32_16x16x32_bf16 v[{PZ}:{PZ+3}], v[{GF}:{GF+3}], v[{XF}:{XF+3}], 0
    v_mfma_f32_16x16x32_bf16 v[{PZ}:{PZ+3}], v[{GF+4}:{GF+7}], v[{XF+4}:{XF+7}], v[{PZ}:{PZ+3}]
    s_lshl_b32 s3, s{WV}, 10
    v_add_u32 v{T0+3}, s3, v{VLIN}
    v_lshrrev_b32 v{T0+4}, 2, v{T0+3}
    v_add_u32 v{T0+3}, {L_PQ}, v{T0+3}
    v_add_u32 v{T0+4}, {L_PZ}, v{T0+4}
    s_waitcnt lgkmcnt(4)
    v_mfma_f32_16x16x32_bf16 v[{PQ}:{PQ+3}], v[{W}:{W+3}], v[{XF}:{XF+3}], 0
    v_mfma_f32_16x16x32_bf16 v[{PQ}:{PQ+3}], v[{W+4}:{W+7}], v[{XF+4}:{XF+7}], v[{PQ}:{PQ+3}]
    s_waitcnt lgkmcnt(0)
    v_mfma_f32_16x16x32_bf16 v[{PH}:{PH+3}], v[{W+8}:{W+11}], v[{XF}:{XF+3}], 0
    v_mfma_f32_16x16x32_bf16 v[{PH}:{PH+3}], v[{W+12}:{W+15}], v[{XF+4}:{XF+7}], v[{PH}:{PH+3}]
    ds_write_b32 v{T0+4}, v{PZ}
    ds_write_b128 v{T0+3}, v[{PQ}:{PQ+3}]
    ds_write_b128 v{T0+3}, v[{PH}:{PH+3}] offset:{L_PH - L_PQ}
    s_waitcnt lgkmcnt(0)
    s_barrier
    """)
    R0 = SP
    A(f"""
    s_cmp_gt_u32 s{WV}, 1
    s_cbranch_scc1 L_p0_done
    v_bfe_u32 v{T0+3}, v{LANE}, 2, 3
    v_lshl_add_u32 v{T0+4}, v{T0}, 4, v{T0+3}
    v_lshlrev_b32 v{T0+4}, 4, v{T0+4}
    s_lshl_b32 s3, s{WV}, 13
    s_add_u32 s3, s3, {L_PQ}
    v_add_u32 v{T0+4}, s3, v{T0+4}
    """)
    for w in range(8):
        A(f"ds_read_b128 v[{R0+4*w}:{R0+4*w+3}], v{T0+4} offset:{w*1024}")
    A(f"v_lshlrev_b32 v{TT+8}, 2, v{T0+3}")
    A(f"v_add_u32 v{TT+8}, {L_PZ}, v{TT+8}")
    for w in range(8):
        A(f"ds_read_b32 v{TT+w}, v{TT+8} offset:{w*256}")
    A("s_waitcnt lgkmcnt(8)")
    for (a, b) in ((0, 1), (2, 3), (4, 5), (6, 7), (0, 2), (4, 6), (0, 4)):
        for r in range(4):
            A(f"v_add_f32 v{R0+4*a+r}, v{R0+4*a+r}, v{R0+4*b+r}")
    A(f"""
    s_cmp_eq_u32 s{WV}, 1
    s_cbranch_scc1 L_p0_h
    v_cvt_pk_bf16_f32 v{R0}, v{R0}, v{R0+1}
    v_cvt_pk_bf16_f32 v{R0+1}, v{R0+2}, v{R0+3}
    v_mov_b32 v{R0+2}, s{TAG}
    v_mov_b32 v{R0+3}, s{TAG}
    s_lshl_b32 s3, s{XI}, 14
    s_lshl_b32 s14, s{RR}, 6
    s_add_u32 s3, s3, s14
    s_add_u32 s3, s3, {WS_QG}
    v_lshl_add_u32 v{T0+4}, v{T0}, 4, s3
    v_lshl_add_u32 v{T0+4}, v{T0+3}, 11, v{T0+4}
    s_mov_b32 exec_hi, 0
    """)
    A.optional(f"global_store_dwordx4 v{T0+4}, v[{R0}:{R0+3}], s[30:31] sc1")
    A(f"""
    s_mov_b32 exec_hi, -1
    s_waitcnt lgkmcnt(0)
    s_branch L_p0_done
    L_p0_h:
    s_waitcnt lgkmcnt(0)
    """)
    for (a, b) in ((0, 1), (2, 3), (4, 5), (6, 7), (0, 2), (4, 6), (0, 4)):
        A(f"v_add_f32 v{TT+a}, v{TT+a}, v{TT+b}")
    c1 = math.sqrt(2 / math.pi);
    k1 = -2 * c1 * LOG2E; k3 = k1 * 0.044715
    A(f"""
    v_mul_f32 v{TT}, {hex(f2u(-LOG2E))}, v{TT}
    v_exp_f32 v{TT}, v{TT}
    v_add_f32 v{TT}, 1.0, v{TT}
    v_rcp_f32 v{TT}, v{TT}
    v_lshlrev_b32 v{TT+1}, 2, v{T0+3}
    v_add_u32 v{TT+1}, {L_GT}, v{TT+1}
    ds_write_b32 v{TT+1}, v{TT}
    v_sub_f32 v{TT}, 1.0, v{TT}
    """)
    A.wait_vm("b1")
    A(f"""
    v_lshlrev_b32 v{TT+2}, 16, v{B1}
    v_and_b32 v{TT+3}, 0xffff0000, v{B1}
    v_lshlrev_b32 v{TT+4}, 16, v{B1+1}
    v_and_b32 v{TT+5}, 0xffff0000, v{B1+1}
    v_mov_b32 v{TT+6}, {hex(f2u(k1))}
    """)
    for r in range(4):
        A(f"v_add_f32 v{R0+r}, v{R0+r}, v{TT+2+r}")
    for r in range(4):
        A(f"v_mul_f32 v{R0+4+r}, v{R0+r}, v{R0+r}")
    for r in range(4):
        A(f"v_fmamk_f32 v{R0+4+r}, v{R0+4+r}, {hex(f2u(k3))}, v{TT+6}")
    for r in range(4):
        A(f"v_mul_f32 v{R0+4+r}, v{R0+4+r}, v{R0+r}")
    for r in range(4):
        A(f"v_exp_f32 v{R0+4+r}, v{R0+4+r}")
    for r in range(4):
        A(f"v_add_f32 v{R0+4+r}, 1.0, v{R0+4+r}")
    for r in range(4):
        A(f"v_rcp_f32 v{R0+4+r}, v{R0+4+r}")
    for r in range(4):
        A(f"v_mul_f32 v{R0+r}, v{R0+r}, v{TT}")
    for r in range(4):
        A(f"v_mul_f32 v{R0+r}, v{R0+r}, v{R0+4+r}")
    A(f"""
    v_cvt_pk_bf16_f32 v{R0}, v{R0}, v{R0+1}
    v_cvt_pk_bf16_f32 v{R0+1}, v{R0+2}, v{R0+3}
    v_mov_b32 v{R0+2}, s{TAG}
    v_mov_b32 v{R0+3}, s{TAG}
    s_lshr_b32 s3, s{HI}, 2
    s_lshl_b32 s3, s3, 11
    s_and_b32 s14, s{HI}, 3
    s_lshl_b32 s14, s14, 6
    s_add_u32 s3, s3, s14
    s_and_b32 s3, s3, 0xffff
    v_lshl_add_u32 v{T0+4}, v{T0}, 4, s3
    v_lshl_add_u32 v{T0+4}, v{T0+3}, 8, v{T0+4}
    s_mov_b32 exec_hi, 0
    """)
    A.optional(f"buffer_store_dwordx4 v[{R0}:{R0+3}], v{T0+4}, s[{SHS}:{SHS+3}], 0 offen sc1")
    A(f"""
    s_mov_b32 exec_hi, -1
    s_waitcnt lgkmcnt(0)
    s_nop 1
    L_p0_done:
    """)
    stamp()

    def qproc():
        A(f"""
        s_mov_b32 s14, {spin}
        L_q_chk:
        v_cmp_eq_u32 vcc, s{TAG}, v{QR+3}
        v_cmp_eq_u32 s[28:29], s{TAG}, v{QR+7}
        s_and_b64 vcc, vcc, s[28:29]
        s_cmp_eq_u64 vcc, exec
        s_cbranch_scc1 L_q_ok
        s_sub_u32 s14, s14, 1
        s_cbranch_scc1 L_q_ok
        """)
        A.optional(f"global_load_dwordx4 v[{QR}:{QR+3}], v{VQA}, s[30:31] sc1")
        A.optional(f"global_load_dwordx4 v[{QR+4}:{QR+7}], v{VQA}, s[30:31] offset:1024 sc1")
        A(f"""
        s_waitcnt vmcnt(0)
        s_branch L_q_chk
        L_q_ok:
        v_lshrrev_b32 v{T0+3}, 1, v{VLIN}
        v_add_u32 v{T0+3}, {L_QC}, v{T0+3}
        ds_write_b64 v{T0+3}, v[{QR}:{QR+1}]
        ds_write_b64 v{T0+3}, v[{QR+4}:{QR+5}] offset:512
        s_waitcnt lgkmcnt(0)
        """)
        for u in range(4):
            A(f"ds_read_b128 v[{QF+4*u}:{QF+4*u+3}], v{VQF} offset:{u*16}")
        A("s_waitcnt lgkmcnt(0)")
        stamp()

    def ktile(t):
        R = [ring(4 * t + i) for i in range(4)]
        dpp = "row_mask:0xf bank_mask:0xf"
        A(f"s_mov_b64 vcc, s[{M55}:{M55+1}]")
        for p in (0, 2):
            for w in range(4):
                A(f"v_cndmask_b32_dpp v{TT+4*p+w}, v{R[p+1]+w}, v{R[p]+w}, vcc quad_perm:[1,0,3,2] {dpp}")
        A(f"s_mov_b64 vcc, s[{MAA}:{MAA+1}]")
        for p in (0, 2):
            for w in range(4):
                A(f"v_cndmask_b32_dpp v{TT+4*(p+1)+w}, v{R[p]+w}, v{R[p+1]+w}, vcc quad_perm:[1,0,3,2] {dpp}")
        A(f"s_mov_b64 vcc, s[{M33}:{M33+1}]")
        for p in (0, 1):
            for w in range(4):
                A(f"v_cndmask_b32_dpp v{R[p]+w}, v{TT+4*(p+2)+w}, v{TT+4*p+w}, vcc quad_perm:[2,3,0,1] {dpp}")
        A(f"s_mov_b64 vcc, s[{MCC}:{MCC+1}]")
        for p in (0, 1):
            for w in range(4):
                A(f"v_cndmask_b32_dpp v{R[p+2]+w}, v{TT+4*p+w}, v{TT+4*(p+2)+w}, vcc quad_perm:[2,3,0,1] {dpp}")
        S = SP + 4 * t
        for u in range(4):
            c = "0" if u == 0 else f"v[{S}:{S+3}]"
            A(f"v_mfma_f32_16x16x32_bf16 v[{S}:{S+3}], v[{R[u]}:{R[u]+3}], v[{QF+4*u}:{QF+4*u+3}], {c}")

    def xreduce(reg, tmp, op):
        A(f"""
        v_mov_b32 v{tmp}, v{reg}
        v_permlane32_swap_b32 v{reg}, v{tmp}
        {op} v{reg}, v{reg}, v{tmp}
        v_mov_b32 v{tmp}, v{reg}
        v_permlane16_swap_b32 v{reg}, v{tmp}
        {op} v{reg}, v{reg}, v{tmp}
        """)

    MREG = TMP
    def softmax():
        m = TT
        for i in range(8):
            A(f"v_max3_f32 v{m+i}, v{SP+4*i}, v{SP+4*i+1}, v{SP+4*i+2}")
        for i in range(4):
            A(f"v_max3_f32 v{m+2*i}, v{m+2*i}, v{m+2*i+1}, v{SP+8*i+3}")
        for i in range(2):
            A(f"v_max3_f32 v{m+4*i}, v{m+4*i}, v{m+4*i+2}, v{SP+16*i+7}")
        A(f"v_max3_f32 v{m}, v{m}, v{m+4}, v{SP+15}")
        A(f"v_max_f32 v{m}, v{m}, v{SP+31}")
        xreduce(m, m + 1, "v_max_f32")
        A(f"v_mul_f32 v{MREG}, s{SC}, v{m}")
        for i in range(32):
            A(f"v_fma_f32 v{SP+i}, v{SP+i}, s{SC}, -v{MREG}")
        for i in range(32):
            A(f"v_exp_f32 v{SP+i}, v{SP+i}")
        for i in range(8):
            A(f"v_add_f32 v{m+i}, v{SP+4*i}, v{SP+4*i+1}")
        for i in range(8):
            A(f"v_add_f32 v{m+8+i}, v{SP+4*i+2}, v{SP+4*i+3}")
        for st in (8, 4, 2, 1):
            for i in range(st):
                A(f"v_add_f32 v{m+i}, v{m+i}, v{m+st+i}")
        for i in range(32):
            A(f"v_cvt_pk_bf16_f32 v{SP+i}, v{SP+i}, v{SP+i}")
        xreduce(m, m + 1, "v_add_f32")
        A(f"""
        s_lshl_b32 s3, s{WV}, 2
        s_add_u32 s3, s3, {L_ML}
        v_lshl_add_u32 v{m+2}, v{T0+1}, 5, s3
        ds_write_b32 v{m+2}, v{MREG}
        ds_write_b32 v{m+2}, v{m} offset:128
        """)

    def vprep(j):
        x = XY + 2 * (j % 2)
        A(f"v_and_b32 v{x}, v{MX}, v{SP+j}")
        A(f"v_and_b32 v{x+1}, v{MY}, v{SP+j}")
    def vload(j):
        x = XY + 2 * (j % 2); r = ring(j)
        for eh in range(2):
            o = OA + 4 * eh
            c = "0" if j == 0 else f"v[{o}:{o+3}]"
            A(f"v_mfma_f32_16x16x16_bf16 v[{o}:{o+3}], v[{r+2*eh}:{r+2*eh+1}], v[{x}:{x+1}], {c}")

    def next_work():
        if "QP" not in done:
            return "QP" if "Q1" in arrived else None
        for t in range(8):
            if f"KT{t}" not in done:
                return f"KT{t}" if f"K{4*t+3}" in arrived else None
        if "SM" not in done: return "SM"
        for j in range(32):
            if f"VL{j}" not in done:
                return f"VL{j}" if f"V{j}" in arrived else None
        return None
    def run(w):
        if w == "QP": qproc()
        elif w[:2] == "KT": ktile(int(w[2:]))
        elif w == "SM": softmax()
        elif w[:2] == "VL":
            j = int(w[2:]); vprep(j); vload(j)
        done.add(w)

    big = [n for n in stream]
    while pos < len(stream):
        nm = stream[pos]
        if pos - N >= 0:
            wait(stream[pos - N])
        if nm[0] == "V":
            j = int(nm[1:])
            while f"KT{j//4}" not in done:
                w = next_work()
                if w is None:
                    wait("Q1" if "QP" not in done else f"K{4*min(t for t in range(8) if f'KT{t}' not in done)+3}")
                    continue
                run(w)
        issue(nm); pos += 1
        w = next_work()
        if w:
            run(w)
            if w[:2] == "VL":
                while True:
                    w = next_work()
                    if not w: break
                    run(w)
    while True:
        w = next_work()
        if not w: break
        run(w)
    assert "SM" in done and "H3" in arrived and "W2b" in arrived
    stamp()
    m = TT
    A(f"""
    s_waitcnt lgkmcnt(0)
    s_barrier
    v_lshlrev_b32 v{T0+3}, 5, v{T0+1}
    v_add_u32 v{T0+3}, {L_ML}, v{T0+3}
    ds_read_b128 v[{m}:{m+3}], v{T0+3}
    ds_read_b128 v[{m+4}:{m+7}], v{T0+3} offset:16
    ds_read_b128 v[{m+8}:{m+11}], v{T0+3} offset:128
    ds_read_b128 v[{m+12}:{m+15}], v{T0+3} offset:144
    """)
    WF = QF
    for i in range(4):
        A(f"ds_read_b64_tr_b16 v[{WF+2*i}:{WF+2*i+1}], v{VTRW2} offset:{L_W2 + i*4096}")
    GV = QF + 8
    A(f"""
    s_lshl_b32 s3, s{WV}, 2
    s_add_u32 s3, s3, {L_GT}
    v_mov_b32 v{T0+4}, s3
    ds_read_b32 v{GV}, v{T0+4}
    v_and_b32 v{T0+4}, 1, v{T0+2}
    v_lshlrev_b32 v{T0+4}, 1, v{T0+4}
    v_lshrrev_b32 v{GV+2}, 1, v{T0+2}
    v_or_b32 v{GV+2}, v{GV+2}, v{T0+4}
    s_lshr_b32 s3, s2, 7
    s_lshl_b32 s3, s3, 2
    v_add_u32 v{GV+2}, s3, v{GV+2}
    v_lshlrev_b32 v{T0+4}, 2, v{GV+2}
    v_add_u32 v{T0+4}, {L_GT}, v{T0+4}
    ds_read_b32 v{GV+1}, v{T0+4}
    s_mov_b32 s14, {spin}
    L_h_chk:
    v_cmp_eq_u32 vcc, s{HTAG}, v{HGR+3}
    v_cmp_eq_u32 s[28:29], s{HTAG}, v{HGR+7}
    s_and_b64 vcc, vcc, s[28:29]
    v_cmp_eq_u32 s[28:29], s{HTAG}, v{HGR+11}
    s_and_b64 vcc, vcc, s[28:29]
    v_cmp_eq_u32 s[28:29], s{HTAG}, v{HGR+15}
    s_and_b64 vcc, vcc, s[28:29]
    s_cmp_eq_u64 vcc, exec
    s_cbranch_scc1 L_h_ok
    s_sub_u32 s14, s14, 1
    s_cbranch_scc1 L_h_ok
    """)
    for i in range(4):
        r = HGR + 4 * i
        A.optional(f"buffer_load_dwordx4 v[{r}:{r+3}], v{VHA}, s[{SHL}:{SHL+3}], 0 offen offset:{i*64} sc1")
    A(f"""
    s_waitcnt vmcnt(0)
    s_branch L_h_chk
    L_h_ok:
    s_waitcnt lgkmcnt(0)
    """)
    for i in range(4):
        c = "0" if i == 0 else f"v[{D2}:{D2+3}]"
        A(f"v_mfma_f32_16x16x16_bf16 v[{D2}:{D2+3}], v[{HGR+4*i}:{HGR+4*i+1}], v[{WF+2*i}:{WF+2*i+1}], {c}")
    M = T0 + 4
    A(f"""
    v_max3_f32 v{M}, v{m}, v{m+1}, v{m+2}
    v_max3_f32 v{M}, v{M}, v{m+3}, v{m+4}
    v_max3_f32 v{M}, v{M}, v{m+5}, v{m+6}
    v_max_f32 v{M}, v{M}, v{m+7}
    """)
    for w in range(8):
        A(f"v_sub_f32 v{m+w}, v{m+w}, v{M}")
    A(f"v_sub_f32 v{FAC}, v{MREG}, v{M}")
    for w in range(8):
        A(f"v_exp_f32 v{m+w}, v{m+w}")
    A(f"v_exp_f32 v{FAC}, v{FAC}")
    A(f"v_mul_f32 v{m}, v{m}, v{m+8}")
    for w in range(1, 8):
        A(f"v_fmac_f32 v{m}, v{m+w}, v{m+8+w}")
    A(f"""
    v_rcp_f32 v{m+1}, v{m}
    v_log_f32 v{m+2}, v{m}
    v_mul_f32 v{FAC}, v{FAC}, v{m+1}
    v_add_f32 v{m+2}, v{m+2}, v{M}
    v_lshlrev_b32 v{m+3}, 2, v{T0+1}
    v_add_u32 v{m+3}, {L_LSE}, v{m+3}
    ds_write_b32 v{m+3}, v{m+2}
    v_sub_f32 v{GV+1}, 1.0, v{GV+1}
    v_lshlrev_b32 v{B2}, 16, v{B2}
    v_mul_f32 v{B2}, v{B2}, v{GV+1}
    """)
    VOPW, VOPR, VOGS, VOGL, VOCW, VPGS, VPGL, VLSE = 28, 29, 30, 31, 94, 95, 96, 97
    TB = 98
    A(f"""
    s_lshl_b32 s3, s{WV}, 11
    s_add_u32 s3, s3, {L_OP}
    v_add_u32 v{VOPW}, s3, v{VLIN}
    v_lshrrev_b32 v{m}, 5, v{LANE}
    s_lshl_b32 s3, s{WV}, 1
    s_and_b32 s3, s3, 3
    v_add_u32 v{m}, s3, v{m}
    v_bfe_u32 v{m+1}, v{LANE}, 3, 2
    v_bfe_u32 v{m+2}, v{LANE}, 2, 1
    v_lshlrev_b32 v{VOPR}, 4, v{T0}
    v_lshl_add_u32 v{VOPR}, v{m}, 6, v{VOPR}
    v_lshl_add_u32 v{VOPR}, v{m+1}, 8, v{VOPR}
    v_lshl_add_u32 v{VOPR}, v{m+2}, 10, v{VOPR}
    v_add_u32 v{VOPR}, {L_OP}, v{VOPR}
    v_lshlrev_b32 v{VLSE}, 2, v{m}
    v_add_u32 v{VLSE}, {L_LSE}, v{VLSE}
    s_lshl_b32 s3, s{XI}, 3
    s_and_b32 s14, s{WV}, 1
    s_lshl_b32 s14, s14, 2
    s_add_u32 s3, s3, s14
    s_lshl_b32 s3, s3, 13
    s_lshl_b32 s14, s{RR}, 8
    s_add_u32 s3, s3, s14
    s_add_u32 s3, s3, {WS_OG}
    v_and_b32 v{m+1}, 15, v{LANE}
    v_lshl_add_u32 v{VOGS}, v{m+1}, 4, s3
    v_lshl_add_u32 v{VOGS}, v{T0+2}, 13, v{VOGS}
    s_lshl_b32 s3, s{KG}, 3
    s_add_u32 s3, s3, s{WV}
    s_lshl_b32 s3, s3, 10
    s_add_u32 s3, s3, {WS_OG}
    v_add_u32 v{VOGL}, s3, v{VKP}
    s_lshl_b32 s3, s{WV}, 7
    s_add_u32 s3, s3, {L_OC}
    v_lshl_add_u32 v{VOCW}, v{T0}, 3, s3
    v_lshl_add_u32 v{VOCW}, v{T0+2}, 5, v{VOCW}
    s_lshl_b32 s3, s{NG}, 3
    s_add_u32 s3, s3, s{WV}
    s_lshl_b32 s3, s3, 14
    s_lshl_b32 s14, s{KG}, 6
    s_add_u32 s3, s3, s14
    s_add_u32 s3, s3, {WS_PG}
    v_lshl_add_u32 v{VPGS}, v{T0}, 4, s3
    v_lshl_add_u32 v{VPGS}, v{T0+1}, 12, v{VPGS}
    v_and_b32 v{m+1}, 1, v{T0+2}
    v_lshl_add_u32 v{VPGS}, v{m+1}, 19, v{VPGS}
    s_lshl_b32 s3, s2, 12
    s_add_u32 s3, s3, {WS_PG}
    v_lshrrev_b32 v{m+1}, 2, v{LANE}
    v_lshl_add_u32 v{VPGL}, v{T0}, 4, s3
    v_lshl_add_u32 v{VPGL}, v{m+1}, 8, v{VPGL}
    v_mov_b32 v{m+1}, s{TAG}
    v_bfe_u32 v{TB}, v{m+1}, 0, 8
    v_bfe_u32 v{TB+1}, v{m+1}, 8, 8
    v_bfe_u32 v{TB+2}, v{m+1}, 16, 8
    v_bfe_u32 v{TB+3}, v{m+1}, 24, 8
    s_mov_b32 s15, 0xffffff00
    """)
    for j in range(32):
        if f"VL{j}" not in done:
            vprep(j)
            wait(f"V{j}")
            vload(j)
            done.add(f"VL{j}")
    stamp()
    for i in range(8):
        A(f"v_mul_f32 v{OA+i}, v{OA+i}, v{FAC}")
    R0 = SP
    A(f"""
    ds_write_b128 v{VOPW}, v[{OA}:{OA+3}]
    ds_write_b128 v{VOPW}, v[{OA+4}:{OA+7}] offset:1024
    s_waitcnt lgkmcnt(0)
    s_barrier
    s_cmp_gt_u32 s{WV}, 1
    s_cbranch_scc1 L_t_other
    """)
    for w in range(8):
        A(f"ds_read_b128 v[{R0+4*w}:{R0+4*w+3}], v{VOPR} offset:{w*2048}")
    A(f"ds_read_b32 v{TT+2}, v{VLSE}")
    A(f"v_mov_b32 v{TT+3}, s{TAG}")
    cnt = 7
    for k, (a, b) in enumerate(((0, 1), (2, 3), (0, 2), (4, 5), (0, 4), (6, 7), (0, 6))):
        hi = max(a, b)
        if 8 - hi < cnt + 1:
            cnt = 8 - hi
            A(f"s_waitcnt lgkmcnt({cnt})")
            cnt -= 1
        for r in range(4):
            A(f"v_add_f32 v{R0+4*a+r}, v{R0+4*a+r}, v{R0+4*b+r}")
    A(f"""
    v_cvt_pk_bf16_f32 v{TT}, v{R0}, v{R0+1}
    v_cvt_pk_bf16_f32 v{TT+1}, v{R0+2}, v{R0+3}
    s_waitcnt lgkmcnt(0)
    """)
    G1 = TT + 4
    A.optional(f"global_store_dwordx4 v{VOGS}, v[{TT}:{TT+3}], s[30:31] sc1")
    A.optional(f"global_load_dwordx4 v[{G1}:{G1+3}], v{VOGL}, s[30:31] sc1")
    A(f"""
    s_waitcnt vmcnt(2)
    s_branch L_t_join
    L_t_other:
    """)
    A.optional(f"global_load_dwordx4 v[{G1}:{G1+3}], v{VOGL}, s[30:31] sc1")
    A(f"""
    s_waitcnt vmcnt(1)
    L_t_join:
    s_barrier
    """)
    for u in range(2):
        for hf in range(2):
            A(f"ds_read_b64_tr_b16 v[{WF+4*u+2*hf}:{WF+4*u+2*hf+1}], v{VTRWO} offset:{L_WO + u*8192 + hf*256}")
    dpp = "row_mask:0xf bank_mask:0xf"
    C = TT + 8
    A(f"""
    s_mov_b32 s14, {spin}
    s_waitcnt vmcnt(0)
    L_o_chk:
    v_cmp_ne_u32 vcc, s{TAG}, v{G1+3}
    s_cbranch_vccz L_o_ok
    s_sub_u32 s14, s14, 1
    s_cbranch_scc1 L_o_ok
    s_mov_b64 exec, vcc
    """)
    A.optional(f"global_load_dwordx4 v[{G1}:{G1+3}], v{VOGL}, s[30:31] sc1")
    A(f"""
    s_mov_b64 exec, -1
    s_waitcnt vmcnt(0)
    s_branch L_o_chk
    L_o_ok:
    v_max_f32_dpp v{C}, v{G1+2}, v{G1+2} row_ror:4 {dpp}
    v_lshlrev_b32 v{C+4}, 16, v{G1}
    v_and_b32 v{C+5}, 0xffff0000, v{G1}
    v_max_f32_dpp v{C+1}, v{C}, v{C} row_ror:8 {dpp}
    v_lshlrev_b32 v{C+6}, 16, v{G1+1}
    v_sub_f32 v{C+1}, v{G1+2}, v{C+1}
    v_exp_f32 v{C+1}, v{C+1}
    v_and_b32 v{C+7}, 0xffff0000, v{G1+1}
    v_mul_f32 v{C+4}, v{C+4}, v{C+1}
    v_mul_f32 v{C+5}, v{C+5}, v{C+1}
    v_add_f32_dpp v{C}, v{C+1}, v{C+1} row_ror:4 {dpp}
    v_mul_f32 v{C+6}, v{C+6}, v{C+1}
    v_mul_f32 v{C+7}, v{C+7}, v{C+1}
    v_add_f32_dpp v{C+2}, v{C}, v{C} row_ror:8 {dpp}
    v_add_f32_dpp v{C+4}, v{C+4}, v{C+4} row_ror:4 {dpp}
    v_rcp_f32 v{C+2}, v{C+2}
    v_add_f32_dpp v{C+5}, v{C+5}, v{C+5} row_ror:4 {dpp}
    v_add_f32_dpp v{C+6}, v{C+6}, v{C+6} row_ror:4 {dpp}
    v_add_f32_dpp v{C+7}, v{C+7}, v{C+7} row_ror:4 {dpp}
    v_mul_f32 v{C+2}, v{C+2}, v{GV}
    v_add_f32_dpp v{C+4}, v{C+4}, v{C+4} row_ror:8 {dpp}
    v_add_f32_dpp v{C+5}, v{C+5}, v{C+5} row_ror:8 {dpp}
    v_add_f32_dpp v{C+6}, v{C+6}, v{C+6} row_ror:8 {dpp}
    v_add_f32_dpp v{C+7}, v{C+7}, v{C+7} row_ror:8 {dpp}
    v_mul_f32 v{C+4}, v{C+4}, v{C+2}
    v_mul_f32 v{C+5}, v{C+5}, v{C+2}
    v_mul_f32 v{C+6}, v{C+6}, v{C+2}
    v_mul_f32 v{C+7}, v{C+7}, v{C+2}
    v_cvt_pk_bf16_f32 v{C}, v{C+4}, v{C+5}
    v_cvt_pk_bf16_f32 v{C+1}, v{C+6}, v{C+7}
    ds_write_b64 v{VOCW}, v[{C}:{C+1}]
    s_waitcnt lgkmcnt(0)
    s_barrier
    ds_read_b128 v[{R0}:{R0+3}], v{VOCA}
    ds_read_b128 v[{R0+4}:{R0+7}], v{VOCA} offset:64
    s_waitcnt lgkmcnt(1)
    v_mfma_f32_16x16x32_bf16 v[{D2}:{D2+3}], v[{R0}:{R0+3}], v[{WF}:{WF+3}], v[{D2}:{D2+3}]
    s_waitcnt lgkmcnt(0)
    v_mfma_f32_16x16x32_bf16 v[{D2}:{D2+3}], v[{R0+4}:{R0+7}], v[{WF+4}:{WF+7}], v[{D2}:{D2+3}]
    s_mov_b32 exec_hi, 0
    """)
    for r in range(4):
        A(f"v_and_or_b32 v{D2+r}, v{D2+r}, s15, v{TB+r}")
    A.optional(f"global_store_dwordx4 v{VPGS}, v[{D2}:{D2+3}], s[30:31] sc1")
    A(f"""
    s_mov_b32 exec_hi, -1
    s_cmp_lg_u32 s{WV}, 0
    s_cbranch_scc1 L_end
    """)
    stamp()
    P = SP + 8
    for i in range(4):
        A.optional(f"global_load_dwordx4 v[{P+4*i}:{P+4*i+3}], v{VPGL}, s[30:31] offset:{i*64} sc1")
    A(f"""
    s_mov_b32 s14, {spin}
    s_mov_b32 s3, 0x0c0c0400
    s_mov_b32 s4, 0x05040100
    s_and_b32 s5, s2, 127
    s_lshl_b32 s5, s5, 3
    v_lshl_add_u32 v{C+6}, v{T0}, 1, s5
    v_lshl_add_u32 v{C+6}, v{GV+2}, 10, v{C+6}
    s_waitcnt vmcnt(0)
    L_p_chk:
    """)
    for i in range(4):
        p = P + 4 * i
        A(f"v_perm_b32 v{C}, v{p+1}, v{p}, s3")
        A(f"v_perm_b32 v{C+1}, v{p+3}, v{p+2}, s3")
        A(f"v_perm_b32 v{C}, v{C+1}, v{C}, s4")
        if i == 0:
            A(f"v_cmp_ne_u32 vcc, s{TAG}, v{C}")
        else:
            A(f"v_cmp_ne_u32 s[28:29], s{TAG}, v{C}")
            A(f"s_or_b64 vcc, vcc, s[28:29]")
    A(f"""
    s_cbranch_scc0 L_p_ok
    s_sub_u32 s14, s14, 1
    s_cbranch_scc1 L_p_ok
    s_mov_b64 exec, vcc
    """)
    if sleep: A(f"s_sleep {sleep}")
    for i in range(4):
        A.optional(f"global_load_dwordx4 v[{P+4*i}:{P+4*i+3}], v{VPGL}, s[30:31] offset:{i*64} sc1")
    A(f"""
    s_mov_b64 exec, -1
    s_waitcnt vmcnt(0)
    s_branch L_p_chk
    L_p_ok:
    """)
    for i in range(16):
        A(f"v_and_b32 v{P+i}, s15, v{P+i}")
    for (a, b) in ((0, 1), (2, 3), (0, 2)):
        for r in range(4):
            A(f"v_add_f32 v{P+4*a+r}, v{P+4*a+r}, v{P+4*b+r}")
    A(f"""
    v_permlane32_swap_b32 v{P}, v{P+1}
    v_permlane32_swap_b32 v{P+2}, v{P+3}
    v_add_f32 v{P}, v{P}, v{P+1}
    v_add_f32 v{P+2}, v{P+2}, v{P+3}
    v_permlane16_swap_b32 v{P}, v{P+2}
    v_add_f32 v{P}, v{P}, v{P+2}
    v_add_f32_dpp v{P}, v{P}, v{P} row_ror:4 {dpp}
    v_add_f32_dpp v{P}, v{P}, v{P} row_ror:8 {dpp}
    v_add_f32 v{P}, v{P}, v{B2}
    v_cvt_pk_bf16_f32 v{P}, v{P}, v{P}
    s_mov_b32 exec_lo, 0x000f000f
    s_mov_b32 exec_hi, 0x000f000f
    """)
    A.optional(f"global_store_short v{C+6}, v{P}, s[26:27]")
    A(f"""
    s_mov_b64 exec, 1
    s_cmp_lg_u32 s2, 0
    s_cbranch_scc1 L_noep
    v_mov_b32 v{C}, 0
    v_mov_b32 v{C+1}, s{TAG}
    """)
    A.optional(f"global_store_dword v{C}, v{C+1}, s[30:31] sc1")
    A("L_noep:")
    if stamps:
        A("s_waitcnt vmcnt(0)")
        stamp()
        n = nst[0]
        A(f"""
        s_waitcnt lgkmcnt(0)
        s_mul_i32 s3, s2, {8*n}
        s_add_u32 s3, s3, {WS_STAMP}
        v_mov_b32 v{C}, s3
        """)
        for k in range(n):
            A(f"v_mov_b32 v{C+2}, s{STREGS[k]}")
            A(f"v_mov_b32 v{C+3}, s{STREGS[k]+1}")
            A.optional(f"global_store_dwordx2 v{C}, v[{C+2}:{C+3}], s[30:31] offset:{8*k}")
            A("s_nop 1")
    A.raw("L_end:")
    A.raw("  s_endpgm")
    A.raw('.section .rodata,"a"')
    A.raw(".p2align 6")
    A.raw(f".amdhsa_kernel {NAME}_kernel")
    A.raw("  .amdhsa_next_free_vgpr 256")
    A.raw("  .amdhsa_next_free_sgpr 102")
    A.raw("  .amdhsa_accum_offset 256")
    A.raw("  .amdhsa_group_segment_fixed_size 0")
    A.raw("  .amdhsa_kernarg_size 112")
    A.raw("  .amdhsa_user_sgpr_count 2")
    A.raw("  .amdhsa_user_sgpr_kernarg_segment_ptr 1")
    A.raw("  .amdhsa_system_sgpr_workgroup_id_x 1")
    A.raw(".end_amdhsa_kernel")
    return A.text(), nst[0]

if __name__ == "__main__":
    ap = argparse.ArgumentParser()
    ap.add_argument("-o", default=f"cdna_kernels/{NAME}.s")
    ap.add_argument("--stamps", action="store_true")
    ap.add_argument("--N", type=int, default=6)
    ap.add_argument("--N0", type=int, default=8)
    ap.add_argument("--qpos", type=int, default=14)
    ap.add_argument("--vpos", type=int, default=8)
    ap.add_argument("--wqflag", default="nt")
    ap.add_argument("--wflag", default="nt")
    ap.add_argument("--sleep", type=int, default=2)
    a = ap.parse_args()
    t, n = gen(N=a.N, N0=a.N0, qpos=a.qpos, vpos=a.vpos, stamps=a.stamps, wqflag=a.wqflag, wflag=a.wflag, sleep=a.sleep)
    open(a.o, "w").write(t)
    print("wrote", a.o, "stamps", n)
```

```python
import sys, argparse, struct, math
sys.path.insert(0, "tools")
from asmlib import Asm
NAME = "gated_mix__gqa_block_cached__dense_activation_gelu__decode"
HDR = open("cdna_kernels/%s.s.ref" % NAME).read().split("; Override")[0]

def f2u(x): return struct.unpack("<I", struct.pack("<f", x))[0]
LOG2E = 1.4426950408889634

WS_QG = 0x10000
WS_HG = 0x30000
WS_OG = 0x80000
WS_PG = 0x100000
WS_STAMP = 0x8000000
L_WQ = 0
L_W1 = 16384
L_WO = 32768
L_W2 = 49152
L_PQ = 65536
L_PH = 73728
L_PZ = 81920
L_QC = 83968
L_ML = 84992
L_GT = 85248
L_LSE = 85280
L_OC = 85504
L_OP = 86528
L_END = L_OP + 16384

def gen(N=6, N0=8, qpos=14, vpos=8, stamps=False, kvflag="nt", wflag="nt", wqflag="nt", spin=20000, sleep=2, dbg=False, p0bar=True):
    A = Asm()
    nst = [0]
    stnames = []
    STREGS = [90, 92, 94, 96, 98, 100, 6, 8, 10, 12, 16, 18]
    def stamp(nm):
        if stamps and nm in stamps:
            stnames.append(nm)
            r = STREGS[nst[0]]
            A(f"s_memrealtime s[{r}:{r+1}]")
            nst[0] += 1
    LANE, VLIN, VKP, MX, MY = 1, 2, 3, 4, 5
    VTRQ, VQF, VTRWO, VTRW2, VOCA = 6, 7, 8, 9, 10
    T0 = 11
    QF = 16; SP = 32; OA = 64; D2 = 72; TT = 76; TMP = 92; XF = 108; GF = 116; B1 = 124; B2 = 126; FAC = 127
    RING = 128
    HGR = 108
    def ring(i): r = RING + (i % 32) * 4; return r
    WV, XI, RR, BB, SS, TAG, KG, NG, FG, HI, HTAG = 32, 33, 34, 35, 36, 37, 38, 39, 40, 41, 42
    ST = 43
    SK, SV, SWQ, SW1, SWO, SW2, SHS, SHL, SB1 = 44, 48, 52, 56, 60, 64, 68, 72, 76
    M55, MAA, M33, MCC = 80, 82, 84, 86
    SOFF, SC = 88, 89
    A.raw(HDR.rstrip("\n"))
    A.raw(f"; @launch grid=(256,1,1) block=(512,1,1) lds={L_END}")
    A.raw('.amdgcn_target "amdgcn-amd-amdhsa--gfx950"')
    A.raw(".text")
    A.raw(f".globl {NAME}_kernel")
    A.raw(".p2align 8")
    A.raw(f".type {NAME}_kernel,@function")
    A.raw(f"{NAME}_kernel:")
    stamp("entry")
    A(f"""
    s_cmp_ge_u32 s2, 256
    s_cbranch_scc1 L_end
    s_load_dwordx16 s[4:19], s[0:1], 0
    s_load_dwordx8 s[20:27], s[0:1], 64
    s_load_dwordx4 s[28:31], s[0:1], 96
    v_lshrrev_b32 v{T0}, 6, v0
    v_and_b32 v{LANE}, 63, v0
    s_and_b32 s{XI}, s2, 7
    v_readfirstlane_b32 s{WV}, v{T0}
    s_lshr_b32 s{RR}, s2, 3
    s_lshr_b32 s{BB}, s{RR}, 2
    s_and_b32 s{SS}, s{RR}, 3
    v_lshlrev_b32 v{VLIN}, 4, v{LANE}
    v_and_b32 v{T0}, 3, v{LANE}
    v_bfe_u32 v{T0+1}, v{LANE}, 2, 2
    v_lshrrev_b32 v{T0+2}, 4, v{LANE}
    v_lshlrev_b32 v{VKP}, 4, v{T0}
    v_lshl_add_u32 v{VKP}, v{T0+1}, 8, v{VKP}
    v_lshl_add_u32 v{VKP}, v{T0+2}, 6, v{VKP}
    s_lshl_b32 s{ST}, s{BB}, 3
    s_add_u32 s{ST}, s{ST}, s{XI}
    s_lshl_b32 s{ST}, s{ST}, 2
    s_add_u32 s{ST}, s{ST}, s{SS}
    s_lshl_b32 s{ST}, s{ST}, 18
    s_lshl_b32 s3, s{WV}, 7
    v_lshl_add_u32 v{TMP+1}, v{T0+2}, 4, s3
    v_and_b32 v{TMP}, 7, v{LANE}
    v_lshl_add_u32 v{TMP}, v{TMP}, 10, v{TMP+1}
    s_lshl_b32 s3, s{WV}, 6
    v_lshrrev_b32 v{TMP+2}, 1, v{LANE}
    v_add_u32 v{TMP+2}, s3, v{TMP+2}
    v_and_b32 v{TMP+3}, 1, v{LANE}
    v_lshlrev_b32 v{TMP+3}, 4, v{TMP+3}
    v_mul_u32_u24 v{TMP+4}, 3584, v{TMP+2}
    v_add_u32 v{TMP+4}, v{TMP+4}, v{TMP+3}
    v_lshl_add_u32 v{TMP+3}, v{TMP+2}, 13, v{TMP+3}
    ; roles
    s_lshr_b32 s{KG}, s{RR}, 2
    s_lshl_b32 s{FG}, s{KG}, 3
    s_add_u32 s{FG}, s{FG}, s{XI}
    s_lshl_b32 s3, s{XI}, 3
    s_add_u32 s{KG}, s{KG}, s3
    s_and_b32 s{NG}, s{RR}, 3
    s_mul_i32 s{HI}, s{XI}, 14
    s_add_u32 s{HI}, s{HI}, s{RR}
    s_sub_u32 s{HI}, s{HI}, 16
    s_lshl_b32 s{SOFF}, s{WV}, 12
    s_lshl_b32 m0, s{WV}, 11
    s_mov_b32 s{SK+3}, 0x20000
    s_mov_b32 s{SV+3}, 0x20000
    s_mov_b32 s{SWQ+3}, 0x20000
    s_mov_b32 s{SW1+3}, 0x20000
    s_mov_b32 s{SWO+3}, 0x20000
    s_mov_b32 s{SW2+3}, 0x20000
    s_mov_b32 s{SHS+3}, 0x20000
    s_mov_b32 s{SHL+3}, 0x20000
    s_mov_b32 s{SB1+3}, 0x20000
    s_mov_b32 s{SK+2}, 0x40000
    s_mov_b32 s{SV+2}, 0x40000
    s_waitcnt lgkmcnt(0)
    s_load_dword s{TAG}, s[30:31], 0
    s_lshl_b32 s3, s{XI}, 5
    s_add_u32 s3, s3, s{RR}
    s_lshl_b32 s3, s3, 5
    s_add_u32 s{SWQ}, s10, s3
    s_addc_u32 s{SWQ+1}, s11, 0
    s_sub_u32 s{SWQ+2}, 0x400000, s3
    s_mov_b32 s14, 0x40000
    """)
    stamp("karg")
    A(f"buffer_load_dwordx4 v{TMP+3}, s[{SWQ}:{SWQ+3}], 0 offen {wqflag} lds", "wq0")
    A(f"s_add_u32 m0, m0, 1024")
    A(f"buffer_load_dwordx4 v{TMP+3}, s[{SWQ}:{SWQ+3}], s14 offen {wqflag} lds", "wq1")
    A(f"global_load_dwordx4 v[{XF}:{XF+3}], v{TMP}, s[4:5]", "x0")
    A(f"global_load_dwordx4 v[{XF+4}:{XF+7}], v{TMP}, s[4:5] offset:64", "x1")
    A(f"""
    s_add_u32 s{SK}, s6, s{ST}
    s_addc_u32 s{SK+1}, s7, 0
    s_add_u32 s{SV}, s8, s{ST}
    s_addc_u32 s{SV+1}, s9, 0
    s_lshl_b32 s3, s{HI}, 5
    s_add_u32 s{SW1}, s16, s3
    s_addc_u32 s{SW1+1}, s17, 0
    s_sub_u32 s{SW1+2}, {512*3584}, s3
    s_add_u32 s{SB1}, s18, s3
    s_addc_u32 s{SB1+1}, s19, 0
    s_mov_b32 s{SB1+2}, 32
    s_add_u32 s{SHS}, s30, {WS_HG}
    s_addc_u32 s{SHS+1}, s31, 0
    s_mov_b32 s{SHS+2}, {28*2048}
    s_sub_u32 s3, s{RR}, 16
    s_cmp_lt_u32 s3, 14
    s_cselect_b32 s{SW1+2}, s{SW1+2}, 0
    s_cselect_b32 s{SB1+2}, s{SB1+2}, 0
    s_cselect_b32 s{SHS+2}, s{SHS+2}, 0
    s_cselect_b32 s{SW1}, s{SW1}, s16
    s_cselect_b32 s{SW1+1}, s{SW1+1}, s17
    s_cselect_b32 s{SB1}, s{SB1}, s18
    s_cselect_b32 s{SB1+1}, s{SB1+1}, s19
    s_add_u32 m0, m0, {L_W1 - L_WQ - 1024}
    s_mov_b32 s14, {32*3584}
    """)
    A(f"global_load_dwordx4 v[{GF}:{GF+3}], v{TMP+1}, s[24:25]", "g0")
    A(f"global_load_dwordx4 v[{GF+4}:{GF+7}], v{TMP+1}, s[24:25] offset:64", "g1")
    A(f"buffer_load_dwordx4 v{TMP+4}, s[{SW1}:{SW1+3}], 0 offen {wqflag} lds", "w10")
    A(f"s_add_u32 m0, m0, 1024")
    A(f"buffer_load_dwordx4 v{TMP+4}, s[{SW1}:{SW1+3}], s14 offen {wqflag} lds", "w11")

    stream = []
    for i in range(32):
        if i == qpos: stream += ["Q0", "Q1"]
        stream.append(f"K{i}")
    for j in range(32):
        if j == vpos: stream += ["W2a", "W2b", "H0", "H1", "H2", "H3"]
        stream.append(f"V{j}")
    stream += ["WOa", "WOb"]
    done = set()
    arrived = set()
    issued = []

    QR = TMP
    VQA, VHA, VW2A, VWOA = 100, 101, 102, 103
    XY = 104

    def issue(nm):
        if nm[0] == "K" and nm[1:].isdigit():
            i = int(nm[1:]); r = ring(i)
            A(f"buffer_load_dwordx4 v[{r}:{r+3}], v{VKP}, s[{SK}:{SK+3}], s{SOFF} offen offset:{(i%4)*1024} {kvflag}", nm)
            if i % 4 == 3:
                if i == 31: A(f"s_lshl_b32 s{SOFF}, s{WV}, 12")
                else: A(f"s_add_u32 s{SOFF}, s{SOFF}, 32768")
        elif nm[0] == "V":
            j = int(nm[1:]); r = ring(j)
            assert f"KT{j//4}" in done, nm
            A(f"buffer_load_dwordx4 v[{r}:{r+3}], v{VLIN}, s[{SV}:{SV+3}], s{SOFF} offen offset:{(j%4)*1024} {kvflag}", nm)
            if j % 4 == 3 and j != 31: A(f"s_add_u32 s{SOFF}, s{SOFF}, 32768")
        elif nm == "Q0":
            A(f"global_load_dwordx4 v[{QR}:{QR+3}], v{VQA}, s[30:31] sc1", nm)
        elif nm == "Q1":
            A(f"global_load_dwordx4 v[{QR+4}:{QR+7}], v{VQA}, s[30:31] offset:1024 sc1", nm)
        elif nm == "W2a":
            A(f"s_lshl_b32 s3, s{WV}, 11")
            A(f"s_add_u32 m0, s3, {L_W2}")
            A(f"buffer_load_dwordx4 v{VW2A}, s[{SW2}:{SW2+3}], 0 offen {wflag} lds", nm)
        elif nm == "W2b":
            A(f"s_add_u32 m0, m0, 1024")
            A(f"v_xor_b32 v{VW2A}, 128, v{VW2A}")
            A(f"s_movk_i32 s3, 4096")
            A(f"buffer_load_dwordx4 v{VW2A}, s[{SW2}:{SW2+3}], s3 offen {wflag} lds", nm)
        elif nm[0] == "H":
            i = int(nm[1:]); r = HGR + 4 * i
            A(f"buffer_load_dwordx4 v[{r}:{r+3}], v{VHA}, s[{SHL}:{SHL+3}], 0 offen offset:{i*64} sc1", nm)
        elif nm == "WOa":
            A(f"s_lshl_b32 s3, s{WV}, 11")
            A(f"s_add_u32 m0, s3, {L_WO}")
            A(f"buffer_load_dwordx4 v{VWOA}, s[{SWO}:{SWO+3}], 0 offen {wflag} lds", nm)
        elif nm == "WOb":
            A(f"s_add_u32 m0, m0, 1024")
            A(f"s_movk_i32 s3, 4096")
            A(f"buffer_load_dwordx4 v{VWOA}, s[{SWO}:{SWO+3}], s3 offen {wflag} lds", nm)
        issued.append(nm)

    def wait(nm):
        if nm in arrived: return
        A.wait_vm(nm)
        for x in issued[:issued.index(nm) + 1]: arrived.add(x)

    A(f"v_lshlrev_b32 v{T0+3}, 3, v{T0}")
    A(f"buffer_load_dwordx2 v[{B1}:{B1+1}], v{T0+3}, s[{SB1}:{SB1+3}], 0 offen", "b1")
    A(f"""
    s_and_b32 s3, s2, 127
    s_lshl_b32 s3, s3, 3
    v_lshl_add_u32 v{T0+3}, v{T0}, 1, s3
    """)
    A(f"global_load_ushort v{B2}, v{T0+3}, s[22:23]", "b2")
    if p0bar: A("s_barrier")
    pos = 0
    while pos < N0:
        issue(stream[pos]); pos += 1
    A(f"""
    s_mov_b32 s{M55}, 0x55555555
    s_mov_b32 s{M55+1}, 0x55555555
    s_mov_b32 s{MAA}, 0xaaaaaaaa
    s_mov_b32 s{MAA+1}, 0xaaaaaaaa
    s_mov_b32 s{M33}, 0x33333333
    s_mov_b32 s{M33+1}, 0x33333333
    s_mov_b32 s{MCC}, 0xcccccccc
    s_mov_b32 s{MCC+1}, 0xcccccccc
    s_mov_b32 s{SC}, {hex(f2u(LOG2E * 128 ** -0.5))}
    s_lshl_b32 s3, s{WV}, 11
    v_lshl_add_u32 v{VTRQ}, v{T0}, 3, s3
    v_lshl_add_u32 v{VTRQ}, v{T0+1}, 5, v{VTRQ}
    v_lshl_add_u32 v{VTRQ}, v{T0+2}, 8, v{VTRQ}
    v_lshlrev_b32 v{VQF}, 8, v{T0+1}
    v_lshl_add_u32 v{VQF}, v{T0+2}, 6, v{VQF}
    v_add_u32 v{VQF}, {L_QC}, v{VQF}
    ; masks: e2 = l&3
    v_and_b32 v{T0+3}, 1, v{LANE}
    v_lshlrev_b32 v{T0+3}, 4, v{T0+3}
    v_mov_b32 v{T0+4}, 0xffff
    v_lshlrev_b32 v{T0+3}, v{T0+3}, v{T0+4}
    v_cndmask_b32 v{MX}, 0, v{T0+3}, s[{M33}:{M33+1}]
    v_cndmask_b32 v{MY}, 0, v{T0+3}, s[{MCC}:{MCC+1}]
    v_and_b32 v{T0+3}, 1, v{T0+2}
    v_lshl_or_b32 v{T0+4}, v{T0+1}, 1, v{T0+3}
    v_xor_b32 v{T0+4}, s{WV}, v{T0+4}
    v_lshlrev_b32 v{VTRWO}, 3, v{T0}
    v_lshl_add_u32 v{VTRWO}, v{T0+4}, 5, v{VTRWO}
    v_lshl_add_u32 v{VTRWO}, v{T0+1}, 11, v{VTRWO}
    v_lshl_add_u32 v{VTRWO}, v{T0+2}, 9, v{VTRWO}
    v_lshl_or_b32 v{T0+4}, v{T0+3}, 2, v{T0+1}
    v_xor_b32 v{T0+4}, s{WV}, v{T0+4}
    v_lshlrev_b32 v{VTRW2}, 3, v{T0}
    v_lshl_add_u32 v{VTRW2}, v{T0+4}, 5, v{VTRW2}
    v_lshl_add_u32 v{VTRW2}, v{T0+1}, 8, v{VTRW2}
    v_lshl_add_u32 v{VTRW2}, v{T0+2}, 10, v{VTRW2}
    v_and_b32 v{T0+3}, 7, v{LANE}
    v_lshlrev_b32 v{VOCA}, 7, v{T0+3}
    v_lshl_add_u32 v{VOCA}, v{T0+2}, 4, v{VOCA}
    v_add_u32 v{VOCA}, {L_OC}, v{VOCA}
    v_lshlrev_b32 v{VHA}, 8, v{T0+3}
    v_lshl_add_u32 v{VHA}, v{T0+2}, 4, v{VHA}
    s_lshl_b32 s3, s{XI}, 3
    s_add_u32 s3, s3, s{BB}
    s_lshl_b32 s3, s3, 11
    s_add_u32 s3, s3, {WS_QG}
    v_add_u32 v{VQA}, s3, v{VLIN}
    s_and_b32 s3, s{WV}, 3
    s_lshl_b32 s3, s3, 2
    v_lshrrev_b32 v{T0+3}, 5, v{LANE}
    v_lshl_or_b32 v{T0+3}, v{T0+3}, 1, s3
    v_and_b32 v{T0+4}, 15, v{LANE}
    v_xor_b32 v{T0+3}, v{T0+3}, v{T0+4}
    s_lshl_b32 s3, s{WV}, 13
    v_lshl_add_u32 v{VWOA}, v{T0+2}, 10, s3
    v_lshl_add_u32 v{VW2A}, v{T0+2}, 10, s3
    v_lshl_add_u32 v{VWOA}, v{T0+3}, 4, v{VWOA}
    ; w2: f = 4i + (l>>4): chunk16 = (l&15) ^ (f<<1)
    v_lshlrev_b32 v{T0+3}, 1, v{T0+2}
    v_xor_b32 v{T0+3}, v{T0+3}, v{T0+4}
    v_lshl_add_u32 v{VW2A}, v{T0+3}, 4, v{VW2A}
    s_lshl_b32 s3, s{KG}, 16
    s_lshl_b32 s14, s{NG}, 8
    s_add_u32 s3, s3, s14
    s_add_u32 s{SWO}, s12, s3
    s_addc_u32 s{SWO+1}, s13, 0
    s_sub_u32 s{SWO+2}, 0x400000, s3
    s_cmp_lt_u32 s{FG}, 28
    s_cselect_b32 s15, s{FG}, 0
    s_lshl_b32 s3, s15, 16
    s_add_u32 s3, s3, s14
    s_add_u32 s{SW2}, s20, s3
    s_addc_u32 s{SW2+1}, s21, 0
    s_sub_u32 s{SW2+2}, {1792*1024}, s3
    s_lshl_b32 s3, s15, 11
    s_add_u32 s3, s3, {WS_HG}
    s_add_u32 s{SHL}, s30, s3
    s_addc_u32 s{SHL+1}, s31, 0
    s_cmp_lt_u32 s{FG}, 28
    s_cselect_b32 s{SW2+2}, s{SW2+2}, 0
    s_cselect_b32 s{SHL+2}, 2048, 0
    s_waitcnt lgkmcnt(0)
    s_add_u32 s{TAG}, s{TAG}, 0x9e3779b9
    s_cmp_lt_u32 s{FG}, 28
    s_cselect_b32 s{HTAG}, s{TAG}, 0
    """)
    stamp("setup")
    A.wait_vm("x1")
    stamp("x1")
    W = TT
    for u in range(2):
        for hf in range(2):
            A(f"ds_read_b64_tr_b16 v[{W+u*4+hf*2}:{W+u*4+hf*2+1}], v{VTRQ} offset:{L_WQ + u*1024 + hf*128}")
    A.wait_vm("w11")
    stamp("w11")
    if stamps: A("s_waitcnt lgkmcnt(0)")
    for u in range(2):
        for hf in range(2):
            A(f"ds_read_b64_tr_b16 v[{W+8+u*4+hf*2}:{W+8+u*4+hf*2+1}], v{VTRQ} offset:{L_W1 + u*1024 + hf*128}")
    PQ, PH, PZ = SP, SP + 4, SP + 8
    A(f"""
    v_mfma_f32_16x16x32_bf16 v[{PZ}:{PZ+3}], v[{GF}:{GF+3}], v[{XF}:{XF+3}], 0
    v_mfma_f32_16x16x32_bf16 v[{PZ}:{PZ+3}], v[{GF+4}:{GF+7}], v[{XF+4}:{XF+7}], v[{PZ}:{PZ+3}]
    s_lshl_b32 s3, s{WV}, 10
    v_add_u32 v{T0+3}, s3, v{VLIN}
    v_lshrrev_b32 v{T0+4}, 2, v{T0+3}
    v_add_u32 v{T0+3}, {L_PQ}, v{T0+3}
    v_add_u32 v{T0+4}, {L_PZ}, v{T0+4}
    s_waitcnt lgkmcnt(4)
    v_mfma_f32_16x16x32_bf16 v[{PQ}:{PQ+3}], v[{W}:{W+3}], v[{XF}:{XF+3}], 0
    v_mfma_f32_16x16x32_bf16 v[{PQ}:{PQ+3}], v[{W+4}:{W+7}], v[{XF+4}:{XF+7}], v[{PQ}:{PQ+3}]
    s_waitcnt lgkmcnt(0)
    v_mfma_f32_16x16x32_bf16 v[{PH}:{PH+3}], v[{W+8}:{W+11}], v[{XF}:{XF+3}], 0
    v_mfma_f32_16x16x32_bf16 v[{PH}:{PH+3}], v[{W+12}:{W+15}], v[{XF+4}:{XF+7}], v[{PH}:{PH+3}]
    ds_write_b32 v{T0+4}, v{PZ}
    ds_write_b128 v{T0+3}, v[{PQ}:{PQ+3}]
    ds_write_b128 v{T0+3}, v[{PH}:{PH+3}] offset:{L_PH - L_PQ}
    s_waitcnt lgkmcnt(0)
    s_barrier
    """)
    stamp("bar1")
    if stamps: A("s_waitcnt lgkmcnt(0)")
    R0 = SP
    A(f"""
    s_cmp_gt_u32 s{WV}, 1
    s_cbranch_scc1 L_p0_done
    v_bfe_u32 v{T0+3}, v{LANE}, 2, 3
    v_lshl_add_u32 v{T0+4}, v{T0}, 4, v{T0+3}
    v_lshlrev_b32 v{T0+4}, 4, v{T0+4}
    s_lshl_b32 s3, s{WV}, 13
    s_add_u32 s3, s3, {L_PQ}
    v_add_u32 v{T0+4}, s3, v{T0+4}
    """)
    for w in range(8):
        A(f"ds_read_b128 v[{R0+4*w}:{R0+4*w+3}], v{T0+4} offset:{w*1024}")
    A(f"v_lshlrev_b32 v{TT+8}, 2, v{T0+3}")
    A(f"v_add_u32 v{TT+8}, {L_PZ}, v{TT+8}")
    for w in range(8):
        A(f"ds_read_b32 v{TT+w}, v{TT+8} offset:{w*256}")
    A("s_waitcnt lgkmcnt(8)")
    for (a, b) in ((0, 1), (2, 3), (4, 5), (6, 7), (0, 2), (4, 6), (0, 4)):
        for r in range(4):
            A(f"v_add_f32 v{R0+4*a+r}, v{R0+4*a+r}, v{R0+4*b+r}")
    A(f"""
    s_cmp_eq_u32 s{WV}, 1
    s_cbranch_scc1 L_p0_h
    v_cvt_pk_bf16_f32 v{R0}, v{R0}, v{R0+1}
    v_cvt_pk_bf16_f32 v{R0+1}, v{R0+2}, v{R0+3}
    v_mov_b32 v{R0+2}, s{TAG}
    v_mov_b32 v{R0+3}, s{TAG}
    s_lshl_b32 s3, s{XI}, 14
    s_lshl_b32 s14, s{RR}, 6
    s_add_u32 s3, s3, s14
    s_add_u32 s3, s3, {WS_QG}
    v_lshl_add_u32 v{T0+4}, v{T0}, 4, s3
    v_lshl_add_u32 v{T0+4}, v{T0+3}, 11, v{T0+4}
    s_mov_b32 exec_hi, 0
    """)
    A.optional(f"global_store_dwordx4 v{T0+4}, v[{R0}:{R0+3}], s[30:31] sc1")
    A(f"""
    s_mov_b32 exec_hi, -1
    s_waitcnt lgkmcnt(0)
    s_branch L_p0_done
    L_p0_h:
    s_waitcnt lgkmcnt(0)
    """)
    for (a, b) in ((0, 1), (2, 3), (4, 5), (6, 7), (0, 2), (4, 6), (0, 4)):
        A(f"v_add_f32 v{TT+a}, v{TT+a}, v{TT+b}")
    c1 = math.sqrt(2 / math.pi);
    k1 = -2 * c1 * LOG2E; k3 = k1 * 0.044715
    A(f"""
    v_mul_f32 v{TT}, {hex(f2u(-LOG2E))}, v{TT}
    v_exp_f32 v{TT}, v{TT}
    v_add_f32 v{TT}, 1.0, v{TT}
    v_rcp_f32 v{TT}, v{TT}
    v_lshlrev_b32 v{TT+1}, 2, v{T0+3}
    v_add_u32 v{TT+1}, {L_GT}, v{TT+1}
    ds_write_b32 v{TT+1}, v{TT}
    v_sub_f32 v{TT}, 1.0, v{TT}
    """)
    A.wait_vm("b1")
    A(f"""
    v_lshlrev_b32 v{TT+2}, 16, v{B1}
    v_and_b32 v{TT+3}, 0xffff0000, v{B1}
    v_lshlrev_b32 v{TT+4}, 16, v{B1+1}
    v_and_b32 v{TT+5}, 0xffff0000, v{B1+1}
    v_mov_b32 v{TT+6}, {hex(f2u(k1))}
    """)
    for r in range(4):
        A(f"v_add_f32 v{R0+r}, v{R0+r}, v{TT+2+r}")
    for r in range(4):
        A(f"v_mul_f32 v{R0+4+r}, v{R0+r}, v{R0+r}")
    for r in range(4):
        A(f"v_fmamk_f32 v{R0+4+r}, v{R0+4+r}, {hex(f2u(k3))}, v{TT+6}")
    for r in range(4):
        A(f"v_mul_f32 v{R0+4+r}, v{R0+4+r}, v{R0+r}")
    for r in range(4):
        A(f"v_exp_f32 v{R0+4+r}, v{R0+4+r}")
    for r in range(4):
        A(f"v_add_f32 v{R0+4+r}, 1.0, v{R0+4+r}")
    for r in range(4):
        A(f"v_rcp_f32 v{R0+4+r}, v{R0+4+r}")
    for r in range(4):
        A(f"v_mul_f32 v{R0+r}, v{R0+r}, v{TT}")
    for r in range(4):
        A(f"v_mul_f32 v{R0+r}, v{R0+r}, v{R0+4+r}")
    A(f"""
    v_cvt_pk_bf16_f32 v{R0}, v{R0}, v{R0+1}
    v_cvt_pk_bf16_f32 v{R0+1}, v{R0+2}, v{R0+3}
    v_mov_b32 v{R0+2}, s{TAG}
    v_mov_b32 v{R0+3}, s{TAG}
    s_lshr_b32 s3, s{HI}, 2
    s_lshl_b32 s3, s3, 11
    s_and_b32 s14, s{HI}, 3
    s_lshl_b32 s14, s14, 6
    s_add_u32 s3, s3, s14
    s_and_b32 s3, s3, 0xffff
    v_lshl_add_u32 v{T0+4}, v{T0}, 4, s3
    v_lshl_add_u32 v{T0+4}, v{T0+3}, 8, v{T0+4}
    s_mov_b32 exec_hi, 0
    """)
    A.optional(f"buffer_store_dwordx4 v[{R0}:{R0+3}], v{T0+4}, s[{SHS}:{SHS+3}], 0 offen sc1")
    A(f"""
    s_mov_b32 exec_hi, -1
    s_waitcnt lgkmcnt(0)
    s_nop 1
    L_p0_done:
    """)
    stamp("p0done")

    def qproc():
        stamp("qarr")
        A(f"""
        s_mov_b32 s14, {spin}
        L_q_chk:
        v_cmp_eq_u32 vcc, s{TAG}, v{QR+3}
        v_cmp_eq_u32 s[28:29], s{TAG}, v{QR+7}
        s_and_b64 vcc, vcc, s[28:29]
        s_cmp_eq_u64 vcc, exec
        s_cbranch_scc1 L_q_ok
        s_sub_u32 s14, s14, 1
        s_cbranch_scc1 L_q_ok
        """)
        A.optional(f"global_load_dwordx4 v[{QR}:{QR+3}], v{VQA}, s[30:31] sc1")
        A.optional(f"global_load_dwordx4 v[{QR+4}:{QR+7}], v{VQA}, s[30:31] offset:1024 sc1")
        A(f"""
        s_waitcnt vmcnt(0)
        s_branch L_q_chk
        L_q_ok:
        v_lshrrev_b32 v{T0+3}, 1, v{VLIN}
        v_add_u32 v{T0+3}, {L_QC}, v{T0+3}
        ds_write_b64 v{T0+3}, v[{QR}:{QR+1}]
        ds_write_b64 v{T0+3}, v[{QR+4}:{QR+5}] offset:512
        s_waitcnt lgkmcnt(0)
        """)
        for u in range(4):
            A(f"ds_read_b128 v[{QF+4*u}:{QF+4*u+3}], v{VQF} offset:{u*16}")
        A("s_waitcnt lgkmcnt(0)")
        stamp("qready")

    def ktile(t):
        R = [ring(4 * t + i) for i in range(4)]
        dpp = "row_mask:0xf bank_mask:0xf"
        A(f"s_mov_b64 vcc, s[{M55}:{M55+1}]")
        for p in (0, 2):
            for w in range(4):
                A(f"v_cndmask_b32_dpp v{TT+4*p+w}, v{R[p+1]+w}, v{R[p]+w}, vcc quad_perm:[1,0,3,2] {dpp}")
        A(f"s_mov_b64 vcc, s[{MAA}:{MAA+1}]")
        for p in (0, 2):
            for w in range(4):
                A(f"v_cndmask_b32_dpp v{TT+4*(p+1)+w}, v{R[p]+w}, v{R[p+1]+w}, vcc quad_perm:[1,0,3,2] {dpp}")
        A(f"s_mov_b64 vcc, s[{M33}:{M33+1}]")
        for p in (0, 1):
            for w in range(4):
                A(f"v_cndmask_b32_dpp v{R[p]+w}, v{TT+4*(p+2)+w}, v{TT+4*p+w}, vcc quad_perm:[2,3,0,1] {dpp}")
        A(f"s_mov_b64 vcc, s[{MCC}:{MCC+1}]")
        for p in (0, 1):
            for w in range(4):
                A(f"v_cndmask_b32_dpp v{R[p+2]+w}, v{TT+4*p+w}, v{TT+4*(p+2)+w}, vcc quad_perm:[2,3,0,1] {dpp}")
        S = SP + 4 * t
        for u in range(4):
            c = "0" if u == 0 else f"v[{S}:{S+3}]"
            A(f"v_mfma_f32_16x16x32_bf16 v[{S}:{S+3}], v[{R[u]}:{R[u]+3}], v[{QF+4*u}:{QF+4*u+3}], {c}")

    def xreduce(reg, tmp, op):
        A(f"""
        v_mov_b32 v{tmp}, v{reg}
        v_permlane32_swap_b32 v{reg}, v{tmp}
        {op} v{reg}, v{reg}, v{tmp}
        v_mov_b32 v{tmp}, v{reg}
        v_permlane16_swap_b32 v{reg}, v{tmp}
        {op} v{reg}, v{reg}, v{tmp}
        """)

    MREG = TMP
    def softmax():
        m = TT
        for i in range(8):
            A(f"v_max3_f32 v{m+i}, v{SP+4*i}, v{SP+4*i+1}, v{SP+4*i+2}")
        for i in range(4):
            A(f"v_max3_f32 v{m+2*i}, v{m+2*i}, v{m+2*i+1}, v{SP+8*i+3}")
        for i in range(2):
            A(f"v_max3_f32 v{m+4*i}, v{m+4*i}, v{m+4*i+2}, v{SP+16*i+7}")
        A(f"v_max3_f32 v{m}, v{m}, v{m+4}, v{SP+15}")
        A(f"v_max_f32 v{m}, v{m}, v{SP+31}")
        xreduce(m, m + 1, "v_max_f32")
        A(f"v_mul_f32 v{MREG}, s{SC}, v{m}")
        for i in range(32):
            A(f"v_fma_f32 v{SP+i}, v{SP+i}, s{SC}, -v{MREG}")
        for i in range(32):
            A(f"v_exp_f32 v{SP+i}, v{SP+i}")
        for i in range(8):
            A(f"v_add_f32 v{m+i}, v{SP+4*i}, v{SP+4*i+1}")
        for i in range(8):
            A(f"v_add_f32 v{m+8+i}, v{SP+4*i+2}, v{SP+4*i+3}")
        for st in (8, 4, 2, 1):
            for i in range(st):
                A(f"v_add_f32 v{m+i}, v{m+i}, v{m+st+i}")
        for i in range(32):
            A(f"v_cvt_pk_bf16_f32 v{SP+i}, v{SP+i}, v{SP+i}")
        xreduce(m, m + 1, "v_add_f32")
        A(f"""
        s_lshl_b32 s3, s{WV}, 2
        s_add_u32 s3, s3, {L_ML}
        v_lshl_add_u32 v{m+2}, v{T0+1}, 5, s3
        ds_write_b32 v{m+2}, v{MREG}
        ds_write_b32 v{m+2}, v{m} offset:128
        """)

    def vprep(j):
        x = XY + 2 * (j % 2)
        A(f"v_and_b32 v{x}, v{MX}, v{SP+j}")
        A(f"v_and_b32 v{x+1}, v{MY}, v{SP+j}")
    def vload(j):
        x = XY + 2 * (j % 2); r = ring(j)
        for eh in range(2):
            o = OA + 4 * eh
            c = "0" if j == 0 else f"v[{o}:{o+3}]"
            A(f"v_mfma_f32_16x16x16_bf16 v[{o}:{o+3}], v[{r+2*eh}:{r+2*eh+1}], v[{x}:{x+1}], {c}")

    def next_work():
        if "QP" not in done:
            return "QP" if "Q1" in arrived else None
        for t in range(8):
            if f"KT{t}" not in done:
                return f"KT{t}" if f"K{4*t+3}" in arrived else None
        if "SM" not in done: return "SM"
        for j in range(32):
            if f"VL{j}" not in done:
                return f"VL{j}" if f"V{j}" in arrived else None
        return None
    def run(w):
        if w == "QP": qproc()
        elif w[:2] == "KT": ktile(int(w[2:]))
        elif w == "SM": softmax()
        elif w[:2] == "VL":
            j = int(w[2:]); vprep(j); vload(j)
        done.add(w)

    big = [n for n in stream]
    while pos < len(stream):
        nm = stream[pos]
        if pos - N >= 0:
            wait(stream[pos - N])
        if nm[0] == "V":
            j = int(nm[1:])
            while f"KT{j//4}" not in done:
                w = next_work()
                if w is None:
                    wait("Q1" if "QP" not in done else f"K{4*min(t for t in range(8) if f'KT{t}' not in done)+3}")
                    continue
                run(w)
        issue(nm); pos += 1
        w = next_work()
        if w:
            run(w)
            if w[:2] == "VL":
                while True:
                    w = next_work()
                    if not w: break
                    run(w)
    while True:
        w = next_work()
        if not w: break
        run(w)
    assert "SM" in done and "H3" in arrived and "W2b" in arrived
    stamp("allissued")
    m = TT
    A(f"""
    s_waitcnt lgkmcnt(0)
    s_barrier
    v_lshlrev_b32 v{T0+3}, 5, v{T0+1}
    v_add_u32 v{T0+3}, {L_ML}, v{T0+3}
    ds_read_b128 v[{m}:{m+3}], v{T0+3}
    ds_read_b128 v[{m+4}:{m+7}], v{T0+3} offset:16
    ds_read_b128 v[{m+8}:{m+11}], v{T0+3} offset:128
    ds_read_b128 v[{m+12}:{m+15}], v{T0+3} offset:144
    """)
    WF = QF
    for i in range(4):
        A(f"ds_read_b64_tr_b16 v[{WF+2*i}:{WF+2*i+1}], v{VTRW2} offset:{L_W2 + i*4096}")
    GV = QF + 8
    A(f"""
    s_lshl_b32 s3, s{WV}, 2
    s_add_u32 s3, s3, {L_GT}
    v_mov_b32 v{T0+4}, s3
    ds_read_b32 v{GV}, v{T0+4}
    v_and_b32 v{T0+4}, 1, v{T0+2}
    v_lshlrev_b32 v{T0+4}, 1, v{T0+4}
    v_lshrrev_b32 v{GV+2}, 1, v{T0+2}
    v_or_b32 v{GV+2}, v{GV+2}, v{T0+4}
    s_lshr_b32 s3, s2, 7
    s_lshl_b32 s3, s3, 2
    v_add_u32 v{GV+2}, s3, v{GV+2}
    v_lshlrev_b32 v{T0+4}, 2, v{GV+2}
    v_add_u32 v{T0+4}, {L_GT}, v{T0+4}
    ds_read_b32 v{GV+1}, v{T0+4}
    s_mov_b32 s14, {spin}
    L_h_chk:
    v_cmp_eq_u32 vcc, s{HTAG}, v{HGR+3}
    v_cmp_eq_u32 s[28:29], s{HTAG}, v{HGR+7}
    s_and_b64 vcc, vcc, s[28:29]
    v_cmp_eq_u32 s[28:29], s{HTAG}, v{HGR+11}
    s_and_b64 vcc, vcc, s[28:29]
    v_cmp_eq_u32 s[28:29], s{HTAG}, v{HGR+15}
    s_and_b64 vcc, vcc, s[28:29]
    s_cmp_eq_u64 vcc, exec
    s_cbranch_scc1 L_h_ok
    s_sub_u32 s14, s14, 1
    s_cbranch_scc1 L_h_ok
    """)
    for i in range(4):
        r = HGR + 4 * i
        A.optional(f"buffer_load_dwordx4 v[{r}:{r+3}], v{VHA}, s[{SHL}:{SHL+3}], 0 offen offset:{i*64} sc1")
    A(f"""
    s_waitcnt vmcnt(0)
    s_branch L_h_chk
    L_h_ok:
    s_waitcnt lgkmcnt(0)
    """)
    for i in range(4):
        c = "0" if i == 0 else f"v[{D2}:{D2+3}]"
        A(f"v_mfma_f32_16x16x16_bf16 v[{D2}:{D2+3}], v[{HGR+4*i}:{HGR+4*i+1}], v[{WF+2*i}:{WF+2*i+1}], {c}")
    M = T0 + 4
    A(f"""
    v_max3_f32 v{M}, v{m}, v{m+1}, v{m+2}
    v_max3_f32 v{M}, v{M}, v{m+3}, v{m+4}
    v_max3_f32 v{M}, v{M}, v{m+5}, v{m+6}
    v_max_f32 v{M}, v{M}, v{m+7}
    """)
    for w in range(8):
        A(f"v_sub_f32 v{m+w}, v{m+w}, v{M}")
    A(f"v_sub_f32 v{FAC}, v{MREG}, v{M}")
    for w in range(8):
        A(f"v_exp_f32 v{m+w}, v{m+w}")
    A(f"v_exp_f32 v{FAC}, v{FAC}")
    A(f"v_mul_f32 v{m}, v{m}, v{m+8}")
    for w in range(1, 8):
        A(f"v_fmac_f32 v{m}, v{m+w}, v{m+8+w}")
    A(f"""
    v_rcp_f32 v{m+1}, v{m}
    v_log_f32 v{m+2}, v{m}
    v_mul_f32 v{FAC}, v{FAC}, v{m+1}
    v_add_f32 v{m+2}, v{m+2}, v{M}
    v_lshlrev_b32 v{m+3}, 2, v{T0+1}
    v_add_u32 v{m+3}, {L_LSE}, v{m+3}
    ds_write_b32 v{m+3}, v{m+2}
    v_sub_f32 v{GV+1}, 1.0, v{GV+1}
    v_lshlrev_b32 v{B2}, 16, v{B2}
    v_mul_f32 v{B2}, v{B2}, v{GV+1}
    """)
    VOPW, VOPR, VOGS, VOGL, VOCW, VPGS, VPGL, VLSE = 28, 29, 30, 31, 94, 95, 96, 97
    TB = 98
    A(f"""
    s_lshl_b32 s3, s{WV}, 11
    s_add_u32 s3, s3, {L_OP}
    v_add_u32 v{VOPW}, s3, v{VLIN}
    v_lshrrev_b32 v{m}, 5, v{LANE}
    s_lshl_b32 s3, s{WV}, 1
    s_and_b32 s3, s3, 3
    v_add_u32 v{m}, s3, v{m}
    v_bfe_u32 v{m+1}, v{LANE}, 3, 2
    v_bfe_u32 v{m+2}, v{LANE}, 2, 1
    v_lshlrev_b32 v{VOPR}, 4, v{T0}
    v_lshl_add_u32 v{VOPR}, v{m}, 6, v{VOPR}
    v_lshl_add_u32 v{VOPR}, v{m+1}, 8, v{VOPR}
    v_lshl_add_u32 v{VOPR}, v{m+2}, 10, v{VOPR}
    v_add_u32 v{VOPR}, {L_OP}, v{VOPR}
    v_lshlrev_b32 v{VLSE}, 2, v{m}
    v_add_u32 v{VLSE}, {L_LSE}, v{VLSE}
    s_lshl_b32 s3, s{XI}, 3
    s_and_b32 s14, s{WV}, 1
    s_lshl_b32 s14, s14, 2
    s_add_u32 s3, s3, s14
    s_lshl_b32 s3, s3, 13
    s_lshl_b32 s14, s{RR}, 8
    s_add_u32 s3, s3, s14
    s_add_u32 s3, s3, {WS_OG}
    v_and_b32 v{m+1}, 15, v{LANE}
    v_lshl_add_u32 v{VOGS}, v{m+1}, 4, s3
    v_lshl_add_u32 v{VOGS}, v{T0+2}, 13, v{VOGS}
    s_lshl_b32 s3, s{KG}, 3
    s_add_u32 s3, s3, s{WV}
    s_lshl_b32 s3, s3, 10
    s_add_u32 s3, s3, {WS_OG}
    v_add_u32 v{VOGL}, s3, v{VKP}
    s_lshl_b32 s3, s{WV}, 7
    s_add_u32 s3, s3, {L_OC}
    v_lshl_add_u32 v{VOCW}, v{T0}, 3, s3
    v_lshl_add_u32 v{VOCW}, v{T0+2}, 5, v{VOCW}
    s_lshl_b32 s3, s{NG}, 3
    s_add_u32 s3, s3, s{WV}
    s_lshl_b32 s3, s3, 14
    s_lshl_b32 s14, s{KG}, 6
    s_add_u32 s3, s3, s14
    s_add_u32 s3, s3, {WS_PG}
    v_lshl_add_u32 v{VPGS}, v{T0}, 4, s3
    v_lshl_add_u32 v{VPGS}, v{T0+1}, 12, v{VPGS}
    v_and_b32 v{m+1}, 1, v{T0+2}
    v_lshl_add_u32 v{VPGS}, v{m+1}, 19, v{VPGS}
    s_lshl_b32 s3, s2, 12
    s_add_u32 s3, s3, {WS_PG}
    v_lshrrev_b32 v{m+1}, 2, v{LANE}
    v_lshl_add_u32 v{VPGL}, v{T0}, 4, s3
    v_lshl_add_u32 v{VPGL}, v{m+1}, 8, v{VPGL}
    v_mov_b32 v{m+1}, s{TAG}
    v_bfe_u32 v{TB}, v{m+1}, 0, 8
    v_bfe_u32 v{TB+1}, v{m+1}, 8, 8
    v_bfe_u32 v{TB+2}, v{m+1}, 16, 8
    v_bfe_u32 v{TB+3}, v{m+1}, 24, 8
    s_mov_b32 s15, 0xffffff00
    """)
    for j in range(32):
        if f"VL{j}" not in done:
            vprep(j)
            wait(f"V{j}")
            vload(j)
            done.add(f"VL{j}")
    stamp("vdone")
    for i in range(8):
        A(f"v_mul_f32 v{OA+i}, v{OA+i}, v{FAC}")
    R0 = SP
    A(f"""
    ds_write_b128 v{VOPW}, v[{OA}:{OA+3}]
    ds_write_b128 v{VOPW}, v[{OA+4}:{OA+7}] offset:1024
    s_waitcnt lgkmcnt(0)
    s_barrier
    s_cmp_gt_u32 s{WV}, 1
    s_cbranch_scc1 L_t_other
    """)
    for w in range(8):
        A(f"ds_read_b128 v[{R0+4*w}:{R0+4*w+3}], v{VOPR} offset:{w*2048}")
    A(f"ds_read_b32 v{TT+2}, v{VLSE}")
    A(f"v_mov_b32 v{TT+3}, s{TAG}")
    cnt = 7
    for k, (a, b) in enumerate(((0, 1), (2, 3), (0, 2), (4, 5), (0, 4), (6, 7), (0, 6))):
        hi = max(a, b)
        if 8 - hi < cnt + 1:
            cnt = 8 - hi
            A(f"s_waitcnt lgkmcnt({cnt})")
            cnt -= 1
        for r in range(4):
            A(f"v_add_f32 v{R0+4*a+r}, v{R0+4*a+r}, v{R0+4*b+r}")
    A(f"""
    v_cvt_pk_bf16_f32 v{TT}, v{R0}, v{R0+1}
    v_cvt_pk_bf16_f32 v{TT+1}, v{R0+2}, v{R0+3}
    s_waitcnt lgkmcnt(0)
    """)
    G1 = TT + 4
    A.optional(f"global_store_dwordx4 v{VOGS}, v[{TT}:{TT+3}], s[30:31] sc1")
    stamp("ogpub")
    A.optional(f"global_load_dwordx4 v[{G1}:{G1+3}], v{VOGL}, s[30:31] sc1")
    A(f"""
    s_waitcnt vmcnt(2)
    s_branch L_t_join
    L_t_other:
    """)
    A.optional(f"global_load_dwordx4 v[{G1}:{G1+3}], v{VOGL}, s[30:31] sc1")
    A(f"""
    s_waitcnt vmcnt(1)
    L_t_join:
    s_barrier
    """)
    for u in range(2):
        for hf in range(2):
            A(f"ds_read_b64_tr_b16 v[{WF+4*u+2*hf}:{WF+4*u+2*hf+1}], v{VTRWO} offset:{L_WO + u*8192 + hf*256}")
    dpp = "row_mask:0xf bank_mask:0xf"
    C = TT + 8
    A(f"""
    s_mov_b32 s14, {spin}
    s_waitcnt vmcnt(0)
    L_o_chk:
    v_cmp_ne_u32 vcc, s{TAG}, v{G1+3}
    s_cbranch_vccz L_o_ok
    s_sub_u32 s14, s14, 1
    s_cbranch_scc1 L_o_ok
    s_mov_b64 exec, vcc
    """)
    A.optional(f"global_load_dwordx4 v[{G1}:{G1+3}], v{VOGL}, s[30:31] sc1")
    A(f"""
    s_mov_b64 exec, -1
    s_waitcnt vmcnt(0)
    s_branch L_o_chk
    L_o_ok:
    """)
    stamp("ogot")
    A(f"""
    v_max_f32_dpp v{C}, v{G1+2}, v{G1+2} row_ror:4 {dpp}
    v_lshlrev_b32 v{C+4}, 16, v{G1}
    v_and_b32 v{C+5}, 0xffff0000, v{G1}
    v_max_f32_dpp v{C+1}, v{C}, v{C} row_ror:8 {dpp}
    v_lshlrev_b32 v{C+6}, 16, v{G1+1}
    v_sub_f32 v{C+1}, v{G1+2}, v{C+1}
    v_exp_f32 v{C+1}, v{C+1}
    v_and_b32 v{C+7}, 0xffff0000, v{G1+1}
    v_mul_f32 v{C+4}, v{C+4}, v{C+1}
    v_mul_f32 v{C+5}, v{C+5}, v{C+1}
    v_add_f32_dpp v{C}, v{C+1}, v{C+1} row_ror:4 {dpp}
    v_mul_f32 v{C+6}, v{C+6}, v{C+1}
    v_mul_f32 v{C+7}, v{C+7}, v{C+1}
    v_add_f32_dpp v{C+2}, v{C}, v{C} row_ror:8 {dpp}
    v_add_f32_dpp v{C+4}, v{C+4}, v{C+4} row_ror:4 {dpp}
    v_rcp_f32 v{C+2}, v{C+2}
    v_add_f32_dpp v{C+5}, v{C+5}, v{C+5} row_ror:4 {dpp}
    v_add_f32_dpp v{C+6}, v{C+6}, v{C+6} row_ror:4 {dpp}
    v_add_f32_dpp v{C+7}, v{C+7}, v{C+7} row_ror:4 {dpp}
    v_mul_f32 v{C+2}, v{C+2}, v{GV}
    v_add_f32_dpp v{C+4}, v{C+4}, v{C+4} row_ror:8 {dpp}
    v_add_f32_dpp v{C+5}, v{C+5}, v{C+5} row_ror:8 {dpp}
    v_add_f32_dpp v{C+6}, v{C+6}, v{C+6} row_ror:8 {dpp}
    v_add_f32_dpp v{C+7}, v{C+7}, v{C+7} row_ror:8 {dpp}
    v_mul_f32 v{C+4}, v{C+4}, v{C+2}
    v_mul_f32 v{C+5}, v{C+5}, v{C+2}
    v_mul_f32 v{C+6}, v{C+6}, v{C+2}
    v_mul_f32 v{C+7}, v{C+7}, v{C+2}
    v_cvt_pk_bf16_f32 v{C}, v{C+4}, v{C+5}
    v_cvt_pk_bf16_f32 v{C+1}, v{C+6}, v{C+7}
    ds_write_b64 v{VOCW}, v[{C}:{C+1}]
    s_waitcnt lgkmcnt(0)
    s_barrier
    ds_read_b128 v[{R0}:{R0+3}], v{VOCA}
    ds_read_b128 v[{R0+4}:{R0+7}], v{VOCA} offset:64
    s_waitcnt lgkmcnt(1)
    v_mfma_f32_16x16x32_bf16 v[{D2}:{D2+3}], v[{R0}:{R0+3}], v[{WF}:{WF+3}], v[{D2}:{D2+3}]
    s_waitcnt lgkmcnt(0)
    v_mfma_f32_16x16x32_bf16 v[{D2}:{D2+3}], v[{R0+4}:{R0+7}], v[{WF+4}:{WF+7}], v[{D2}:{D2+3}]
    s_mov_b32 exec_hi, 0
    """)
    for r in range(4):
        A(f"v_and_or_b32 v{D2+r}, v{D2+r}, s15, v{TB+r}")
    A.optional(f"global_store_dwordx4 v{VPGS}, v[{D2}:{D2+3}], s[30:31] sc1")
    A(f"""
    s_mov_b32 exec_hi, -1
    s_cmp_lg_u32 s{WV}, 0
    s_cbranch_scc1 L_end
    """)
    stamp("pgpub")
    P = SP + 8
    for i in range(4):
        A.optional(f"global_load_dwordx4 v[{P+4*i}:{P+4*i+3}], v{VPGL}, s[30:31] offset:{i*64} sc1")
    A(f"""
    s_mov_b32 s14, {spin}
    s_mov_b32 s3, 0x0c0c0400
    s_mov_b32 s4, 0x05040100
    s_and_b32 s5, s2, 127
    s_lshl_b32 s5, s5, 3
    v_lshl_add_u32 v{C+6}, v{T0}, 1, s5
    v_lshl_add_u32 v{C+6}, v{GV+2}, 10, v{C+6}
    s_waitcnt vmcnt(0)
    L_p_chk:
    """)
    for i in range(4):
        p = P + 4 * i
        A(f"v_perm_b32 v{C}, v{p+1}, v{p}, s3")
        A(f"v_perm_b32 v{C+1}, v{p+3}, v{p+2}, s3")
        A(f"v_perm_b32 v{C}, v{C+1}, v{C}, s4")
        if i == 0:
            A(f"v_cmp_ne_u32 vcc, s{TAG}, v{C}")
        else:
            A(f"v_cmp_ne_u32 s[28:29], s{TAG}, v{C}")
            A(f"s_or_b64 vcc, vcc, s[28:29]")
    A(f"""
    s_cbranch_scc0 L_p_ok
    s_sub_u32 s14, s14, 1
    s_cbranch_scc1 L_p_ok
    s_mov_b64 exec, vcc
    """)
    if sleep: A(f"s_sleep {sleep}")
    for i in range(4):
        A.optional(f"global_load_dwordx4 v[{P+4*i}:{P+4*i+3}], v{VPGL}, s[30:31] offset:{i*64} sc1")
    A(f"""
    s_mov_b64 exec, -1
    s_waitcnt vmcnt(0)
    s_branch L_p_chk
    L_p_ok:
    """)
    stamp("pgot")
    for i in range(16):
        A(f"v_and_b32 v{P+i}, s15, v{P+i}")
    for (a, b) in ((0, 1), (2, 3), (0, 2)):
        for r in range(4):
            A(f"v_add_f32 v{P+4*a+r}, v{P+4*a+r}, v{P+4*b+r}")
    A(f"""
    v_permlane32_swap_b32 v{P}, v{P+1}
    v_permlane32_swap_b32 v{P+2}, v{P+3}
    v_add_f32 v{P}, v{P}, v{P+1}
    v_add_f32 v{P+2}, v{P+2}, v{P+3}
    v_permlane16_swap_b32 v{P}, v{P+2}
    v_add_f32 v{P}, v{P}, v{P+2}
    v_add_f32_dpp v{P}, v{P}, v{P} row_ror:4 {dpp}
    v_add_f32_dpp v{P}, v{P}, v{P} row_ror:8 {dpp}
    v_add_f32 v{P}, v{P}, v{B2}
    v_cvt_pk_bf16_f32 v{P}, v{P}, v{P}
    s_mov_b32 exec_lo, 0x000f000f
    s_mov_b32 exec_hi, 0x000f000f
    """)
    A.optional(f"global_store_short v{C+6}, v{P}, s[26:27]")
    A(f"""
    s_mov_b64 exec, 1
    s_cmp_lg_u32 s2, 0
    s_cbranch_scc1 L_noep
    v_mov_b32 v{C}, 0
    v_mov_b32 v{C+1}, s{TAG}
    """)
    A.optional(f"global_store_dword v{C}, v{C+1}, s[30:31] sc1")
    A("L_noep:")
    if stamps:
        stamp("outst")
        A("s_waitcnt vmcnt(0)")
        stamp("end")
        n = nst[0]
        A(f"""
        s_waitcnt lgkmcnt(0)
        s_mul_i32 s3, s2, {8*n}
        s_add_u32 s3, s3, {WS_STAMP}
        v_mov_b32 v{C}, s3
        """)
        for k in range(n):
            A(f"v_mov_b32 v{C+2}, s{STREGS[k]}")
            A(f"v_mov_b32 v{C+3}, s{STREGS[k]+1}")
            A.optional(f"global_store_dwordx2 v{C}, v[{C+2}:{C+3}], s[30:31] offset:{8*k}")
            A("s_nop 1")
        if dbg:
            A("s_load_dwordx2 s[28:29], s[0:1], 96")
            A(f"v_mov_b32 v{C}, 0")
            A("s_waitcnt lgkmcnt(0)")
            for k in range(n):
                A(f"v_mov_b32 v{C+2}, s{STREGS[k]}")
                A.optional(f"global_atomic_umax v{C}, v{C+2}, s[28:29] offset:{4*k}")
                A("s_nop 1")
            A(f"s_not_b32 s3, s{STREGS[0]}")
            A(f"v_mov_b32 v{C+2}, s3")
            A.optional(f"global_atomic_umax v{C}, v{C+2}, s[28:29] offset:60")
    A.raw("L_end:")
    A.raw("  s_endpgm")
    A.raw('.section .rodata,"a"')
    A.raw(".p2align 6")
    A.raw(f".amdhsa_kernel {NAME}_kernel")
    A.raw("  .amdhsa_next_free_vgpr 256")
    A.raw("  .amdhsa_next_free_sgpr 102")
    A.raw("  .amdhsa_accum_offset 256")
    A.raw("  .amdhsa_group_segment_fixed_size 0")
    A.raw("  .amdhsa_kernarg_size 112")
    A.raw("  .amdhsa_user_sgpr_count 2")
    A.raw("  .amdhsa_user_sgpr_kernarg_segment_ptr 1")
    A.raw("  .amdhsa_system_sgpr_workgroup_id_x 1")
    A.raw(".end_amdhsa_kernel")
    return A.text(), stnames

if __name__ == "__main__":
    ap = argparse.ArgumentParser()
    ap.add_argument("-o", default=f"cdna_kernels/{NAME}.s")
    ap.add_argument("--stamps", default="")
    ap.add_argument("--N", type=int, default=6)
    ap.add_argument("--N0", type=int, default=8)
    ap.add_argument("--qpos", type=int, default=14)
    ap.add_argument("--vpos", type=int, default=8)
    ap.add_argument("--wqflag", default="nt")
    ap.add_argument("--wflag", default="nt")
    ap.add_argument("--sleep", type=int, default=2)
    ap.add_argument("--dbg", action="store_true")
    ap.add_argument("--nop0bar", action="store_true")
    a = ap.parse_args()
    t, n = gen(N=a.N, N0=a.N0, qpos=a.qpos, vpos=a.vpos, stamps=a.stamps.split(",") if a.stamps else None, wqflag=a.wqflag, wflag=a.wflag, sleep=a.sleep, dbg=a.dbg, p0bar=not a.nop0bar)
    open(a.o, "w").write(t)
    print("wrote", a.o, "stamps", n)
```

```python
import sys, argparse, struct, math
sys.path.insert(0, "tools")
from asmlib import Asm
NAME = "gated_mix__gqa_block_cached__dense_activation_gelu__decode"
HDR = open("cdna_kernels/%s.s.ref" % NAME).read().split("; Override")[0]

def f2u(x): return struct.unpack("<I", struct.pack("<f", x))[0]
LOG2E = 1.4426950408889634

WS_QG = 0x10000
WS_HG = 0x30000
WS_OG = 0x80000
WS_PG = 0x100000
WS_STAMP = 0x8000000
L_WQ = 0
L_W1 = 16384
L_WO = 32768
L_W2 = 49152
L_PQ = 65536
L_PH = 73728
L_PZ = 81920
L_QC = 83968
L_ML = 84992
L_GT = 85248
L_LSE = 85280
L_OC = 85504
L_OP = 86528
L_END = L_OP + 16384

def gen(N=6, N0=8, qpos=14, vpos=8, stamps=False, kflag="nt", vflag="nt", wflag="nt", wqflag="nt", spin=20000, sleep=2, dbg=False, probe=None, p0bar=True):
    A = Asm()
    nst = [0]
    stnames = []
    STREGS = [90, 92, 94, 96, 98, 100, 6, 8, 10, 12, 16, 18]
    def stamp(nm):
        if stamps and nm in stamps:
            stnames.append(nm)
            r = STREGS[nst[0]]
            A(f"s_memrealtime s[{r}:{r+1}]")
            nst[0] += 1
    LANE, VLIN, VKP, MX, MY = 1, 2, 3, 4, 5
    VTRQ, VQF, VTRWO, VTRW2, VOCA = 6, 7, 8, 9, 10
    T0 = 11
    QF = 16; SP = 32; OA = 64; D2 = 72; TT = 76; TMP = 92; XF = 108; GF = 116; B1 = 124; B2 = 126; FAC = 127
    RING = 128
    HGR = 108
    def ring(i): r = RING + (i % 32) * 4; return r
    WV, XI, RR, BB, SS, TAG, KG, NG, FG, HI, HTAG = 32, 33, 34, 35, 36, 37, 38, 39, 40, 41, 42
    ST = 43
    SK, SV, SWQ, SW1, SWO, SW2, SHS, SHL, SB1 = 44, 48, 52, 56, 60, 64, 68, 72, 76
    M55, MAA, M33, MCC = 80, 82, 84, 86
    SOFF, SC = 88, 89
    A.raw(HDR.rstrip("\n"))
    A.raw(f"; @launch grid=(256,1,1) block=(512,1,1) lds={L_END}")
    A.raw('.amdgcn_target "amdgcn-amd-amdhsa--gfx950"')
    A.raw(".text")
    A.raw(f".globl {NAME}_kernel")
    A.raw(".p2align 8")
    A.raw(f".type {NAME}_kernel,@function")
    A.raw(f"{NAME}_kernel:")
    stamp("entry")
    A(f"""
    s_cmp_ge_u32 s2, 256
    s_cbranch_scc1 L_end
    s_load_dwordx16 s[4:19], s[0:1], 0
    s_load_dwordx8 s[20:27], s[0:1], 64
    s_load_dwordx4 s[28:31], s[0:1], 96
    v_lshrrev_b32 v{T0}, 6, v0
    v_and_b32 v{LANE}, 63, v0
    s_and_b32 s{XI}, s2, 7
    v_readfirstlane_b32 s{WV}, v{T0}
    s_lshr_b32 s{RR}, s2, 3
    s_lshr_b32 s{BB}, s{RR}, 2
    s_and_b32 s{SS}, s{RR}, 3
    v_lshlrev_b32 v{VLIN}, 4, v{LANE}
    v_and_b32 v{T0}, 3, v{LANE}
    v_bfe_u32 v{T0+1}, v{LANE}, 2, 2
    v_lshrrev_b32 v{T0+2}, 4, v{LANE}
    v_lshlrev_b32 v{VKP}, 4, v{T0}
    v_lshl_add_u32 v{VKP}, v{T0+1}, 8, v{VKP}
    v_lshl_add_u32 v{VKP}, v{T0+2}, 6, v{VKP}
    s_lshl_b32 s{ST}, s{BB}, 3
    s_add_u32 s{ST}, s{ST}, s{XI}
    s_lshl_b32 s{ST}, s{ST}, 2
    s_add_u32 s{ST}, s{ST}, s{SS}
    s_lshl_b32 s{ST}, s{ST}, 18
    s_lshl_b32 s3, s{WV}, 7
    v_lshl_add_u32 v{TMP+1}, v{T0+2}, 4, s3
    v_and_b32 v{TMP}, 7, v{LANE}
    v_lshl_add_u32 v{TMP}, v{TMP}, 10, v{TMP+1}
    s_lshl_b32 s3, s{WV}, 6
    v_lshrrev_b32 v{TMP+2}, 1, v{LANE}
    v_add_u32 v{TMP+2}, s3, v{TMP+2}
    v_and_b32 v{TMP+3}, 1, v{LANE}
    v_lshlrev_b32 v{TMP+3}, 4, v{TMP+3}
    v_mul_u32_u24 v{TMP+4}, 3584, v{TMP+2}
    v_add_u32 v{TMP+4}, v{TMP+4}, v{TMP+3}
    v_lshl_add_u32 v{TMP+3}, v{TMP+2}, 13, v{TMP+3}
    ; roles
    s_lshr_b32 s{KG}, s{RR}, 2
    s_lshl_b32 s{FG}, s{KG}, 3
    s_add_u32 s{FG}, s{FG}, s{XI}
    s_lshl_b32 s3, s{XI}, 3
    s_add_u32 s{KG}, s{KG}, s3
    s_and_b32 s{NG}, s{RR}, 3
    s_mul_i32 s{HI}, s{XI}, 14
    s_add_u32 s{HI}, s{HI}, s{RR}
    s_sub_u32 s{HI}, s{HI}, 16
    s_lshl_b32 s{SOFF}, s{WV}, 12
    s_lshl_b32 m0, s{WV}, 11
    s_mov_b32 s{SK+3}, 0x20000
    s_mov_b32 s{SV+3}, 0x20000
    s_mov_b32 s{SWQ+3}, 0x20000
    s_mov_b32 s{SW1+3}, 0x20000
    s_mov_b32 s{SWO+3}, 0x20000
    s_mov_b32 s{SW2+3}, 0x20000
    s_mov_b32 s{SHS+3}, 0x20000
    s_mov_b32 s{SHL+3}, 0x20000
    s_mov_b32 s{SB1+3}, 0x20000
    s_mov_b32 s{SK+2}, 0x40000
    s_mov_b32 s{SV+2}, 0x40000
    s_waitcnt lgkmcnt(0)
    s_load_dword s{TAG}, s[30:31], 0
    s_lshl_b32 s3, s{XI}, 5
    s_add_u32 s3, s3, s{RR}
    s_lshl_b32 s3, s3, 5
    s_add_u32 s{SWQ}, s10, s3
    s_addc_u32 s{SWQ+1}, s11, 0
    s_sub_u32 s{SWQ+2}, 0x400000, s3
    s_mov_b32 s14, 0x40000
    """)
    stamp("karg")
    A(f"buffer_load_dwordx4 v{TMP+3}, s[{SWQ}:{SWQ+3}], 0 offen {wqflag} lds", "wq0")
    A(f"s_add_u32 m0, m0, 1024")
    A(f"buffer_load_dwordx4 v{TMP+3}, s[{SWQ}:{SWQ+3}], s14 offen {wqflag} lds", "wq1")
    A(f"global_load_dwordx4 v[{XF}:{XF+3}], v{TMP}, s[4:5]", "x0")
    A(f"global_load_dwordx4 v[{XF+4}:{XF+7}], v{TMP}, s[4:5] offset:64", "x1")
    A(f"""
    s_add_u32 s{SK}, s6, s{ST}
    s_addc_u32 s{SK+1}, s7, 0
    s_add_u32 s{SV}, s8, s{ST}
    s_addc_u32 s{SV+1}, s9, 0
    s_lshl_b32 s3, s{HI}, 5
    s_add_u32 s{SW1}, s16, s3
    s_addc_u32 s{SW1+1}, s17, 0
    s_sub_u32 s{SW1+2}, {512*3584}, s3
    s_add_u32 s{SB1}, s18, s3
    s_addc_u32 s{SB1+1}, s19, 0
    s_mov_b32 s{SB1+2}, 32
    s_add_u32 s{SHS}, s30, {WS_HG}
    s_addc_u32 s{SHS+1}, s31, 0
    s_mov_b32 s{SHS+2}, {28*2048}
    s_sub_u32 s3, s{RR}, 16
    s_cmp_lt_u32 s3, 14
    s_cselect_b32 s{SW1+2}, s{SW1+2}, 0
    s_cselect_b32 s{SB1+2}, s{SB1+2}, 0
    s_cselect_b32 s{SHS+2}, s{SHS+2}, 0
    s_cselect_b32 s{SW1}, s{SW1}, s16
    s_cselect_b32 s{SW1+1}, s{SW1+1}, s17
    s_cselect_b32 s{SB1}, s{SB1}, s18
    s_cselect_b32 s{SB1+1}, s{SB1+1}, s19
    s_add_u32 m0, m0, {L_W1 - L_WQ - 1024}
    s_mov_b32 s14, {32*3584}
    """)
    A(f"global_load_dwordx4 v[{GF}:{GF+3}], v{TMP+1}, s[24:25]", "g0")
    A(f"global_load_dwordx4 v[{GF+4}:{GF+7}], v{TMP+1}, s[24:25] offset:64", "g1")
    A(f"buffer_load_dwordx4 v{TMP+4}, s[{SW1}:{SW1+3}], 0 offen {wqflag} lds", "w10")
    A(f"s_add_u32 m0, m0, 1024")
    A(f"buffer_load_dwordx4 v{TMP+4}, s[{SW1}:{SW1+3}], s14 offen {wqflag} lds", "w11")

    stream = []
    for i in range(32):
        if i == qpos: stream += ["Q0", "Q1"]
        stream.append(f"K{i}")
    for j in range(32):
        if j == vpos: stream += ["W2a", "W2b", "H0", "H1", "H2", "H3"]
        stream.append(f"V{j}")
    stream += ["WOa", "WOb"]
    done = set()
    arrived = set()
    issued = []

    QR = TMP
    VQA, VHA, VW2A, VWOA = 100, 101, 102, 103
    XY = 104

    def issue(nm):
        if nm[0] == "K" and nm[1:].isdigit():
            i = int(nm[1:]); r = ring(i)
            A(f"buffer_load_dwordx4 v[{r}:{r+3}], v{VKP}, s[{SK}:{SK+3}], s{SOFF} offen offset:{(i%4)*1024} {kflag}", nm)
            if i % 4 == 3:
                if i == 31: A(f"s_lshl_b32 s{SOFF}, s{WV}, 12")
                else: A(f"s_add_u32 s{SOFF}, s{SOFF}, 32768")
        elif nm[0] == "V":
            j = int(nm[1:]); r = ring(j)
            assert f"KT{j//4}" in done, nm
            A(f"buffer_load_dwordx4 v[{r}:{r+3}], v{VLIN}, s[{SV}:{SV+3}], s{SOFF} offen offset:{(j%4)*1024} {vflag}", nm)
            if j % 4 == 3 and j != 31: A(f"s_add_u32 s{SOFF}, s{SOFF}, 32768")
        elif nm == "Q0":
            A(f"global_load_dwordx4 v[{QR}:{QR+3}], v{VQA}, s[30:31] sc1", nm)
        elif nm == "Q1":
            A(f"global_load_dwordx4 v[{QR+4}:{QR+7}], v{VQA}, s[30:31] offset:1024 sc1", nm)
        elif nm == "W2a":
            A(f"s_lshl_b32 s3, s{WV}, 11")
            A(f"s_add_u32 m0, s3, {L_W2}")
            A(f"buffer_load_dwordx4 v{VW2A}, s[{SW2}:{SW2+3}], 0 offen {wflag} lds", nm)
        elif nm == "W2b":
            A(f"s_add_u32 m0, m0, 1024")
            A(f"v_xor_b32 v{VW2A}, 128, v{VW2A}")
            A(f"s_movk_i32 s3, 4096")
            A(f"buffer_load_dwordx4 v{VW2A}, s[{SW2}:{SW2+3}], s3 offen {wflag} lds", nm)
        elif nm[0] == "H":
            i = int(nm[1:]); r = HGR + 4 * i
            A(f"buffer_load_dwordx4 v[{r}:{r+3}], v{VHA}, s[{SHL}:{SHL+3}], 0 offen offset:{i*64} sc1", nm)
        elif nm == "WOa":
            A(f"s_lshl_b32 s3, s{WV}, 11")
            A(f"s_add_u32 m0, s3, {L_WO}")
            A(f"buffer_load_dwordx4 v{VWOA}, s[{SWO}:{SWO+3}], 0 offen {wflag} lds", nm)
        elif nm == "WOb":
            A(f"s_add_u32 m0, m0, 1024")
            A(f"s_movk_i32 s3, 4096")
            A(f"buffer_load_dwordx4 v{VWOA}, s[{SWO}:{SWO+3}], s3 offen {wflag} lds", nm)
        issued.append(nm)

    def wait(nm):
        if nm in arrived: return
        A.wait_vm(nm)
        for x in issued[:issued.index(nm) + 1]: arrived.add(x)

    A(f"v_lshlrev_b32 v{T0+3}, 3, v{T0}")
    A(f"buffer_load_dwordx2 v[{B1}:{B1+1}], v{T0+3}, s[{SB1}:{SB1+3}], 0 offen", "b1")
    A(f"""
    s_and_b32 s3, s2, 127
    s_lshl_b32 s3, s3, 3
    v_lshl_add_u32 v{T0+3}, v{T0}, 1, s3
    """)
    A(f"global_load_ushort v{B2}, v{T0+3}, s[22:23]", "b2")
    if p0bar: A("s_barrier")
    pos = 0
    while pos < N0:
        issue(stream[pos]); pos += 1
    A(f"""
    s_mov_b32 s{M55}, 0x55555555
    s_mov_b32 s{M55+1}, 0x55555555
    s_mov_b32 s{MAA}, 0xaaaaaaaa
    s_mov_b32 s{MAA+1}, 0xaaaaaaaa
    s_mov_b32 s{M33}, 0x33333333
    s_mov_b32 s{M33+1}, 0x33333333
    s_mov_b32 s{MCC}, 0xcccccccc
    s_mov_b32 s{MCC+1}, 0xcccccccc
    s_mov_b32 s{SC}, {hex(f2u(LOG2E * 128 ** -0.5))}
    s_lshl_b32 s3, s{WV}, 11
    v_lshl_add_u32 v{VTRQ}, v{T0}, 3, s3
    v_lshl_add_u32 v{VTRQ}, v{T0+1}, 5, v{VTRQ}
    v_lshl_add_u32 v{VTRQ}, v{T0+2}, 8, v{VTRQ}
    v_lshlrev_b32 v{VQF}, 8, v{T0+1}
    v_lshl_add_u32 v{VQF}, v{T0+2}, 6, v{VQF}
    v_add_u32 v{VQF}, {L_QC}, v{VQF}
    ; masks: e2 = l&3
    v_and_b32 v{T0+3}, 1, v{LANE}
    v_lshlrev_b32 v{T0+3}, 4, v{T0+3}
    v_mov_b32 v{T0+4}, 0xffff
    v_lshlrev_b32 v{T0+3}, v{T0+3}, v{T0+4}
    v_cndmask_b32 v{MX}, 0, v{T0+3}, s[{M33}:{M33+1}]
    v_cndmask_b32 v{MY}, 0, v{T0+3}, s[{MCC}:{MCC+1}]
    v_and_b32 v{T0+3}, 1, v{T0+2}
    v_lshl_or_b32 v{T0+4}, v{T0+1}, 1, v{T0+3}
    v_xor_b32 v{T0+4}, s{WV}, v{T0+4}
    v_lshlrev_b32 v{VTRWO}, 3, v{T0}
    v_lshl_add_u32 v{VTRWO}, v{T0+4}, 5, v{VTRWO}
    v_lshl_add_u32 v{VTRWO}, v{T0+1}, 11, v{VTRWO}
    v_lshl_add_u32 v{VTRWO}, v{T0+2}, 9, v{VTRWO}
    v_lshl_or_b32 v{T0+4}, v{T0+3}, 2, v{T0+1}
    v_xor_b32 v{T0+4}, s{WV}, v{T0+4}
    v_lshlrev_b32 v{VTRW2}, 3, v{T0}
    v_lshl_add_u32 v{VTRW2}, v{T0+4}, 5, v{VTRW2}
    v_lshl_add_u32 v{VTRW2}, v{T0+1}, 8, v{VTRW2}
    v_lshl_add_u32 v{VTRW2}, v{T0+2}, 10, v{VTRW2}
    v_and_b32 v{T0+3}, 7, v{LANE}
    v_lshlrev_b32 v{VOCA}, 7, v{T0+3}
    v_lshl_add_u32 v{VOCA}, v{T0+2}, 4, v{VOCA}
    v_add_u32 v{VOCA}, {L_OC}, v{VOCA}
    v_lshlrev_b32 v{VHA}, 8, v{T0+3}
    v_lshl_add_u32 v{VHA}, v{T0+2}, 4, v{VHA}
    s_lshl_b32 s3, s{XI}, 3
    s_add_u32 s3, s3, s{BB}
    s_lshl_b32 s3, s3, 11
    s_add_u32 s3, s3, {WS_QG}
    v_add_u32 v{VQA}, s3, v{VLIN}
    s_and_b32 s3, s{WV}, 3
    s_lshl_b32 s3, s3, 2
    v_lshrrev_b32 v{T0+3}, 5, v{LANE}
    v_lshl_or_b32 v{T0+3}, v{T0+3}, 1, s3
    v_and_b32 v{T0+4}, 15, v{LANE}
    v_xor_b32 v{T0+3}, v{T0+3}, v{T0+4}
    s_lshl_b32 s3, s{WV}, 13
    v_lshl_add_u32 v{VWOA}, v{T0+2}, 10, s3
    v_lshl_add_u32 v{VW2A}, v{T0+2}, 10, s3
    v_lshl_add_u32 v{VWOA}, v{T0+3}, 4, v{VWOA}
    ; w2: f = 4i + (l>>4): chunk16 = (l&15) ^ (f<<1)
    v_lshlrev_b32 v{T0+3}, 1, v{T0+2}
    v_xor_b32 v{T0+3}, v{T0+3}, v{T0+4}
    v_lshl_add_u32 v{VW2A}, v{T0+3}, 4, v{VW2A}
    s_lshl_b32 s3, s{KG}, 16
    s_lshl_b32 s14, s{NG}, 8
    s_add_u32 s3, s3, s14
    s_add_u32 s{SWO}, s12, s3
    s_addc_u32 s{SWO+1}, s13, 0
    s_sub_u32 s{SWO+2}, 0x400000, s3
    s_cmp_lt_u32 s{FG}, 28
    s_cselect_b32 s15, s{FG}, 0
    s_lshl_b32 s3, s15, 16
    s_add_u32 s3, s3, s14
    s_add_u32 s{SW2}, s20, s3
    s_addc_u32 s{SW2+1}, s21, 0
    s_sub_u32 s{SW2+2}, {1792*1024}, s3
    s_lshl_b32 s3, s15, 11
    s_add_u32 s3, s3, {WS_HG}
    s_add_u32 s{SHL}, s30, s3
    s_addc_u32 s{SHL+1}, s31, 0
    s_cmp_lt_u32 s{FG}, 28
    s_cselect_b32 s{SW2+2}, s{SW2+2}, 0
    s_cselect_b32 s{SHL+2}, 2048, 0
    s_waitcnt lgkmcnt(0)
    s_add_u32 s{TAG}, s{TAG}, 0x9e3779b9
    s_cmp_lt_u32 s{FG}, 28
    s_cselect_b32 s{HTAG}, s{TAG}, 0
    """)
    stamp("setup")
    A.wait_vm("x1")
    stamp("x1")
    W = TT
    for u in range(2):
        for hf in range(2):
            A(f"ds_read_b64_tr_b16 v[{W+u*4+hf*2}:{W+u*4+hf*2+1}], v{VTRQ} offset:{L_WQ + u*1024 + hf*128}")
    A.wait_vm("w11")
    stamp("w11")
    if stamps: A("s_waitcnt lgkmcnt(0)")
    for u in range(2):
        for hf in range(2):
            A(f"ds_read_b64_tr_b16 v[{W+8+u*4+hf*2}:{W+8+u*4+hf*2+1}], v{VTRQ} offset:{L_W1 + u*1024 + hf*128}")
    PQ, PH, PZ = SP, SP + 4, SP + 8
    A(f"""
    v_mfma_f32_16x16x32_bf16 v[{PZ}:{PZ+3}], v[{GF}:{GF+3}], v[{XF}:{XF+3}], 0
    v_mfma_f32_16x16x32_bf16 v[{PZ}:{PZ+3}], v[{GF+4}:{GF+7}], v[{XF+4}:{XF+7}], v[{PZ}:{PZ+3}]
    s_lshl_b32 s3, s{WV}, 10
    v_add_u32 v{T0+3}, s3, v{VLIN}
    v_lshrrev_b32 v{T0+4}, 2, v{T0+3}
    v_add_u32 v{T0+3}, {L_PQ}, v{T0+3}
    v_add_u32 v{T0+4}, {L_PZ}, v{T0+4}
    s_waitcnt lgkmcnt(4)
    v_mfma_f32_16x16x32_bf16 v[{PQ}:{PQ+3}], v[{W}:{W+3}], v[{XF}:{XF+3}], 0
    v_mfma_f32_16x16x32_bf16 v[{PQ}:{PQ+3}], v[{W+4}:{W+7}], v[{XF+4}:{XF+7}], v[{PQ}:{PQ+3}]
    s_waitcnt lgkmcnt(0)
    v_mfma_f32_16x16x32_bf16 v[{PH}:{PH+3}], v[{W+8}:{W+11}], v[{XF}:{XF+3}], 0
    v_mfma_f32_16x16x32_bf16 v[{PH}:{PH+3}], v[{W+12}:{W+15}], v[{XF+4}:{XF+7}], v[{PH}:{PH+3}]
    ds_write_b32 v{T0+4}, v{PZ}
    ds_write_b128 v{T0+3}, v[{PQ}:{PQ+3}]
    ds_write_b128 v{T0+3}, v[{PH}:{PH+3}] offset:{L_PH - L_PQ}
    s_waitcnt lgkmcnt(0)
    s_barrier
    """)
    stamp("bar1")
    if stamps: A("s_waitcnt lgkmcnt(0)")
    R0 = SP
    A(f"""
    s_cmp_gt_u32 s{WV}, 1
    s_cbranch_scc1 L_p0_done
    v_bfe_u32 v{T0+3}, v{LANE}, 2, 3
    v_lshl_add_u32 v{T0+4}, v{T0}, 4, v{T0+3}
    v_lshlrev_b32 v{T0+4}, 4, v{T0+4}
    s_lshl_b32 s3, s{WV}, 13
    s_add_u32 s3, s3, {L_PQ}
    v_add_u32 v{T0+4}, s3, v{T0+4}
    """)
    for w in range(8):
        A(f"ds_read_b128 v[{R0+4*w}:{R0+4*w+3}], v{T0+4} offset:{w*1024}")
    A(f"v_lshlrev_b32 v{TT+8}, 2, v{T0+3}")
    A(f"v_add_u32 v{TT+8}, {L_PZ}, v{TT+8}")
    for w in range(8):
        A(f"ds_read_b32 v{TT+w}, v{TT+8} offset:{w*256}")
    A("s_waitcnt lgkmcnt(8)")
    for (a, b) in ((0, 1), (2, 3), (4, 5), (6, 7), (0, 2), (4, 6), (0, 4)):
        for r in range(4):
            A(f"v_add_f32 v{R0+4*a+r}, v{R0+4*a+r}, v{R0+4*b+r}")
    A(f"""
    s_cmp_eq_u32 s{WV}, 1
    s_cbranch_scc1 L_p0_h
    v_cvt_pk_bf16_f32 v{R0}, v{R0}, v{R0+1}
    v_cvt_pk_bf16_f32 v{R0+1}, v{R0+2}, v{R0+3}
    v_mov_b32 v{R0+2}, s{TAG}
    v_mov_b32 v{R0+3}, s{TAG}
    s_lshl_b32 s3, s{XI}, 14
    s_lshl_b32 s14, s{RR}, 6
    s_add_u32 s3, s3, s14
    s_add_u32 s3, s3, {WS_QG}
    v_lshl_add_u32 v{T0+4}, v{T0}, 4, s3
    v_lshl_add_u32 v{T0+4}, v{T0+3}, 11, v{T0+4}
    s_mov_b32 exec_hi, 0
    """)
    A.optional(f"global_store_dwordx4 v{T0+4}, v[{R0}:{R0+3}], s[30:31] sc1")
    A(f"""
    s_mov_b32 exec_hi, -1
    s_waitcnt lgkmcnt(0)
    s_branch L_p0_done
    L_p0_h:
    s_waitcnt lgkmcnt(0)
    """)
    for (a, b) in ((0, 1), (2, 3), (4, 5), (6, 7), (0, 2), (4, 6), (0, 4)):
        A(f"v_add_f32 v{TT+a}, v{TT+a}, v{TT+b}")
    c1 = math.sqrt(2 / math.pi);
    k1 = -2 * c1 * LOG2E; k3 = k1 * 0.044715
    A(f"""
    v_mul_f32 v{TT}, {hex(f2u(-LOG2E))}, v{TT}
    v_exp_f32 v{TT}, v{TT}
    v_add_f32 v{TT}, 1.0, v{TT}
    v_rcp_f32 v{TT}, v{TT}
    v_lshlrev_b32 v{TT+1}, 2, v{T0+3}
    v_add_u32 v{TT+1}, {L_GT}, v{TT+1}
    ds_write_b32 v{TT+1}, v{TT}
    v_sub_f32 v{TT}, 1.0, v{TT}
    """)
    A.wait_vm("b1")
    A(f"""
    v_lshlrev_b32 v{TT+2}, 16, v{B1}
    v_and_b32 v{TT+3}, 0xffff0000, v{B1}
    v_lshlrev_b32 v{TT+4}, 16, v{B1+1}
    v_and_b32 v{TT+5}, 0xffff0000, v{B1+1}
    v_mov_b32 v{TT+6}, {hex(f2u(k1))}
    """)
    for r in range(4):
        A(f"v_add_f32 v{R0+r}, v{R0+r}, v{TT+2+r}")
    for r in range(4):
        A(f"v_mul_f32 v{R0+4+r}, v{R0+r}, v{R0+r}")
    for r in range(4):
        A(f"v_fmamk_f32 v{R0+4+r}, v{R0+4+r}, {hex(f2u(k3))}, v{TT+6}")
    for r in range(4):
        A(f"v_mul_f32 v{R0+4+r}, v{R0+4+r}, v{R0+r}")
    for r in range(4):
        A(f"v_exp_f32 v{R0+4+r}, v{R0+4+r}")
    for r in range(4):
        A(f"v_add_f32 v{R0+4+r}, 1.0, v{R0+4+r}")
    for r in range(4):
        A(f"v_rcp_f32 v{R0+4+r}, v{R0+4+r}")
    for r in range(4):
        A(f"v_mul_f32 v{R0+r}, v{R0+r}, v{TT}")
    for r in range(4):
        A(f"v_mul_f32 v{R0+r}, v{R0+r}, v{R0+4+r}")
    A(f"""
    v_cvt_pk_bf16_f32 v{R0}, v{R0}, v{R0+1}
    v_cvt_pk_bf16_f32 v{R0+1}, v{R0+2}, v{R0+3}
    v_mov_b32 v{R0+2}, s{TAG}
    v_mov_b32 v{R0+3}, s{TAG}
    s_lshr_b32 s3, s{HI}, 2
    s_lshl_b32 s3, s3, 11
    s_and_b32 s14, s{HI}, 3
    s_lshl_b32 s14, s14, 6
    s_add_u32 s3, s3, s14
    s_and_b32 s3, s3, 0xffff
    v_lshl_add_u32 v{T0+4}, v{T0}, 4, s3
    v_lshl_add_u32 v{T0+4}, v{T0+3}, 8, v{T0+4}
    s_mov_b32 exec_hi, 0
    """)
    A.optional(f"buffer_store_dwordx4 v[{R0}:{R0+3}], v{T0+4}, s[{SHS}:{SHS+3}], 0 offen sc1")
    A(f"""
    s_mov_b32 exec_hi, -1
    s_waitcnt lgkmcnt(0)
    s_nop 1
    L_p0_done:
    """)
    stamp("p0done")

    def qproc():
        stamp("qarr")
        A(f"""
        s_mov_b32 s14, {spin}
        L_q_chk:
        v_cmp_eq_u32 vcc, s{TAG}, v{QR+3}
        v_cmp_eq_u32 s[28:29], s{TAG}, v{QR+7}
        s_and_b64 vcc, vcc, s[28:29]
        s_cmp_eq_u64 vcc, exec
        s_cbranch_scc1 L_q_ok
        s_sub_u32 s14, s14, 1
        s_cbranch_scc1 L_q_ok
        """)
        A.optional(f"global_load_dwordx4 v[{QR}:{QR+3}], v{VQA}, s[30:31] sc1")
        A.optional(f"global_load_dwordx4 v[{QR+4}:{QR+7}], v{VQA}, s[30:31] offset:1024 sc1")
        A(f"""
        s_waitcnt vmcnt(0)
        s_branch L_q_chk
        L_q_ok:
        v_lshrrev_b32 v{T0+3}, 1, v{VLIN}
        v_add_u32 v{T0+3}, {L_QC}, v{T0+3}
        ds_write_b64 v{T0+3}, v[{QR}:{QR+1}]
        ds_write_b64 v{T0+3}, v[{QR+4}:{QR+5}] offset:512
        s_waitcnt lgkmcnt(0)
        """)
        for u in range(4):
            A(f"ds_read_b128 v[{QF+4*u}:{QF+4*u+3}], v{VQF} offset:{u*16}")
        A("s_waitcnt lgkmcnt(0)")
        stamp("qready")

    def ktile(t):
        R = [ring(4 * t + i) for i in range(4)]
        dpp = "row_mask:0xf bank_mask:0xf"
        A(f"s_mov_b64 vcc, s[{M55}:{M55+1}]")
        for p in (0, 2):
            for w in range(4):
                A(f"v_cndmask_b32_dpp v{TT+4*p+w}, v{R[p+1]+w}, v{R[p]+w}, vcc quad_perm:[1,0,3,2] {dpp}")
        A(f"s_mov_b64 vcc, s[{MAA}:{MAA+1}]")
        for p in (0, 2):
            for w in range(4):
                A(f"v_cndmask_b32_dpp v{TT+4*(p+1)+w}, v{R[p]+w}, v{R[p+1]+w}, vcc quad_perm:[1,0,3,2] {dpp}")
        A(f"s_mov_b64 vcc, s[{M33}:{M33+1}]")
        for p in (0, 1):
            for w in range(4):
                A(f"v_cndmask_b32_dpp v{R[p]+w}, v{TT+4*(p+2)+w}, v{TT+4*p+w}, vcc quad_perm:[2,3,0,1] {dpp}")
        A(f"s_mov_b64 vcc, s[{MCC}:{MCC+1}]")
        for p in (0, 1):
            for w in range(4):
                A(f"v_cndmask_b32_dpp v{R[p+2]+w}, v{TT+4*p+w}, v{TT+4*(p+2)+w}, vcc quad_perm:[2,3,0,1] {dpp}")
        S = SP + 4 * t
        for u in range(4):
            c = "0" if u == 0 else f"v[{S}:{S+3}]"
            A(f"v_mfma_f32_16x16x32_bf16 v[{S}:{S+3}], v[{R[u]}:{R[u]+3}], v[{QF+4*u}:{QF+4*u+3}], {c}")

    def xreduce(reg, tmp, op):
        A(f"""
        v_mov_b32 v{tmp}, v{reg}
        v_permlane32_swap_b32 v{reg}, v{tmp}
        {op} v{reg}, v{reg}, v{tmp}
        v_mov_b32 v{tmp}, v{reg}
        v_permlane16_swap_b32 v{reg}, v{tmp}
        {op} v{reg}, v{reg}, v{tmp}
        """)

    MREG = TMP
    def softmax():
        m = TT
        for i in range(8):
            A(f"v_max3_f32 v{m+i}, v{SP+4*i}, v{SP+4*i+1}, v{SP+4*i+2}")
        for i in range(4):
            A(f"v_max3_f32 v{m+2*i}, v{m+2*i}, v{m+2*i+1}, v{SP+8*i+3}")
        for i in range(2):
            A(f"v_max3_f32 v{m+4*i}, v{m+4*i}, v{m+4*i+2}, v{SP+16*i+7}")
        A(f"v_max3_f32 v{m}, v{m}, v{m+4}, v{SP+15}")
        A(f"v_max_f32 v{m}, v{m}, v{SP+31}")
        xreduce(m, m + 1, "v_max_f32")
        A(f"v_mul_f32 v{MREG}, s{SC}, v{m}")
        for i in range(32):
            A(f"v_fma_f32 v{SP+i}, v{SP+i}, s{SC}, -v{MREG}")
        for i in range(32):
            A(f"v_exp_f32 v{SP+i}, v{SP+i}")
        for i in range(8):
            A(f"v_add_f32 v{m+i}, v{SP+4*i}, v{SP+4*i+1}")
        for i in range(8):
            A(f"v_add_f32 v{m+8+i}, v{SP+4*i+2}, v{SP+4*i+3}")
        for st in (8, 4, 2, 1):
            for i in range(st):
                A(f"v_add_f32 v{m+i}, v{m+i}, v{m+st+i}")
        for i in range(32):
            A(f"v_cvt_pk_bf16_f32 v{SP+i}, v{SP+i}, v{SP+i}")
        xreduce(m, m + 1, "v_add_f32")
        A(f"""
        s_lshl_b32 s3, s{WV}, 2
        s_add_u32 s3, s3, {L_ML}
        v_lshl_add_u32 v{m+2}, v{T0+1}, 5, s3
        ds_write_b32 v{m+2}, v{MREG}
        ds_write_b32 v{m+2}, v{m} offset:128
        """)

    def vprep(j):
        x = XY + 2 * (j % 2)
        A(f"v_and_b32 v{x}, v{MX}, v{SP+j}")
        A(f"v_and_b32 v{x+1}, v{MY}, v{SP+j}")
    def vload(j):
        x = XY + 2 * (j % 2); r = ring(j)
        for eh in range(2):
            o = OA + 4 * eh
            c = "0" if j == 0 else f"v[{o}:{o+3}]"
            A(f"v_mfma_f32_16x16x16_bf16 v[{o}:{o+3}], v[{r+2*eh}:{r+2*eh+1}], v[{x}:{x+1}], {c}")

    def next_work():
        if "QP" not in done:
            return "QP" if "Q1" in arrived else None
        for t in range(8):
            if f"KT{t}" not in done:
                return f"KT{t}" if f"K{4*t+3}" in arrived else None
        if "SM" not in done: return "SM"
        for j in range(32):
            if f"VL{j}" not in done:
                return f"VL{j}" if f"V{j}" in arrived else None
        return None
    def run(w):
        if w == "QP": qproc()
        elif w[:2] == "KT": ktile(int(w[2:]))
        elif w == "SM": softmax()
        elif w[:2] == "VL":
            j = int(w[2:]); vprep(j); vload(j)
        done.add(w)

    big = [n for n in stream]
    while pos < len(stream):
        nm = stream[pos]
        if pos - N >= 0:
            wait(stream[pos - N])
        if nm[0] == "V":
            j = int(nm[1:])
            while f"KT{j//4}" not in done:
                w = next_work()
                if w is None:
                    wait("Q1" if "QP" not in done else f"K{4*min(t for t in range(8) if f'KT{t}' not in done)+3}")
                    continue
                run(w)
        issue(nm); pos += 1
        w = next_work()
        if w:
            run(w)
            if w[:2] == "VL":
                while True:
                    w = next_work()
                    if not w: break
                    run(w)
    while True:
        w = next_work()
        if not w: break
        run(w)
    assert "SM" in done and "H3" in arrived and "W2b" in arrived
    stamp("allissued")
    m = TT
    A(f"""
    s_waitcnt lgkmcnt(0)
    s_barrier
    v_lshlrev_b32 v{T0+3}, 5, v{T0+1}
    v_add_u32 v{T0+3}, {L_ML}, v{T0+3}
    ds_read_b128 v[{m}:{m+3}], v{T0+3}
    ds_read_b128 v[{m+4}:{m+7}], v{T0+3} offset:16
    ds_read_b128 v[{m+8}:{m+11}], v{T0+3} offset:128
    ds_read_b128 v[{m+12}:{m+15}], v{T0+3} offset:144
    """)
    WF = QF
    for i in range(4):
        A(f"ds_read_b64_tr_b16 v[{WF+2*i}:{WF+2*i+1}], v{VTRW2} offset:{L_W2 + i*4096}")
    GV = QF + 8
    A(f"""
    s_lshl_b32 s3, s{WV}, 2
    s_add_u32 s3, s3, {L_GT}
    v_mov_b32 v{T0+4}, s3
    ds_read_b32 v{GV}, v{T0+4}
    v_and_b32 v{T0+4}, 1, v{T0+2}
    v_lshlrev_b32 v{T0+4}, 1, v{T0+4}
    v_lshrrev_b32 v{GV+2}, 1, v{T0+2}
    v_or_b32 v{GV+2}, v{GV+2}, v{T0+4}
    s_lshr_b32 s3, s2, 7
    s_lshl_b32 s3, s3, 2
    v_add_u32 v{GV+2}, s3, v{GV+2}
    v_lshlrev_b32 v{T0+4}, 2, v{GV+2}
    v_add_u32 v{T0+4}, {L_GT}, v{T0+4}
    ds_read_b32 v{GV+1}, v{T0+4}
    s_mov_b32 s14, {spin}
    L_h_chk:
    v_cmp_eq_u32 vcc, s{HTAG}, v{HGR+3}
    v_cmp_eq_u32 s[28:29], s{HTAG}, v{HGR+7}
    s_and_b64 vcc, vcc, s[28:29]
    v_cmp_eq_u32 s[28:29], s{HTAG}, v{HGR+11}
    s_and_b64 vcc, vcc, s[28:29]
    v_cmp_eq_u32 s[28:29], s{HTAG}, v{HGR+15}
    s_and_b64 vcc, vcc, s[28:29]
    s_cmp_eq_u64 vcc, exec
    s_cbranch_scc1 L_h_ok
    s_sub_u32 s14, s14, 1
    s_cbranch_scc1 L_h_ok
    """)
    for i in range(4):
        r = HGR + 4 * i
        A.optional(f"buffer_load_dwordx4 v[{r}:{r+3}], v{VHA}, s[{SHL}:{SHL+3}], 0 offen offset:{i*64} sc1")
    A(f"""
    s_waitcnt vmcnt(0)
    s_branch L_h_chk
    L_h_ok:
    s_waitcnt lgkmcnt(0)
    """)
    for i in range(4):
        c = "0" if i == 0 else f"v[{D2}:{D2+3}]"
        A(f"v_mfma_f32_16x16x16_bf16 v[{D2}:{D2+3}], v[{HGR+4*i}:{HGR+4*i+1}], v[{WF+2*i}:{WF+2*i+1}], {c}")
    M = T0 + 4
    A(f"""
    v_max3_f32 v{M}, v{m}, v{m+1}, v{m+2}
    v_max3_f32 v{M}, v{M}, v{m+3}, v{m+4}
    v_max3_f32 v{M}, v{M}, v{m+5}, v{m+6}
    v_max_f32 v{M}, v{M}, v{m+7}
    """)
    for w in range(8):
        A(f"v_sub_f32 v{m+w}, v{m+w}, v{M}")
    A(f"v_sub_f32 v{FAC}, v{MREG}, v{M}")
    for w in range(8):
        A(f"v_exp_f32 v{m+w}, v{m+w}")
    A(f"v_exp_f32 v{FAC}, v{FAC}")
    A(f"v_mul_f32 v{m}, v{m}, v{m+8}")
    for w in range(1, 8):
        A(f"v_fmac_f32 v{m}, v{m+w}, v{m+8+w}")
    A(f"""
    v_rcp_f32 v{m+1}, v{m}
    v_log_f32 v{m+2}, v{m}
    v_mul_f32 v{FAC}, v{FAC}, v{m+1}
    v_add_f32 v{m+2}, v{m+2}, v{M}
    v_lshlrev_b32 v{m+3}, 2, v{T0+1}
    v_add_u32 v{m+3}, {L_LSE}, v{m+3}
    ds_write_b32 v{m+3}, v{m+2}
    v_sub_f32 v{GV+1}, 1.0, v{GV+1}
    v_lshlrev_b32 v{B2}, 16, v{B2}
    v_mul_f32 v{B2}, v{B2}, v{GV+1}
    """)
    VOPW, VOPR, VOGS, VOGL, VOCW, VPGS, VPGL, VLSE = 28, 29, 30, 31, 94, 95, 96, 97
    TB = 98
    A(f"""
    s_lshl_b32 s3, s{WV}, 11
    s_add_u32 s3, s3, {L_OP}
    v_add_u32 v{VOPW}, s3, v{VLIN}
    v_lshrrev_b32 v{m}, 5, v{LANE}
    s_lshl_b32 s3, s{WV}, 1
    s_and_b32 s3, s3, 3
    v_add_u32 v{m}, s3, v{m}
    v_bfe_u32 v{m+1}, v{LANE}, 3, 2
    v_bfe_u32 v{m+2}, v{LANE}, 2, 1
    v_lshlrev_b32 v{VOPR}, 4, v{T0}
    v_lshl_add_u32 v{VOPR}, v{m}, 6, v{VOPR}
    v_lshl_add_u32 v{VOPR}, v{m+1}, 8, v{VOPR}
    v_lshl_add_u32 v{VOPR}, v{m+2}, 10, v{VOPR}
    v_add_u32 v{VOPR}, {L_OP}, v{VOPR}
    v_lshlrev_b32 v{VLSE}, 2, v{m}
    v_add_u32 v{VLSE}, {L_LSE}, v{VLSE}
    s_lshl_b32 s3, s{XI}, 3
    s_and_b32 s14, s{WV}, 1
    s_lshl_b32 s14, s14, 2
    s_add_u32 s3, s3, s14
    s_lshl_b32 s3, s3, 13
    s_lshl_b32 s14, s{RR}, 8
    s_add_u32 s3, s3, s14
    s_add_u32 s3, s3, {WS_OG}
    v_and_b32 v{m+1}, 15, v{LANE}
    v_lshl_add_u32 v{VOGS}, v{m+1}, 4, s3
    v_lshl_add_u32 v{VOGS}, v{T0+2}, 13, v{VOGS}
    s_lshl_b32 s3, s{KG}, 3
    s_add_u32 s3, s3, s{WV}
    s_lshl_b32 s3, s3, 10
    s_add_u32 s3, s3, {WS_OG}
    v_add_u32 v{VOGL}, s3, v{VKP}
    s_lshl_b32 s3, s{WV}, 7
    s_add_u32 s3, s3, {L_OC}
    v_lshl_add_u32 v{VOCW}, v{T0}, 3, s3
    v_lshl_add_u32 v{VOCW}, v{T0+2}, 5, v{VOCW}
    s_lshl_b32 s3, s{NG}, 3
    s_add_u32 s3, s3, s{WV}
    s_lshl_b32 s3, s3, 14
    s_lshl_b32 s14, s{KG}, 6
    s_add_u32 s3, s3, s14
    s_add_u32 s3, s3, {WS_PG}
    v_lshl_add_u32 v{VPGS}, v{T0}, 4, s3
    v_lshl_add_u32 v{VPGS}, v{T0+1}, 12, v{VPGS}
    v_and_b32 v{m+1}, 1, v{T0+2}
    v_lshl_add_u32 v{VPGS}, v{m+1}, 19, v{VPGS}
    s_lshl_b32 s3, s2, 12
    s_add_u32 s3, s3, {WS_PG}
    v_lshrrev_b32 v{m+1}, 2, v{LANE}
    v_lshl_add_u32 v{VPGL}, v{T0}, 4, s3
    v_lshl_add_u32 v{VPGL}, v{m+1}, 8, v{VPGL}
    v_mov_b32 v{m+1}, s{TAG}
    v_bfe_u32 v{TB}, v{m+1}, 0, 8
    v_bfe_u32 v{TB+1}, v{m+1}, 8, 8
    v_bfe_u32 v{TB+2}, v{m+1}, 16, 8
    v_bfe_u32 v{TB+3}, v{m+1}, 24, 8
    s_mov_b32 s15, 0xffffff00
    """)
    for j in range(32):
        if f"VL{j}" not in done:
            vprep(j)
            wait(f"V{j}")
            vload(j)
            done.add(f"VL{j}")
    stamp("vdone")
    for i in range(8):
        A(f"v_mul_f32 v{OA+i}, v{OA+i}, v{FAC}")
    R0 = SP
    A(f"""
    ds_write_b128 v{VOPW}, v[{OA}:{OA+3}]
    ds_write_b128 v{VOPW}, v[{OA+4}:{OA+7}] offset:1024
    s_waitcnt lgkmcnt(0)
    s_barrier
    s_cmp_gt_u32 s{WV}, 1
    s_cbranch_scc1 L_t_other
    """)
    for w in range(8):
        A(f"ds_read_b128 v[{R0+4*w}:{R0+4*w+3}], v{VOPR} offset:{w*2048}")
    A(f"ds_read_b32 v{TT+2}, v{VLSE}")
    A(f"v_mov_b32 v{TT+3}, s{TAG}")
    cnt = 7
    for k, (a, b) in enumerate(((0, 1), (2, 3), (0, 2), (4, 5), (0, 4), (6, 7), (0, 6))):
        hi = max(a, b)
        if 8 - hi < cnt + 1:
            cnt = 8 - hi
            A(f"s_waitcnt lgkmcnt({cnt})")
            cnt -= 1
        for r in range(4):
            A(f"v_add_f32 v{R0+4*a+r}, v{R0+4*a+r}, v{R0+4*b+r}")
    A(f"""
    v_cvt_pk_bf16_f32 v{TT}, v{R0}, v{R0+1}
    v_cvt_pk_bf16_f32 v{TT+1}, v{R0+2}, v{R0+3}
    s_waitcnt lgkmcnt(0)
    """)
    G1 = TT + 4
    A.optional(f"global_store_dwordx4 v{VOGS}, v[{TT}:{TT+3}], s[30:31] sc1")
    stamp("ogpub")
    A.optional(f"global_load_dwordx4 v[{G1}:{G1+3}], v{VOGL}, s[30:31] sc1")
    A(f"""
    s_waitcnt vmcnt(2)
    s_branch L_t_join
    L_t_other:
    """)
    A.optional(f"global_load_dwordx4 v[{G1}:{G1+3}], v{VOGL}, s[30:31] sc1")
    A(f"""
    s_waitcnt vmcnt(1)
    L_t_join:
    s_barrier
    """)
    for u in range(2):
        for hf in range(2):
            A(f"ds_read_b64_tr_b16 v[{WF+4*u+2*hf}:{WF+4*u+2*hf+1}], v{VTRWO} offset:{L_WO + u*8192 + hf*256}")
    dpp = "row_mask:0xf bank_mask:0xf"
    C = TT + 8
    A(f"""
    s_mov_b32 s14, {spin}
    s_waitcnt vmcnt(0)
    L_o_chk:
    v_cmp_ne_u32 vcc, s{TAG}, v{G1+3}
    s_cbranch_vccz L_o_ok
    s_sub_u32 s14, s14, 1
    s_cbranch_scc1 L_o_ok
    s_mov_b64 exec, vcc
    """)
    A.optional(f"global_load_dwordx4 v[{G1}:{G1+3}], v{VOGL}, s[30:31] sc1")
    A(f"""
    s_mov_b64 exec, -1
    s_waitcnt vmcnt(0)
    s_branch L_o_chk
    L_o_ok:
    """)
    stamp("ogot")
    A(f"""
    v_max_f32_dpp v{C}, v{G1+2}, v{G1+2} row_ror:4 {dpp}
    v_lshlrev_b32 v{C+4}, 16, v{G1}
    v_and_b32 v{C+5}, 0xffff0000, v{G1}
    v_max_f32_dpp v{C+1}, v{C}, v{C} row_ror:8 {dpp}
    v_lshlrev_b32 v{C+6}, 16, v{G1+1}
    v_sub_f32 v{C+1}, v{G1+2}, v{C+1}
    v_exp_f32 v{C+1}, v{C+1}
    v_and_b32 v{C+7}, 0xffff0000, v{G1+1}
    v_mul_f32 v{C+4}, v{C+4}, v{C+1}
    v_mul_f32 v{C+5}, v{C+5}, v{C+1}
    v_add_f32_dpp v{C}, v{C+1}, v{C+1} row_ror:4 {dpp}
    v_mul_f32 v{C+6}, v{C+6}, v{C+1}
    v_mul_f32 v{C+7}, v{C+7}, v{C+1}
    v_add_f32_dpp v{C+2}, v{C}, v{C} row_ror:8 {dpp}
    v_add_f32_dpp v{C+4}, v{C+4}, v{C+4} row_ror:4 {dpp}
    v_rcp_f32 v{C+2}, v{C+2}
    v_add_f32_dpp v{C+5}, v{C+5}, v{C+5} row_ror:4 {dpp}
    v_add_f32_dpp v{C+6}, v{C+6}, v{C+6} row_ror:4 {dpp}
    v_add_f32_dpp v{C+7}, v{C+7}, v{C+7} row_ror:4 {dpp}
    v_mul_f32 v{C+2}, v{C+2}, v{GV}
    v_add_f32_dpp v{C+4}, v{C+4}, v{C+4} row_ror:8 {dpp}
    v_add_f32_dpp v{C+5}, v{C+5}, v{C+5} row_ror:8 {dpp}
    v_add_f32_dpp v{C+6}, v{C+6}, v{C+6} row_ror:8 {dpp}
    v_add_f32_dpp v{C+7}, v{C+7}, v{C+7} row_ror:8 {dpp}
    v_mul_f32 v{C+4}, v{C+4}, v{C+2}
    v_mul_f32 v{C+5}, v{C+5}, v{C+2}
    v_mul_f32 v{C+6}, v{C+6}, v{C+2}
    v_mul_f32 v{C+7}, v{C+7}, v{C+2}
    v_cvt_pk_bf16_f32 v{C}, v{C+4}, v{C+5}
    v_cvt_pk_bf16_f32 v{C+1}, v{C+6}, v{C+7}
    ds_write_b64 v{VOCW}, v[{C}:{C+1}]
    s_waitcnt lgkmcnt(0)
    s_barrier
    ds_read_b128 v[{R0}:{R0+3}], v{VOCA}
    ds_read_b128 v[{R0+4}:{R0+7}], v{VOCA} offset:64
    s_waitcnt lgkmcnt(1)
    v_mfma_f32_16x16x32_bf16 v[{D2}:{D2+3}], v[{R0}:{R0+3}], v[{WF}:{WF+3}], v[{D2}:{D2+3}]
    s_waitcnt lgkmcnt(0)
    v_mfma_f32_16x16x32_bf16 v[{D2}:{D2+3}], v[{R0+4}:{R0+7}], v[{WF+4}:{WF+7}], v[{D2}:{D2+3}]
    s_mov_b32 exec_hi, 0
    """)
    for r in range(4):
        A(f"v_and_or_b32 v{D2+r}, v{D2+r}, s15, v{TB+r}")
    A.optional(f"global_store_dwordx4 v{VPGS}, v[{D2}:{D2+3}], s[30:31] sc1")
    A(f"""
    s_mov_b32 exec_hi, -1
    s_cmp_lg_u32 s{WV}, 0
    s_cbranch_scc1 L_end
    """)
    stamp("pgpub")
    P = SP + 8
    for i in range(4):
        A.optional(f"global_load_dwordx4 v[{P+4*i}:{P+4*i+3}], v{VPGL}, s[30:31] offset:{i*64} sc1")
    A(f"""
    s_mov_b32 s14, {spin}
    s_mov_b32 s3, 0x0c0c0400
    s_mov_b32 s4, 0x05040100
    s_and_b32 s5, s2, 127
    s_lshl_b32 s5, s5, 3
    v_lshl_add_u32 v{C+6}, v{T0}, 1, s5
    v_lshl_add_u32 v{C+6}, v{GV+2}, 10, v{C+6}
    s_waitcnt vmcnt(0)
    L_p_chk:
    """)
    for i in range(4):
        p = P + 4 * i
        A(f"v_perm_b32 v{C}, v{p+1}, v{p}, s3")
        A(f"v_perm_b32 v{C+1}, v{p+3}, v{p+2}, s3")
        A(f"v_perm_b32 v{C}, v{C+1}, v{C}, s4")
        if i == 0:
            A(f"v_cmp_ne_u32 vcc, s{TAG}, v{C}")
        else:
            A(f"v_cmp_ne_u32 s[28:29], s{TAG}, v{C}")
            A(f"s_or_b64 vcc, vcc, s[28:29]")
    A(f"""
    s_cbranch_scc0 L_p_ok
    s_sub_u32 s14, s14, 1
    s_cbranch_scc1 L_p_ok
    s_mov_b64 exec, vcc
    """)
    if sleep: A(f"s_sleep {sleep}")
    for i in range(4):
        A.optional(f"global_load_dwordx4 v[{P+4*i}:{P+4*i+3}], v{VPGL}, s[30:31] offset:{i*64} sc1")
    A(f"""
    s_mov_b64 exec, -1
    s_waitcnt vmcnt(0)
    s_branch L_p_chk
    L_p_ok:
    """)
    stamp("pgot")
    for i in range(16):
        A(f"v_and_b32 v{P+i}, s15, v{P+i}")
    for (a, b) in ((0, 1), (2, 3), (0, 2)):
        for r in range(4):
            A(f"v_add_f32 v{P+4*a+r}, v{P+4*a+r}, v{P+4*b+r}")
    A(f"""
    v_permlane32_swap_b32 v{P}, v{P+1}
    v_permlane32_swap_b32 v{P+2}, v{P+3}
    v_add_f32 v{P}, v{P}, v{P+1}
    v_add_f32 v{P+2}, v{P+2}, v{P+3}
    v_permlane16_swap_b32 v{P}, v{P+2}
    v_add_f32 v{P}, v{P}, v{P+2}
    v_add_f32_dpp v{P}, v{P}, v{P} row_ror:4 {dpp}
    v_add_f32_dpp v{P}, v{P}, v{P} row_ror:8 {dpp}
    v_add_f32 v{P}, v{P}, v{B2}
    v_cvt_pk_bf16_f32 v{P}, v{P}, v{P}
    s_mov_b32 exec_lo, 0x000f000f
    s_mov_b32 exec_hi, 0x000f000f
    """)
    A.optional(f"global_store_short v{C+6}, v{P}, s[26:27]")
    A(f"""
    s_mov_b64 exec, 1
    s_cmp_lg_u32 s2, 0
    s_cbranch_scc1 L_noep
    v_mov_b32 v{C}, 0
    v_mov_b32 v{C+1}, s{TAG}
    """)
    A.optional(f"global_store_dword v{C}, v{C+1}, s[30:31] sc1")
    A("L_noep:")
    if stamps:
        stamp("outst")
        A("s_waitcnt vmcnt(0)")
        stamp("end")
        n = nst[0]
        A(f"""
        s_waitcnt lgkmcnt(0)
        s_mul_i32 s3, s2, {8*n}
        s_add_u32 s3, s3, {WS_STAMP}
        v_mov_b32 v{C}, s3
        """)
        for k in range(n):
            A(f"v_mov_b32 v{C+2}, s{STREGS[k]}")
            A(f"v_mov_b32 v{C+3}, s{STREGS[k]+1}")
            A.optional(f"global_store_dwordx2 v{C}, v[{C+2}:{C+3}], s[30:31] offset:{8*k}")
            A("s_nop 1")
        if probe:
            k = stnames.index(probe)
            A(f"""
            s_add_u32 s14, s{STREGS[k]}, 10000
            L_probe:
            s_sleep 4
            s_memrealtime s[4:5]
            s_waitcnt lgkmcnt(0)
            s_sub_u32 s3, s4, s14
            s_cmp_lt_i32 s3, 0
            s_cbranch_scc1 L_probe
            """)
        if dbg:
            A("s_load_dwordx2 s[28:29], s[0:1], 96")
            A(f"v_mov_b32 v{C}, 0")
            A("s_waitcnt lgkmcnt(0)")
            for k in range(n):
                A(f"v_mov_b32 v{C+2}, s{STREGS[k]}")
                A.optional(f"global_atomic_umax v{C}, v{C+2}, s[28:29] offset:{4*k}")
                A("s_nop 1")
            A(f"s_not_b32 s3, s{STREGS[0]}")
            A(f"v_mov_b32 v{C+2}, s3")
            A.optional(f"global_atomic_umax v{C}, v{C+2}, s[28:29] offset:60")
    A.raw("L_end:")
    A.raw("  s_endpgm")
    A.raw('.section .rodata,"a"')
    A.raw(".p2align 6")
    A.raw(f".amdhsa_kernel {NAME}_kernel")
    A.raw("  .amdhsa_next_free_vgpr 256")
    A.raw("  .amdhsa_next_free_sgpr 102")
    A.raw("  .amdhsa_accum_offset 256")
    A.raw("  .amdhsa_group_segment_fixed_size 0")
    A.raw("  .amdhsa_kernarg_size 112")
    A.raw("  .amdhsa_user_sgpr_count 2")
    A.raw("  .amdhsa_user_sgpr_kernarg_segment_ptr 1")
    A.raw("  .amdhsa_system_sgpr_workgroup_id_x 1")
    A.raw(".end_amdhsa_kernel")
    return A.text(), stnames

if __name__ == "__main__":
    ap = argparse.ArgumentParser()
    ap.add_argument("-o", default=f"cdna_kernels/{NAME}.s")
    ap.add_argument("--stamps", default="")
    ap.add_argument("--N", type=int, default=6)
    ap.add_argument("--N0", type=int, default=8)
    ap.add_argument("--qpos", type=int, default=14)
    ap.add_argument("--vpos", type=int, default=8)
    ap.add_argument("--wqflag", default="nt")
    ap.add_argument("--wflag", default="nt")
    ap.add_argument("--sleep", type=int, default=2)
    ap.add_argument("--kflag", default="nt")
    ap.add_argument("--vflag", default="nt")
    ap.add_argument("--probe", default=None)
    ap.add_argument("--dbg", action="store_true")
    ap.add_argument("--nop0bar", action="store_true")
    a = ap.parse_args()
    t, n = gen(N=a.N, N0=a.N0, qpos=a.qpos, vpos=a.vpos, stamps=a.stamps.split(",") if a.stamps else None, wqflag=a.wqflag, wflag=a.wflag, sleep=a.sleep, kflag=a.kflag, vflag=a.vflag, dbg=a.dbg, probe=a.probe, p0bar=not a.nop0bar)
    open(a.o, "w").write(t)
    print("wrote", a.o, "stamps", n)
```

```python
import sys, argparse, struct, math
sys.path.insert(0, "tools")
from asmlib import Asm
NAME = "gated_mix__gqa_block_cached__dense_activation_gelu__decode"
HDR = open("cdna_kernels/%s.s.ref" % NAME).read().split("; Override")[0]

def f2u(x): return struct.unpack("<I", struct.pack("<f", x))[0]
LOG2E = 1.4426950408889634

WS_HG = 0x40000
WS_QG = 0x80000
WS_OG = 0x100000
WS_PG = 0x200000
WS_STAMP = 0x8000000
L_WQ = 0
L_W1 = 16384
L_WO = 32768
L_W2 = 49152
L_OP = 65536
L_X = 81920
L_QC = 83968
L_HC = L_QC + 1024
L_OC = L_QC + 2048
L_ML = L_QC + 3072
L_GT = L_ML + 256
L_LSE = L_GT + 32
L_LF = L_LSE + 32
L_PF = L_LF + 32
L_END = L_PF + 4096

DEF = dict(N=4, N0=3, hpos=4, gpos=8, qpos=12, qdelay=3, vpos=8, stamps=None, kflag="nt", vflag="nt", wflag="nt",
           spin=20000, sleep=2, dbg=False, probe=None, p0bar=True, pgpad=256, skip="", wopos=32, local=True, ackwait=True)

def gen(**kw):
    P = dict(DEF); P.update(kw)
    N, N0, hpos, gpos, qpos, qdelay, vpos = (P[k] for k in ("N", "N0", "hpos", "gpos", "qpos", "qdelay", "vpos"))
    stamps, kflag, vflag, wflag, spin, sleep = (P[k] for k in ("stamps", "kflag", "vflag", "wflag", "spin", "sleep"))
    PGS = 16384 + P["pgpad"]
    A = Asm()
    stnames = []
    STREGS = [90, 92, 94, 96, 98, 100, 6, 8, 10, 12, 16, 18]
    def stamp(nm):
        if stamps and nm in stamps:
            r = STREGS[len(stnames)]
            stnames.append(nm)
            A(f"s_memrealtime s[{r}:{r+1}]")
    LANE, VLIN, VKP, MX, MY, VC, VR, VS = 1, 2, 3, 4, 5, 6, 7, 8
    TB = 9; GV = 13; FAC = 14; MREG = 15
    QF = 16; SP = 32; OA = 64; D2 = 72; TT = 76; G = 92; XY = 96
    VQA, VHA, VW2A, VWOA, VW1A, VTRP, VXA, VPERM, VCW, VAF, VTRWO, VTRW2, VQF, B2 = range(100, 114)
    B1 = 114; XG = 116; T0 = 124
    RING = 128
    def ring(i): return RING + (i % 32) * 4
    WV, XI, RR, BB, SS, TAG, KG, FG, FP, HTAG, SMASK, ST = 32, 33, 34, 35, 36, 37, 38, 39, 40, 41, 42, 43
    SK, SV, SWQ, SW1, SWO, SW2, SHS, SHL, SB1 = 44, 48, 52, 56, 60, 64, 68, 72, 76
    M55, MAA, M33, MCC = 80, 82, 84, 86
    SOFF, SC = 88, 89
    XCC, LOCAL = 43, 40
    SEL1, SEL2 = 14, 15
    CNT = 3
    dpp = "row_mask:0xf bank_mask:0xf"

    A.raw(HDR.rstrip("\n"))
    A.raw(f"; @launch grid=(256,1,1) block=(512,1,1) lds={L_END}")
    A.raw('.amdgcn_target "amdgcn-amd-amdhsa--gfx950"')
    A.raw(".text")
    A.raw(f".globl {NAME}_kernel")
    A.raw(".p2align 8")
    A.raw(f".type {NAME}_kernel,@function")
    A.raw(f"{NAME}_kernel:")
    stamp("entry")
    A(f"""
    s_cmp_ge_u32 s2, 256
    s_cbranch_scc1 L_end
    s_load_dwordx16 s[4:19], s[0:1], 0
    s_load_dwordx8 s[20:27], s[0:1], 64
    s_load_dwordx4 s[28:31], s[0:1], 96
    v_lshrrev_b32 v{T0}, 6, v0
    v_and_b32 v{LANE}, 63, v0
    s_and_b32 s{XI}, s2, 7
    v_readfirstlane_b32 s{WV}, v{T0}
    s_lshr_b32 s{RR}, s2, 3
    s_lshr_b32 s{BB}, s{RR}, 2
    s_and_b32 s{SS}, s{RR}, 3
    v_lshlrev_b32 v{VLIN}, 4, v{LANE}
    v_and_b32 v{VC}, 3, v{LANE}
    v_bfe_u32 v{VR}, v{LANE}, 2, 2
    v_lshrrev_b32 v{VS}, 4, v{LANE}
    v_lshlrev_b32 v{VKP}, 4, v{VC}
    v_lshl_add_u32 v{VKP}, v{VR}, 8, v{VKP}
    v_lshl_add_u32 v{VKP}, v{VS}, 6, v{VKP}
    s_lshl_b32 s{ST}, s{BB}, 3
    s_add_u32 s{ST}, s{ST}, s{XI}
    s_lshl_b32 s{ST}, s{ST}, 2
    s_add_u32 s{ST}, s{ST}, s{SS}
    s_lshl_b32 s{ST}, s{ST}, 18
    s_lshl_b32 s3, s{WV}, 4
    v_lshrrev_b32 v{T0}, 3, v{LANE}
    v_add_u32 v{T0}, s3, v{T0}
    v_and_b32 v{T0+1}, 1, v{VS}
    v_lshlrev_b32 v{T0+1}, 1, v{T0+1}
    v_and_b32 v{T0+2}, 7, v{LANE}
    v_xor_b32 v{T0+1}, v{T0+1}, v{T0+2}
    v_lshlrev_b32 v{T0+1}, 4, v{T0+1}
    v_mul_u32_u24 v{VW1A}, 3584, v{T0}
    v_add_u32 v{VW1A}, v{VW1A}, v{T0+1}
    v_lshl_add_u32 v{G}, v{T0}, 13, v{T0+1}
    v_xor_b32 v{G+1}, 64, v{G}
    s_lshl_b32 s3, s{WV}, 12
    s_lshl_b32 s{SMASK}, s{SS}, 8
    s_add_u32 s3, s3, s{SMASK}
    v_and_b32 v{T0}, 15, v{LANE}
    v_lshl_add_u32 v{G+2}, v{T0}, 4, s3
    v_lshl_add_u32 v{G+2}, v{VS}, 10, v{G+2}
    s_lshl_b32 s{KG}, s{SS}, 20
    s_lshl_b32 s3, s{XI}, 10
    s_add_u32 s{KG}, s{KG}, s3
    s_lshl_b32 s3, s{BB}, 7
    s_add_u32 s{KG}, s{KG}, s3
    s_lshl_b32 s{SOFF}, s{WV}, 12
    s_mov_b32 s{SK+3}, 0x20000
    s_mov_b32 s{SWQ+3}, 0x20000
    s_mov_b32 s{SK+2}, 0x40000
    s_sub_u32 s{SWQ+2}, 0x400000, s{KG}
    s_lshl_b32 s3, s{WV}, 10
    s_add_u32 m0, s3, {L_X}
    s_mov_b32 s{FG}, 0x10000
    s_cmp_gt_u32 s{WV}, 1
    s_waitcnt lgkmcnt(0)
    s_load_dword s{TAG}, s[30:31], 0
    s_cbranch_scc1 L_nox
    """)
    A.optional(f"global_load_lds_dwordx4 v{G+2}, s[4:5]")
    A(f"""
    L_nox:
    s_lshl_b32 m0, s{WV}, 11
    s_add_u32 s{SWQ}, s10, s{KG}
    s_addc_u32 s{SWQ+1}, s11, 0
    """)
    stamp("karg")
    A(f"buffer_load_dwordx4 v{G}, s[{SWQ}:{SWQ+3}], 0 offen {wflag} lds", "wq0")
    A(f"s_add_u32 m0, m0, 1024")
    A(f"s_add_u32 s{SK}, s6, s{ST}")
    A(f"buffer_load_dwordx4 v{G+1}, s[{SWQ}:{SWQ+3}], s{FG} offen {wflag} lds", "wq1")
    A(f"s_addc_u32 s{SK+1}, s7, 0")

    stream = []
    for i in range(32):
        if i == hpos: stream += ["W10", "W11"]
        if i == gpos: stream += ["XG", "GW", "B1", "B2"]
        if i == qpos: stream += ["Q"]
        stream.append(f"K{i}")
    for j in range(32):
        if j == vpos: stream += ["W2a", "W2b", "H"]
        if j == P["wopos"]: stream += ["WOa", "WOb"]
        stream.append(f"V{j}")
    if P["wopos"] >= 32: stream += ["WOa", "WOb"]
    done = set(); arrived = set(); issued = []
    isbig = lambda n: n[0] in "KV" or n[:2] == "WO"

    def issue(nm):
        if "L" + nm[:2] in P["skip"].split(","):
            arrived.add(nm)
        elif nm[0] == "K":
            i = int(nm[1:]); r = ring(i)
            A(f"buffer_load_dwordx4 v[{r}:{r+3}], v{VKP}, s[{SK}:{SK+3}], s{SOFF} offen offset:{(i%4)*1024} {kflag}", nm)
            if i % 4 == 3:
                if i == 31: A(f"s_lshl_b32 s{SOFF}, s{WV}, 12")
                else: A(f"s_add_u32 s{SOFF}, s{SOFF}, 32768")
        elif nm[0] == "V":
            j = int(nm[1:]); r = ring(j)
            assert f"KT{j//4}" in done, nm
            A(f"buffer_load_dwordx4 v[{r}:{r+3}], v{VLIN}, s[{SV}:{SV+3}], s{SOFF} offen offset:{(j%4)*1024} {vflag}", nm)
            if j % 4 == 3 and j != 31: A(f"s_add_u32 s{SOFF}, s{SOFF}, 32768")
        elif nm == "W10":
            A(f"s_lshl_b32 s3, s{WV}, 11")
            A(f"s_add_u32 m0, s3, {L_W1}")
            A(f"buffer_load_dwordx4 v{VW1A}, s[{SW1}:{SW1+3}], 0 offen {wflag} lds", nm)
        elif nm == "W11":
            A(f"s_add_u32 m0, m0, 1024")
            A(f"v_xor_b32 v{VW1A}, 64, v{VW1A}")
            A(f"s_movk_i32 s3, {8*3584}")
            A(f"buffer_load_dwordx4 v{VW1A}, s[{SW1}:{SW1+3}], s3 offen {wflag} lds", nm)
        elif nm == "XG":
            A(f"s_lshl_b32 s3, s{WV}, 10")
            A(f"v_add_u32 v{T0}, s3, v{VLIN}")
            A(f"global_load_dwordx4 v[{XG}:{XG+3}], v{T0}, s[4:5]", nm)
        elif nm == "GW":
            A(f"global_load_dwordx4 v[{XG+4}:{XG+7}], v{VLIN}, s[24:25]", nm)
        elif nm == "B1":
            A(f"v_lshlrev_b32 v{T0}, 3, v{VC}")
            A(f"v_lshl_add_u32 v{T0}, v{VS}, 5, v{T0}")
            A(f"buffer_load_dwordx2 v[{B1}:{B1+1}], v{T0}, s[{SB1}:{SB1+3}], 0 offen", nm)
        elif nm == "B2":
            A(f"""
            s_and_b32 s3, s{RR}, 15
            s_lshl_b32 s28, s{XI}, 4
            s_add_u32 s3, s3, s28
            s_lshl_b32 s3, s3, 3
            v_lshl_add_u32 v{T0}, v{VC}, 1, s3
            """)
            A(f"global_load_ushort v{B2}, v{T0}, s[22:23]", nm)
        elif nm == "Q":
            A(f"global_load_dwordx4 v[{G}:{G+3}], v{VQA}, s[30:31] sc1", nm)
        elif nm == "W2a":
            A(f"s_lshl_b32 s3, s{WV}, 11")
            A(f"s_add_u32 m0, s3, {L_W2}")
            A(f"buffer_load_dwordx4 v{VW2A}, s[{SW2}:{SW2+3}], 0 offen {wflag} lds", nm)
        elif nm == "W2b":
            A(f"s_add_u32 m0, m0, 1024")
            A(f"s_movk_i32 s3, 4096")
            A(f"buffer_load_dwordx4 v{VW2A}, s[{SW2}:{SW2+3}], s3 offen {wflag} lds", nm)
        elif nm == "H":
            assert "QC" in done
            A(f"buffer_load_dwordx4 v[{G}:{G+3}], v{VHA}, s[{SHL}:{SHL+3}], 0 offen sc1", nm)
        elif nm == "WOa":
            A(f"s_lshl_b32 s3, s{WV}, 11")
            A(f"s_add_u32 m0, s3, {L_WO}")
            A(f"buffer_load_dwordx4 v{VWOA}, s[{SWO}:{SWO+3}], 0 offen {wflag} lds", nm)
        elif nm == "WOb":
            A(f"s_add_u32 m0, m0, 1024")
            A(f"s_movk_i32 s3, 4096")
            A(f"buffer_load_dwordx4 v{VWOA}, s[{SWO}:{SWO+3}], s3 offen {wflag} lds", nm)
        issued.append(nm)

    def wait(nm):
        if nm in arrived: return
        A.wait_vm(nm)
        for x in issued[:issued.index(nm) + 1]: arrived.add(x)

    if P["p0bar"]: A("s_barrier")
    pos = 0
    while pos < N0:
        assert isbig(stream[pos])
        issue(stream[pos]); pos += 1
    stamp("kiss")
    A(f"""
    v_and_b32 v{T0}, 1, v{VS}
    v_lshrrev_b32 v{T0+1}, 1, v{VR}
    v_lshl_or_b32 v{T0+1}, v{T0}, 1, v{T0+1}
    s_and_b32 s{FP}, s{WV}, 3
    v_xor_b32 v{T0+1}, s{FP}, v{T0+1}
    v_lshlrev_b32 v{VTRP}, 3, v{VC}
    v_lshl_add_u32 v{VTRP}, v{T0+1}, 5, v{VTRP}
    v_lshl_add_u32 v{VTRP}, v{VR}, 7, v{VTRP}
    v_lshl_add_u32 v{VTRP}, v{VS}, 10, v{VTRP}
    v_and_b32 v{T0+2}, 7, v{LANE}
    v_lshlrev_b32 v{VXA}, 8, v{T0+2}
    v_lshl_add_u32 v{VXA}, v{VS}, 4, v{VXA}
    v_add_u32 v{VXA}, {L_X}, v{VXA}
    v_bfe_u32 v{T0+3}, v{LANE}, 2, 3
    v_lshl_add_u32 v{VPERM}, v{VC}, 4, v{T0+3}
    v_lshlrev_b32 v{VPERM}, 2, v{VPERM}
    s_lshl_b32 s3, s{XI}, 16
    s_lshl_b32 s{SMASK}, s{RR}, 8
    s_add_u32 s3, s3, s{SMASK}
    s_lshl_b32 s{SMASK}, s{FP}, 6
    s_add_u32 s3, s3, s{SMASK}
    s_add_u32 s3, s3, {WS_QG}
    v_lshl_add_u32 v{QF}, v{VC}, 4, s3
    v_lshl_add_u32 v{QF}, v{T0+3}, 13, v{QF}
    s_mov_b32 s{SMASK}, 0xffffff00
    s_mov_b32 s{SEL1}, 0x0c0c0400
    s_mov_b32 s{SEL2}, 0x05040100
    s_waitcnt lgkmcnt(0)
    s_add_u32 s{TAG}, s{TAG}, 0x9e3779b9
    v_mov_b32 v{TB+3}, s{TAG}
    v_bfe_u32 v{TB}, v{TB+3}, 0, 8
    v_bfe_u32 v{TB+1}, v{TB+3}, 8, 8
    v_bfe_u32 v{TB+2}, v{TB+3}, 16, 8
    v_lshrrev_b32 v{TB+3}, 24, v{TB+3}
    """)
    SETUP2 = f"""
    ; A frag address: L_QC + (l&7)*128 + slab*16
    v_and_b32 v{T0+2}, 7, v{LANE}
    v_lshlrev_b32 v{VAF}, 7, v{T0+2}
    v_lshl_add_u32 v{VAF}, v{VS}, 4, v{VAF}
    v_add_u32 v{VAF}, {L_QC}, v{VAF}
    ; compact write address: L_QC + wv*128 + slab*32 + c*8
    s_lshl_b32 s3, s{WV}, 7
    s_add_u32 s3, s3, {L_QC}
    v_lshl_add_u32 v{VCW}, v{VC}, 3, s3
    v_lshl_add_u32 v{VCW}, v{VS}, 5, v{VCW}
    s_add_u32 s{SV}, s8, s{ST}
    s_addc_u32 s{SV+1}, s9, 0
    s_mov_b32 s{SV+2}, 0x40000
    s_mov_b32 s{SV+3}, 0x20000
    s_mov_b32 s{SW1+3}, 0x20000
    s_mov_b32 s{SWO+3}, 0x20000
    s_mov_b32 s{SW2+3}, 0x20000
    s_mov_b32 s{SHS+3}, 0x20000
    s_mov_b32 s{SHL+3}, 0x20000
    s_mov_b32 s{SB1+3}, 0x20000
    s_lshl_b32 s{FG}, s{BB}, 3
    s_add_u32 s{FG}, s{FG}, s{XI}
    s_lshl_b32 s{KG}, s{XI}, 3
    s_add_u32 s{KG}, s{KG}, s{BB}
    s_sub_u32 s{FP}, s{FG}, 32
    s_cmp_lt_u32 s{FP}, 28
    s_cselect_b32 s{FP}, s{FP}, 0
    s_cselect_b32 s{SW1+2}, {128*3584}, 0
    s_cselect_b32 s{SHS+2}, 8192, 0
    s_mul_i32 s3, s{SS}, {128*3584}
    s_lshl_b32 s28, s{FP}, 7
    s_add_u32 s3, s3, s28
    s_add_u32 s{SW1}, s16, s3
    s_addc_u32 s{SW1+1}, s17, 0
    s_lshl_b32 s3, s{FP}, 13
    s_add_u32 s3, s3, {WS_HG}
    s_add_u32 s{SHS}, s30, s3
    s_addc_u32 s{SHS+1}, s31, 0
    s_lshl_b32 s3, s{KG}, 16
    s_lshl_b32 s28, s{SS}, 8
    s_add_u32 s3, s3, s28
    s_add_u32 s{SWO}, s12, s3
    s_addc_u32 s{SWO+1}, s13, 0
    s_sub_u32 s{SWO+2}, 0x400000, s3
    s_cmp_lt_u32 s{FG}, 28
    s_cselect_b32 s{FG}, s{FG}, 0
    s_cselect_b32 s{SW2+2}, {63*1024+256}, 0
    s_cselect_b32 s{SHL+2}, 8192, 0
    s_cselect_b32 s{SB1+2}, 128, 0
    s_cselect_b32 s{HTAG}, s{TAG}, 0
    s_lshl_b32 s3, s{FG}, 16
    s_add_u32 s3, s3, s28
    s_add_u32 s{SW2}, s20, s3
    s_addc_u32 s{SW2+1}, s21, 0
    s_lshl_b32 s3, s{FG}, 13
    s_add_u32 s3, s3, {WS_HG}
    s_add_u32 s{SHL}, s30, s3
    s_addc_u32 s{SHL+1}, s31, 0
    s_lshl_b32 s3, s{FG}, 7
    s_add_u32 s{SB1}, s18, s3
    s_addc_u32 s{SB1+1}, s19, 0
    s_mov_b32 s{M55}, 0x55555555
    s_mov_b32 s{M55+1}, 0x55555555
    s_mov_b32 s{MAA}, 0xaaaaaaaa
    s_mov_b32 s{MAA+1}, 0xaaaaaaaa
    s_mov_b32 s{M33}, 0x33333333
    s_mov_b32 s{M33+1}, 0x33333333
    s_mov_b32 s{MCC}, 0xcccccccc
    s_mov_b32 s{MCC+1}, 0xcccccccc
    s_mov_b32 s{SC}, {hex(f2u(LOG2E * 128 ** -0.5))}
    ; q frag lds address: L_QC + head*256 + slab*64 (head = r)
    v_lshlrev_b32 v{VQF}, 8, v{VR}
    v_lshl_add_u32 v{VQF}, v{VS}, 6, v{VQF}
    v_add_u32 v{VQF}, {L_QC}, v{VQF}
    ; P masks
    v_and_b32 v{T0}, 1, v{LANE}
    v_lshlrev_b32 v{T0}, 4, v{T0}
    v_mov_b32 v{T0+1}, 0xffff
    v_lshlrev_b32 v{T0}, v{T0}, v{T0+1}
    v_cndmask_b32 v{MX}, 0, v{T0}, s[{M33}:{M33+1}]
    v_cndmask_b32 v{MY}, 0, v{T0}, s[{MCC}:{MCC+1}]
    v_and_b32 v{T0}, 1, v{VS}
    v_lshl_or_b32 v{T0+1}, v{VR}, 1, v{T0}
    v_xor_b32 v{T0+1}, s{WV}, v{T0+1}
    v_lshlrev_b32 v{VTRWO}, 3, v{VC}
    v_lshl_add_u32 v{VTRWO}, v{T0+1}, 5, v{VTRWO}
    v_lshl_add_u32 v{VTRWO}, v{VR}, 11, v{VTRWO}
    v_lshl_add_u32 v{VTRWO}, v{VS}, 9, v{VTRWO}
    v_lshl_or_b32 v{T0+1}, v{T0}, 2, v{VR}
    v_xor_b32 v{T0+1}, s{WV}, v{T0+1}
    v_lshlrev_b32 v{VTRW2}, 3, v{VC}
    v_lshl_add_u32 v{VTRW2}, v{T0+1}, 5, v{VTRW2}
    v_lshl_add_u32 v{VTRW2}, v{VR}, 8, v{VTRW2}
    v_lshl_add_u32 v{VTRW2}, v{VS}, 11, v{VTRW2}
    s_lshl_b32 s3, s{WV}, 10
    v_add_u32 v{VHA}, s3, v{VKP}
    s_lshl_b32 s3, s{XI}, 3
    s_add_u32 s3, s3, s{BB}
    s_lshl_b32 s3, s3, 13
    s_add_u32 s3, s3, {WS_QG}
    v_add_u32 v{VQA}, s3, v{VHA}
    s_and_b32 s3, s{WV}, 3
    s_lshl_b32 s3, s3, 2
    v_lshrrev_b32 v{T0}, 5, v{LANE}
    v_lshl_or_b32 v{T0}, v{T0}, 1, s3
    v_and_b32 v{T0+1}, 15, v{LANE}
    v_xor_b32 v{T0}, v{T0}, v{T0+1}
    s_lshl_b32 s3, s{WV}, 13
    v_lshl_add_u32 v{VW2A}, v{VS}, 10, s3
    v_lshl_add_u32 v{VWOA}, v{T0}, 4, v{VW2A}
    s_and_b32 s3, s{WV}, 1
    s_lshl_b32 s3, s3, 3
    v_lshl_or_b32 v{T0}, v{VS}, 1, s3
    v_xor_b32 v{T0}, v{T0}, v{T0+1}
    v_lshl_add_u32 v{VW2A}, v{T0}, 4, v{VW2A}
    s_getreg_b32 s{XCC}, hwreg(HW_REG_XCC_ID, 0, 3)
    v_xor_b32 v{QF+1}, s{XCC}, v{TB}
    """
    A(SETUP2)
    stamp("setup")

    def p0tile(lw, store, tb0=None):
        W = SP; XR = SP + 16; D = TT
        for u in range(4):
            A(f"ds_read_b128 v[{XR+4*u}:{XR+4*u+3}], v{VXA} offset:{u*64}")
            for hf in range(2):
                A(f"ds_read_b64_tr_b16 v[{W+4*u+hf*2}:{W+4*u+hf*2+1}], v{VTRP} offset:{lw + u*4096 + hf*512}")
        for u in range(4):
            A(f"s_waitcnt lgkmcnt({9-3*u})")
            c = "0" if u == 0 else f"v[{D}:{D+3}]"
            A(f"v_mfma_f32_16x16x32_bf16 v[{D}:{D+3}], v[{W+4*u}:{W+4*u+3}], v[{XR+4*u}:{XR+4*u+3}], {c}")
        for r in range(4):
            A(f"v_and_or_b32 v{D+r}, v{D+r}, s{SMASK}, v{tb0 if (r == 0 and tb0) else TB+r}")
        for r in range(4):
            A(f"ds_bpermute_b32 v{D+4+r}, v{VPERM}, v{D+r}")
        A("s_mov_b32 exec_hi, 0")
        A("s_waitcnt lgkmcnt(0)")
        A.optional(store(D + 4))
        A("s_mov_b32 exec_hi, -1")
        A("s_nop 1")

    A.wait_vm("wq1")
    stamp("x1")
    A(f"""
    s_barrier
    """)
    stamp("bar1")
    if stamps: A("s_waitcnt lgkmcnt(0)")
    A(f"""
    s_cmp_gt_u32 s{WV}, 3
    s_cbranch_scc1 L_p0_done
    """)
    p0tile(L_WQ, lambda d: f"global_store_dwordx4 v{QF}, v[{d}:{d+3}], s[30:31] sc1", QF + 1)
    A("L_p0_done:")
    stamp("p0done")

    def tagcheck(lbl, tagreg, reload, xcc=False):
        C = TT
        A(f"""
        s_mov_b32 s{CNT}, {spin}
        L_{lbl}_chk:
        v_perm_b32 v{C}, v{G+1}, v{G}, s{SEL1}
        v_perm_b32 v{C+1}, v{G+3}, v{G+2}, s{SEL1}
        v_perm_b32 v{C}, v{C+1}, v{C}, s{SEL2}
        v_xor_b32 v{C}, s{tagreg}, v{C}
        v_cmp_le_u32 vcc, {8 if xcc else 1}, v{C}
        s_cbranch_vccz L_{lbl}_ok
        s_sub_u32 s{CNT}, s{CNT}, 1
        s_cbranch_scc1 L_{lbl}_ok
        """)
        A.optional(reload)
        A(f"""
        s_waitcnt vmcnt(0)
        s_branch L_{lbl}_chk
        L_{lbl}_ok:
        """)
        for r in range(4):
            A(f"v_and_b32 v{G+r}, s{SMASK}, v{G+r}")
        for ror in (4, 8):
            for r in range(4):
                A(f"v_add_f32_dpp v{G+r}, v{G+r}, v{G+r} row_ror:{ror} {dpp}")

    def qcomb():
        stamp("qarr")
        tagcheck("q", TAG, f"global_load_dwordx4 v[{G}:{G+3}], v{VQA}, s[30:31] sc1", True)
        A(f"""
        v_cmp_ne_u32 vcc, s{XCC}, v{TT}
        v_cvt_pk_bf16_f32 v{G}, v{G}, v{G+1}
        v_cvt_pk_bf16_f32 v{G+1}, v{G+2}, v{G+3}
        s_or_b32 s28, vcc_lo, vcc_hi
        s_lshl_b32 s3, s{WV}, 2
        s_add_u32 s3, s3, {L_LF}
        v_mov_b32 v{TT}, s3
        v_mov_b32 v{TT+1}, s28
        ds_write_b64 v{VCW}, v[{G}:{G+1}]
        ds_write_b32 v{TT}, v{TT+1}
        """)
        stamp("qgot")

    def qbar():
        assert "W11" in arrived
        A(f"""
        s_waitcnt lgkmcnt(0)
        s_barrier
        """)
        for u in range(4):
            A(f"ds_read_b128 v[{QF+4*u}:{QF+4*u+3}], v{VQF} offset:{u*16}")
        A(f"""
        v_and_b32 v{T0}, 7, v{LANE}
        v_lshlrev_b32 v{T0}, 2, v{T0}
        v_add_u32 v{T0}, {L_LF}, v{T0}
        ds_read_b32 v{T0}, v{T0}
        s_cmp_lt_u32 s{WV}, 4
        s_cselect_b32 s3, 0, s{SHS+2}
        s_waitcnt lgkmcnt(0)
        v_cmp_ne_u32 vcc, 0, v{T0}
        s_or_b32 s{LOCAL}, vcc_lo, {0 if P["local"] else 1}
        s_cmp_eq_u32 s3, 0
        s_cbranch_scc1 L_h_done
        s_lshl_b32 s3, s{SS}, 8
        s_and_b32 s28, s{WV}, 3
        s_lshl_b32 s28, s28, 6
        s_add_u32 s3, s3, s28
        v_bfe_u32 v{T0+1}, v{LANE}, 2, 3
        v_lshl_add_u32 v{T0}, v{VC}, 4, s3
        v_lshl_add_u32 v{T0}, v{T0+1}, 10, v{T0}
        """)
        p0tile(L_W1, lambda d: f"buffer_store_dwordx4 v[{d}:{d+3}], v{T0}, s[{SHS}:{SHS+3}], 0 offen sc1")
        A("L_h_done:")
        stamp("qready")

    def xreduce(reg, tmp, op):
        A(f"""
        v_mov_b32 v{tmp}, v{reg}
        v_permlane32_swap_b32 v{reg}, v{tmp}
        {op} v{reg}, v{reg}, v{tmp}
        v_mov_b32 v{tmp}, v{reg}
        v_permlane16_swap_b32 v{reg}, v{tmp}
        {op} v{reg}, v{reg}, v{tmp}
        """)

    def gate():
        A(f"v_dot2_f32_bf16 v{GV}, v{XG}, v{XG+4}, 0")
        for i in range(1, 4):
            A(f"v_dot2_f32_bf16 v{GV}, v{XG+i}, v{XG+4+i}, v{GV}")
        A(f"""
        v_add_f32_dpp v{GV}, v{GV}, v{GV} quad_perm:[1,0,3,2] {dpp}
        v_add_f32_dpp v{GV}, v{GV}, v{GV} quad_perm:[2,3,0,1] {dpp}
        v_add_f32_dpp v{GV}, v{GV}, v{GV} row_ror:4 {dpp}
        v_add_f32_dpp v{GV}, v{GV}, v{GV} row_ror:8 {dpp}
        """)
        xreduce(GV, T0, "v_add_f32")
        A(f"""
        v_mul_f32 v{GV}, {hex(f2u(-LOG2E))}, v{GV}
        v_exp_f32 v{GV}, v{GV}
        s_lshl_b32 s3, s{WV}, 2
        s_add_u32 s3, s3, {L_GT}
        v_add_f32 v{GV}, 1.0, v{GV}
        v_mov_b32 v{T0}, s3
        v_rcp_f32 v{GV}, v{GV}
        s_nop 0
        ds_write_b32 v{T0}, v{GV}
        """)

    def hcomb():
        tagcheck("h", HTAG, f"buffer_load_dwordx4 v[{G}:{G+3}], v{VHA}, s[{SHL}:{SHL+3}], 0 offen sc1")
        c1 = math.sqrt(2 / math.pi)
        k1 = -2 * c1 * LOG2E; k3 = k1 * 0.044715
        U = TT + 8
        A(f"""
        v_lshlrev_b32 v{TT}, 16, v{B1}
        v_and_b32 v{TT+1}, 0xffff0000, v{B1}
        v_lshlrev_b32 v{TT+2}, 16, v{B1+1}
        v_and_b32 v{TT+3}, 0xffff0000, v{B1+1}
        v_mov_b32 v{TT+4}, {hex(f2u(k1))}
        v_sub_f32 v{TT+5}, 1.0, v{GV}
        """)
        for r in range(4): A(f"v_add_f32 v{G+r}, v{G+r}, v{TT+r}")
        for r in range(4): A(f"v_mul_f32 v{U+r}, v{G+r}, v{G+r}")
        for r in range(4): A(f"v_fmamk_f32 v{U+r}, v{U+r}, {hex(f2u(k3))}, v{TT+4}")
        for r in range(4): A(f"v_mul_f32 v{U+r}, v{U+r}, v{G+r}")
        for r in range(4): A(f"v_exp_f32 v{U+r}, v{U+r}")
        for r in range(4): A(f"v_add_f32 v{U+r}, 1.0, v{U+r}")
        for r in range(4): A(f"v_rcp_f32 v{U+r}, v{U+r}")
        for r in range(4): A(f"v_mul_f32 v{G+r}, v{G+r}, v{TT+5}")
        for r in range(4): A(f"v_mul_f32 v{G+r}, v{G+r}, v{U+r}")
        A(f"""
        v_cvt_pk_bf16_f32 v{G}, v{G}, v{G+1}
        v_cvt_pk_bf16_f32 v{G+1}, v{G+2}, v{G+3}
        ds_write_b64 v{VCW}, v[{G}:{G+1}] offset:{L_HC - L_QC}
        """)

    def ktile(t):
        R = [ring(4 * t + i) for i in range(4)]
        A(f"s_mov_b64 vcc, s[{M55}:{M55+1}]")
        for p in (0, 2):
            for w in range(4):
                A(f"v_cndmask_b32_dpp v{TT+4*p+w}, v{R[p+1]+w}, v{R[p]+w}, vcc quad_perm:[1,0,3,2] {dpp}")
        A(f"s_mov_b64 vcc, s[{MAA}:{MAA+1}]")
        for p in (0, 2):
            for w in range(4):
                A(f"v_cndmask_b32_dpp v{TT+4*(p+1)+w}, v{R[p]+w}, v{R[p+1]+w}, vcc quad_perm:[1,0,3,2] {dpp}")
        A(f"s_mov_b64 vcc, s[{M33}:{M33+1}]")
        for p in (0, 1):
            for w in range(4):
                A(f"v_cndmask_b32_dpp v{R[p]+w}, v{TT+4*(p+2)+w}, v{TT+4*p+w}, vcc quad_perm:[2,3,0,1] {dpp}")
        A(f"s_mov_b64 vcc, s[{MCC}:{MCC+1}]")
        for p in (0, 1):
            for w in range(4):
                A(f"v_cndmask_b32_dpp v{R[p+2]+w}, v{TT+4*p+w}, v{TT+4*(p+2)+w}, vcc quad_perm:[2,3,0,1] {dpp}")
        S = SP + 4 * t
        for u in range(4):
            c = "0" if u == 0 else f"v[{S}:{S+3}]"
            A(f"v_mfma_f32_16x16x32_bf16 v[{S}:{S+3}], v[{R[u]}:{R[u]+3}], v[{QF+4*u}:{QF+4*u+3}], {c}")

    def softmax1():
        m = TT
        for i in range(8):
            A(f"v_max3_f32 v{m+i}, v{SP+4*i}, v{SP+4*i+1}, v{SP+4*i+2}")
        for i in range(4):
            A(f"v_max3_f32 v{m+2*i}, v{m+2*i}, v{m+2*i+1}, v{SP+8*i+3}")
        for i in range(2):
            A(f"v_max3_f32 v{m+4*i}, v{m+4*i}, v{m+4*i+2}, v{SP+16*i+7}")
        A(f"v_max3_f32 v{m}, v{m}, v{m+4}, v{SP+15}")
        A(f"v_max_f32 v{m}, v{m}, v{SP+31}")
        xreduce(m, m + 1, "v_max_f32")
        A(f"v_mul_f32 v{MREG}, s{SC}, v{m}")
        for i in range(32):
            A(f"v_fma_f32 v{SP+i}, v{SP+i}, s{SC}, -v{MREG}")
    def softmax2():
        for i in range(32):
            A(f"v_exp_f32 v{SP+i}, v{SP+i}")
    def softmax3():
        m = TT
        for i in range(8):
            A(f"v_add_f32 v{m+i}, v{SP+4*i}, v{SP+4*i+1}")
        for i in range(8):
            A(f"v_add_f32 v{m+8+i}, v{SP+4*i+2}, v{SP+4*i+3}")
        for st in (8, 4, 2, 1):
            for i in range(st):
                A(f"v_add_f32 v{m+i}, v{m+i}, v{m+st+i}")
        for i in range(32):
            A(f"v_cvt_pk_bf16_f32 v{SP+i}, v{SP+i}, v{SP+i}")
        xreduce(m, m + 1, "v_add_f32")
        A(f"""
        s_lshl_b32 s3, s{WV}, 2
        s_add_u32 s3, s3, {L_ML}
        v_lshl_add_u32 v{m+2}, v{VR}, 5, s3
        ds_write_b32 v{m+2}, v{MREG}
        ds_write_b32 v{m+2}, v{m} offset:128
        """)

    def vprep(j):
        x = XY + 2 * (j % 2)
        A(f"v_and_b32 v{x}, v{MX}, v{SP+j}")
        A(f"v_and_b32 v{x+1}, v{MY}, v{SP+j}")
    def vload(j):
        x = XY + 2 * (j % 2); r = ring(j)
        for eh in range(2):
            o = OA + 4 * eh
            c = "0" if j == 0 else f"v[{o}:{o+3}]"
            A(f"v_mfma_f32_16x16x16_bf16 v[{o}:{o+3}], v[{r+2*eh}:{r+2*eh+1}], v[{x}:{x+1}], {c}")

    qstep = [0]
    def nbig(): return sum(1 for n in issued if isbig(n))
    def next_work(force=False):
        if "GT" not in done and "B2" in arrived: return "GT"
        if "QC" not in done:
            return "QC" if "Q" in arrived else None
        if "QB" not in done:
            return "QB" if (force or nbig() >= qstep[0] + qdelay) else None
        for t in range(8):
            if f"KT{t}" not in done:
                return f"KT{t}" if f"K{4*t+3}" in arrived else None
        for w in ("SM1", "SM2", "SM3"):
            if w not in done: return w
        if "HC" not in done and "H" in arrived: return "HC"
        for j in range(32):
            if f"VL{j}" not in done:
                return f"VL{j}" if f"V{j}" in arrived else None
        return None
    def run(w):
        if w[:2] in P["skip"].split(","):
            if w == "QC": qstep[0] = nbig()
        elif w == "GT": gate()
        elif w == "QC": qcomb(); qstep[0] = nbig()
        elif w == "QB": qbar()
        elif w == "HC": hcomb()
        elif w[:2] == "KT": ktile(int(w[2:]))
        elif w == "SM1": softmax1()
        elif w == "SM2": softmax2()
        elif w == "SM3": softmax3()
        elif w[:2] == "VL":
            j = int(w[2:]); vprep(j); vload(j)
        done.add(w)

    while pos < len(stream):
        nm = stream[pos]
        if isbig(nm):
            prev = [n for n in stream[:pos] if isbig(n)]
            if len(prev) >= N: wait(prev[-N])
        if nm[0] == "V":
            j = int(nm[1:])
            while f"KT{j//4}" not in done:
                w = next_work(force=True)
                assert w is not None, "stream stalls on K processing"
                run(w)
        issue(nm); pos += 1
        if pos < len(stream) and not isbig(stream[pos]): continue
        w = next_work()
        if w:
            run(w)
            while w and w[:2] == "VL":
                w = next_work()
                if w and w[:2] == "VL": run(w)
    while True:
        w = next_work()
        if not w: break
        run(w)
    assert {"SM3", "HC", "GT"} <= done and "W2b" in arrived
    stamp("allissued")
    m = TT
    WF = QF; AF = XG
    GF, BI = QF + 8, QF + 9
    VOPW, VOPR, VOGS, VOGL, VPGS, VPGL, VLSE, VOUT = 26, 27, 28, 29, 30, 31, VQA, VHA
    VPFW, VPFR = VW2A, VW1A
    A(f"""
    s_waitcnt lgkmcnt(0)
    s_barrier
    v_lshlrev_b32 v{T0}, 5, v{VR}
    v_add_u32 v{T0}, {L_ML}, v{T0}
    ds_read_b128 v[{m}:{m+3}], v{T0}
    ds_read_b128 v[{m+4}:{m+7}], v{T0} offset:16
    ds_read_b128 v[{m+8}:{m+11}], v{T0} offset:128
    ds_read_b128 v[{m+12}:{m+15}], v{T0} offset:144
    ds_read_b128 v[{AF}:{AF+3}], v{VAF} offset:{L_HC - L_QC}
    ds_read_b128 v[{AF+4}:{AF+7}], v{VAF} offset:{L_HC - L_QC + 64}
    """)
    for u in range(2):
        for hf in range(2):
            A(f"ds_read_b64_tr_b16 v[{WF+4*u+2*hf}:{WF+4*u+2*hf+1}], v{VTRW2} offset:{L_W2 + u*8192 + hf*1024}")
    M = T0 + 1
    A(f"""
    v_and_b32 v{T0}, 1, v{VS}
    v_lshlrev_b32 v{T0}, 1, v{T0}
    v_lshrrev_b32 v{BI}, 1, v{VS}
    v_or_b32 v{BI}, v{BI}, v{T0}
    s_lshr_b32 s3, s{RR}, 4
    s_lshl_b32 s3, s3, 2
    v_add_u32 v{BI}, s3, v{BI}
    v_lshlrev_b32 v{T0}, 2, v{BI}
    v_add_u32 v{T0}, {L_GT}, v{T0}
    ds_read_b32 v{GF}, v{T0}
    s_waitcnt lgkmcnt(0)
    v_mfma_f32_16x16x32_bf16 v[{D2}:{D2+3}], v[{AF}:{AF+3}], v[{WF}:{WF+3}], 0
    v_mfma_f32_16x16x32_bf16 v[{D2}:{D2+3}], v[{AF+4}:{AF+7}], v[{WF+4}:{WF+7}], v[{D2}:{D2+3}]
    v_max3_f32 v{M}, v{m}, v{m+1}, v{m+2}
    v_max3_f32 v{M}, v{M}, v{m+3}, v{m+4}
    v_max3_f32 v{M}, v{M}, v{m+5}, v{m+6}
    v_max_f32 v{M}, v{M}, v{m+7}
    """)
    for w in range(8):
        A(f"v_sub_f32 v{m+w}, v{m+w}, v{M}")
    A(f"v_sub_f32 v{FAC}, v{MREG}, v{M}")
    for w in range(8):
        A(f"v_exp_f32 v{m+w}, v{m+w}")
    A(f"v_exp_f32 v{FAC}, v{FAC}")
    A(f"v_mul_f32 v{m}, v{m}, v{m+8}")
    for w in range(1, 8):
        A(f"v_fmac_f32 v{m}, v{m+w}, v{m+8+w}")
    A(f"""
    v_rcp_f32 v{m+1}, v{m}
    v_log_f32 v{m+2}, v{m}
    v_mul_f32 v{FAC}, v{FAC}, v{m+1}
    v_add_f32 v{m+2}, v{m+2}, v{M}
    v_lshlrev_b32 v{m+3}, 2, v{VR}
    v_add_u32 v{m+3}, {L_LSE}, v{m+3}
    ds_write_b32 v{m+3}, v{m+2}
    v_sub_f32 v{GF}, 1.0, v{GF}
    v_lshlrev_b32 v{B2}, 16, v{B2}
    v_mul_f32 v{B2}, v{B2}, v{GF}
    s_lshl_b32 s3, s{WV}, 11
    s_add_u32 s3, s3, {L_OP}
    v_add_u32 v{VOPW}, s3, v{VLIN}
    s_lshr_b32 s3, s{WV}, 1
    s_lshl_b32 s28, s3, 6
    s_lshl_b32 s3, s3, 2
    s_add_u32 s3, s3, {L_LSE}
    v_mov_b32 v{VLSE}, s3
    s_and_b32 s3, s{WV}, 1
    s_lshl_b32 s3, s3, 9
    s_add_u32 s3, s3, s28
    s_add_u32 s3, s3, {L_OP}
    v_lshl_add_u32 v{VOPR}, v{VC}, 4, s3
    v_lshl_add_u32 v{VOPR}, v{VR}, 12, v{VOPR}
    v_lshrrev_b32 v{m}, 1, v{VS}
    v_lshl_add_u32 v{VOPR}, v{m}, 8, v{VOPR}
    v_and_b32 v{m}, 1, v{VS}
    v_lshl_add_u32 v{VOPR}, v{m}, 10, v{VOPR}
    s_lshl_b32 s3, s{KG}, 13
    s_add_u32 s3, s3, {WS_OG}
    v_add_u32 v{VOGL}, s3, v{VHA}
    s_lshl_b32 s3, s{XI}, 3
    s_add_u32 s3, s3, s{WV}
    s_lshl_b32 s3, s3, 13
    s_lshl_b32 s28, s{RR}, 8
    s_add_u32 s3, s3, s28
    s_add_u32 s3, s3, {WS_OG}
    v_lshl_add_u32 v{VOGS}, v{VC}, 4, s3
    v_lshl_add_u32 v{VOGS}, v{VS}, 6, v{VOGS}
    s_lshl_b32 s3, s{SS}, 3
    s_add_u32 s3, s3, s{WV}
    s_lshl_b32 s3, s3, 9
    s_mul_i32 s28, s{KG}, {PGS}
    s_add_u32 s3, s3, s28
    s_add_u32 s3, s3, {WS_PG}
    v_add_u32 v{VPGS}, s3, v{VLIN}
    s_lshl_b32 s3, s{XI}, 2
    s_bfe_u32 s28, s{RR}, 0x20002
    s_add_u32 s3, s3, s28
    s_lshl_b32 s3, s3, 9
    s_lshr_b32 s28, s{RR}, 4
    s_lshl_b32 s28, s28, 8
    s_add_u32 s3, s3, s28
    s_lshl_b32 s28, s{SS}, 6
    s_add_u32 s3, s3, s28
    s_mul_i32 s28, s{WV}, {PGS}
    s_add_u32 s3, s3, s28
    s_add_u32 s3, s3, {WS_PG}
    v_bfe_u32 v{m+1}, v{LANE}, 2, 3
    v_mul_u32_u24 v{m+1}, {8*PGS}, v{m+1}
    v_lshl_add_u32 v{VPGL}, v{VC}, 4, s3
    v_add_u32 v{VPGL}, v{VPGL}, v{m+1}
    s_lshl_b32 s3, s{WV}, 9
    s_add_u32 s3, s3, {L_PF}
    v_add_u32 v{VPFW}, s3, v{VLIN}
    v_add_u32 v{VPFR}, {L_PF}, v{VLIN}
    s_and_b32 s3, s{RR}, 15
    s_lshl_b32 s28, s{XI}, 4
    s_add_u32 s3, s3, s28
    s_lshl_b32 s3, s3, 3
    v_lshl_add_u32 v{VOUT}, v{VC}, 1, s3
    v_lshl_add_u32 v{VOUT}, v{BI}, 10, v{VOUT}
    v_mov_b32 v{TT+3}, s{TAG}
    """)
    for j in range(32):
        if f"VL{j}" not in done:
            vprep(j); wait(f"V{j}"); vload(j); done.add(f"VL{j}")
    stamp("vdone")
    for i in range(8):
        A(f"v_mul_f32 v{OA+i}, v{OA+i}, v{FAC}")
    R0 = SP
    wo_in = "WOb" in arrived
    A(f"""
    ds_write_b128 v{VOPW}, v[{OA}:{OA+3}]
    ds_write_b128 v{VOPW}, v[{OA+4}:{OA+7}] offset:1024
    s_waitcnt lgkmcnt(0)
    s_barrier
    ds_read_b128 v[{R0}:{R0+3}], v{VOPR}
    ds_read_b128 v[{R0+4}:{R0+7}], v{VOPR} offset:2048
    ds_read_b32 v{TT+2}, v{VLSE}
    s_cmp_eq_u32 s{LOCAL}, 0
    s_waitcnt lgkmcnt(1)
    """)
    for r in range(4):
        A(f"v_add_f32 v{R0+r}, v{R0+r}, v{R0+4+r}")
    for ror in (4, 8):
        for r in range(4):
            A(f"v_add_f32_dpp v{R0+r}, v{R0+r}, v{R0+r} row_ror:{ror} {dpp}")
    A(f"""
    v_cvt_pk_bf16_f32 v{TT}, v{R0}, v{R0+1}
    v_cvt_pk_bf16_f32 v{TT+1}, v{R0+2}, v{R0+3}
    s_mov_b32 exec_lo, 0x000f000f
    s_mov_b32 exec_hi, 0x000f000f
    s_waitcnt lgkmcnt(0)
    s_cbranch_scc0 L_og_glob
    """)
    A.optional(f"global_store_dwordx4 v{VOGS}, v[{TT}:{TT+3}], s[30:31]")
    A("L_og_done:")
    A("s_mov_b64 exec, -1")
    stamp("ogpub")
    A.optional(f"global_load_dwordx4 v[{G}:{G+3}], v{VOGL}, s[30:31] sc1")
    if not wo_in:
        A(f"""
        s_waitcnt vmcnt(2)
        s_barrier
        """)
    for u in range(2):
        for hf in range(2):
            A(f"ds_read_b64_tr_b16 v[{WF+4*u+2*hf}:{WF+4*u+2*hf+1}], v{VTRWO} offset:{L_WO + u*8192 + hf*256}")
    C = TT + 8
    A(f"""
    s_mov_b32 s{CNT}, {spin}
    s_waitcnt vmcnt(0)
    L_o_chk:
    v_cmp_ne_u32 vcc, s{TAG}, v{G+3}
    s_cbranch_vccz L_o_ok
    s_sub_u32 s{CNT}, s{CNT}, 1
    s_cbranch_scc1 L_o_ok
    s_mov_b64 exec, vcc
    """)
    A.optional(f"global_load_dwordx4 v[{G}:{G+3}], v{VOGL}, s[30:31] sc1")
    A(f"""
    s_mov_b64 exec, -1
    s_waitcnt vmcnt(0)
    s_branch L_o_chk
    L_og_glob:
    """)
    A.optional(f"global_store_dwordx4 v{VOGS}, v[{TT}:{TT+3}], s[30:31] sc1")
    A(f"""
    s_branch L_og_done
    L_o_ok:
    """)
    stamp("ogot")
    A(f"""
    v_max_f32_dpp v{C}, v{G+2}, v{G+2} row_ror:4 {dpp}
    v_lshlrev_b32 v{C+4}, 16, v{G}
    v_and_b32 v{C+5}, 0xffff0000, v{G}
    v_max_f32_dpp v{C+1}, v{C}, v{C} row_ror:8 {dpp}
    v_lshlrev_b32 v{C+6}, 16, v{G+1}
    v_sub_f32 v{C+1}, v{G+2}, v{C+1}
    v_exp_f32 v{C+1}, v{C+1}
    v_and_b32 v{C+7}, 0xffff0000, v{G+1}
    v_mul_f32 v{C+4}, v{C+4}, v{C+1}
    v_mul_f32 v{C+5}, v{C+5}, v{C+1}
    v_add_f32_dpp v{C}, v{C+1}, v{C+1} row_ror:4 {dpp}
    v_mul_f32 v{C+6}, v{C+6}, v{C+1}
    v_mul_f32 v{C+7}, v{C+7}, v{C+1}
    v_add_f32_dpp v{C+2}, v{C}, v{C} row_ror:8 {dpp}
    v_add_f32_dpp v{C+4}, v{C+4}, v{C+4} row_ror:4 {dpp}
    v_rcp_f32 v{C+2}, v{C+2}
    v_add_f32_dpp v{C+5}, v{C+5}, v{C+5} row_ror:4 {dpp}
    v_add_f32_dpp v{C+6}, v{C+6}, v{C+6} row_ror:4 {dpp}
    v_add_f32_dpp v{C+7}, v{C+7}, v{C+7} row_ror:4 {dpp}
    v_mul_f32 v{C+2}, v{C+2}, v{GV}
    v_add_f32_dpp v{C+4}, v{C+4}, v{C+4} row_ror:8 {dpp}
    v_add_f32_dpp v{C+5}, v{C+5}, v{C+5} row_ror:8 {dpp}
    v_add_f32_dpp v{C+6}, v{C+6}, v{C+6} row_ror:8 {dpp}
    v_add_f32_dpp v{C+7}, v{C+7}, v{C+7} row_ror:8 {dpp}
    v_mul_f32 v{C+4}, v{C+4}, v{C+2}
    v_mul_f32 v{C+5}, v{C+5}, v{C+2}
    v_mul_f32 v{C+6}, v{C+6}, v{C+2}
    v_mul_f32 v{C+7}, v{C+7}, v{C+2}
    v_cvt_pk_bf16_f32 v{C}, v{C+4}, v{C+5}
    v_cvt_pk_bf16_f32 v{C+1}, v{C+6}, v{C+7}
    ds_write_b64 v{VCW}, v[{C}:{C+1}] offset:{L_OC - L_QC}
    s_waitcnt lgkmcnt(0)
    s_barrier
    ds_read_b128 v[{R0}:{R0+3}], v{VAF} offset:{L_OC - L_QC}
    ds_read_b128 v[{R0+4}:{R0+7}], v{VAF} offset:{L_OC - L_QC + 64}
    s_waitcnt lgkmcnt(1)
    v_mfma_f32_16x16x32_bf16 v[{D2}:{D2+3}], v[{R0}:{R0+3}], v[{WF}:{WF+3}], v[{D2}:{D2+3}]
    s_waitcnt lgkmcnt(0)
    v_mfma_f32_16x16x32_bf16 v[{D2}:{D2+3}], v[{R0+4}:{R0+7}], v[{WF+4}:{WF+7}], v[{D2}:{D2+3}]
    s_mov_b32 exec_hi, 0
    """)
    for r in range(4):
        A(f"v_and_or_b32 v{D2+r}, v{D2+r}, s{SMASK}, v{TB+r}")
    A.optional(f"global_store_dwordx4 v{VPGS}, v[{D2}:{D2+3}], s[30:31] sc1")
    stamp("pgpub")
    PP = SP + 8
    if P["ackwait"]: A("s_waitcnt vmcnt(0)")
    A.optional(f"global_load_dwordx4 v[{G}:{G+3}], v{VPGL}, s[30:31] sc1")
    A(f"""
    s_mov_b32 s{CNT}, {spin}
    s_waitcnt vmcnt(0)
    """)
    stamp("pg1")
    A(f"""
    L_p_chk:
    v_perm_b32 v{C}, v{G+1}, v{G}, s{SEL1}
    v_perm_b32 v{C+1}, v{G+3}, v{G+2}, s{SEL1}
    v_perm_b32 v{C}, v{C+1}, v{C}, s{SEL2}
    v_cmp_ne_u32 vcc, s{TAG}, v{C}
    s_cbranch_vccz L_p_ok
    s_sub_u32 s{CNT}, s{CNT}, 1
    s_cbranch_scc1 L_p_ok
    s_mov_b64 exec, vcc
    """)
    if sleep: A(f"s_sleep {sleep}")
    A.optional(f"global_load_dwordx4 v[{G}:{G+3}], v{VPGL}, s[30:31] sc1")
    A(f"""
    s_mov_b32 exec_lo, -1
    s_waitcnt vmcnt(0)
    s_branch L_p_chk
    L_p_ok:
    """)
    stamp("pgot")
    for r in range(4):
        A(f"v_and_b32 v{G+r}, s{SMASK}, v{G+r}")
    A(f"""
    ds_write_b128 v{VPFW}, v[{G}:{G+3}]
    s_mov_b64 exec, -1
    s_waitcnt lgkmcnt(0)
    s_barrier
    s_cmp_lg_u32 s{WV}, 0
    s_cbranch_scc1 L_end
    """)
    stamp("pbar")
    for i in range(4):
        A(f"ds_read_b128 v[{PP+4*i}:{PP+4*i+3}], v{VPFR} offset:{i*1024}")
    A("s_waitcnt lgkmcnt(0)")
    for (a, b) in ((0, 1), (2, 3), (0, 2)):
        for r in range(4):
            A(f"v_add_f32 v{PP+4*a+r}, v{PP+4*a+r}, v{PP+4*b+r}")
    A(f"""
    v_permlane32_swap_b32 v{PP}, v{PP+1}
    v_permlane32_swap_b32 v{PP+2}, v{PP+3}
    v_add_f32 v{PP}, v{PP}, v{PP+1}
    v_add_f32 v{PP+2}, v{PP+2}, v{PP+3}
    v_permlane16_swap_b32 v{PP}, v{PP+2}
    v_add_f32 v{PP}, v{PP}, v{PP+2}
    v_add_f32_dpp v{PP}, v{PP}, v{PP} row_ror:4 {dpp}
    v_add_f32_dpp v{PP}, v{PP}, v{PP} row_ror:8 {dpp}
    v_add_f32 v{PP}, v{PP}, v{B2}
    v_cvt_pk_bf16_f32 v{PP}, v{PP}, v{PP}
    s_mov_b32 exec_lo, 0x000f000f
    s_mov_b32 exec_hi, 0x000f000f
    """)
    A.optional(f"global_store_short v{VOUT}, v{PP}, s[26:27]")
    A(f"""
    s_mov_b64 exec, 1
    s_cmp_lg_u32 s2, 0
    s_cbranch_scc1 L_noep
    v_mov_b32 v{C}, 0
    v_mov_b32 v{C+1}, s{TAG}
    """)
    A.optional(f"global_store_dword v{C}, v{C+1}, s[30:31] sc1")
    A("L_noep:")
    if stamps:
        stamp("outst")
        A("s_waitcnt vmcnt(0)")
        stamp("end")
        n = len(stnames)
        A(f"""
        s_waitcnt lgkmcnt(0)
        s_mul_i32 s3, s2, {8*n}
        s_add_u32 s3, s3, {WS_STAMP}
        v_mov_b32 v{C}, s3
        """)
        for k in range(n):
            A(f"v_mov_b32 v{C+2}, s{STREGS[k]}")
            A(f"v_mov_b32 v{C+3}, s{STREGS[k]+1}")
            A.optional(f"global_store_dwordx2 v{C}, v[{C+2}:{C+3}], s[30:31] offset:{8*k}")
            A("s_nop 1")
        if P["probe"]:
            k = stnames.index(P["probe"])
            A(f"""
            s_add_u32 s14, s{STREGS[k]}, 10000
            L_probe:
            s_sleep 4
            s_memrealtime s[4:5]
            s_waitcnt lgkmcnt(0)
            s_sub_u32 s3, s4, s14
            s_cmp_lt_i32 s3, 0
            s_cbranch_scc1 L_probe
            """)
    A.raw("L_end:")
    A.raw("  s_endpgm")
    A.raw('.section .rodata,"a"')
    A.raw(".p2align 6")
    A.raw(f".amdhsa_kernel {NAME}_kernel")
    A.raw("  .amdhsa_next_free_vgpr 256")
    A.raw("  .amdhsa_next_free_sgpr 102")
    A.raw("  .amdhsa_accum_offset 256")
    A.raw("  .amdhsa_group_segment_fixed_size 0")
    A.raw("  .amdhsa_kernarg_size 112")
    A.raw("  .amdhsa_user_sgpr_count 2")
    A.raw("  .amdhsa_user_sgpr_kernarg_segment_ptr 1")
    A.raw("  .amdhsa_system_sgpr_workgroup_id_x 1")
    A.raw(".end_amdhsa_kernel")
    return A.text(), stnames

if __name__ == "__main__":
    out = f"cdna_kernels/{NAME}.s"
    kw = {}
    for a in sys.argv[1:]:
        k, v = a.split("=", 1)
        if k == "o": out = v
        elif k == "stamps": kw[k] = v.split(",")
        elif isinstance(DEF[k], bool): kw[k] = bool(int(v))
        elif isinstance(DEF[k], int): kw[k] = int(v)
        else: kw[k] = v
    t, n = gen(**kw)
    open(out, "w").write(t)
    print("wrote", out, "stamps", len(n), n)
```

```python
import sys, argparse, struct, math
sys.path.insert(0, "tools")
from asmlib import Asm
NAME = "gated_mix__gqa_block_cached__dense_activation_gelu__decode"
HDR = open("cdna_kernels/%s.s.ref" % NAME).read().split("; Override")[0]

def f2u(x): return struct.unpack("<I", struct.pack("<f", x))[0]
LOG2E = 1.4426950408889634

WS_ID = 0x1000
WS_HG = 0x40000
WS_QG = 0x80000
WS_OG = 0x100000
WS_PG = 0x200000
WS_STAMP = 0x8000000
L_WQ = 0
L_W1 = 16384
L_WO = 32768
L_W2 = 49152
L_OP = 65536
L_X = 81920
L_QC = 83968
L_HC = L_QC + 1024
L_OC = L_QC + 2048
L_ML = L_QC + 3072
L_GT = L_ML + 256
L_LSE = L_GT + 32
L_LF = L_LSE + 32
L_PF = L_LF + 32
L_END = L_PF + 4096

DEF = dict(N=3, N0=3, idpos=8, hpos=4, gpos=6, qpos=18, qdelay=3, vpos=8, stamps=None, kflag="nt", vflag="nt", wflag="nt",
           spin=20000, sleep=2, dbg=False, probe=None, p0bar=True, pgpad=256, skip="", wopos=32, local=True, ackwait=True, allwaves=False, prio=0, sync="", kburst=4, middelay=3, nring=32, Nend=6, endpos=52, alo=0, adelta=290, at0=30, boost=0, pdelay=0, osleep=0, rot=0, cntst=False, qst="sc1", pgst="sc1", hst="sc1", pspin=0, pgdelay=0)

def gen(**kw):
    P = dict(DEF); P.update(kw)
    N, N0, hpos, gpos, qpos, qdelay, vpos = (P[k] for k in ("N", "N0", "hpos", "gpos", "qpos", "qdelay", "vpos"))
    stamps, kflag, vflag, wflag, spin, sleep = (P[k] for k in ("stamps", "kflag", "vflag", "wflag", "spin", "sleep"))
    PGS = 16384 + P["pgpad"]
    A = Asm()
    stnames = []
    STREGS = [90, 92, 94, 96, 98, 100, 6, 8, 10, 12, 16, 18]
    def stamp(nm):
        if stamps and nm in stamps:
            r = STREGS[len(stnames)]
            stnames.append(nm)
            A(f"s_memrealtime s[{r}:{r+1}]")
    LANE, VLIN, VKP, MX, MY, VC, VR, VS = 1, 2, 3, 4, 5, 6, 7, 8
    TB = 9; GV = 13; FAC = 14; MREG = 15
    QF = 16
    CM = 20
    YA = 24
    KD = 28
    SP = 36
    OA = 44; D2 = 52; G = 56; XY = 60
    TT = 64
    WF = 96
    VQA, VHA, VW2A, VWOA, VW1A, VTRP, VXA, VPERM, VCW, VAF, VTRWO, VTRW2, B2, VQP, VQT = range(104, 119)
    T0 = 119
    B1 = 122
    XG = TT + 16
    VOPW, VOPR, VOGS, VOGL = 124, 125, 126, 127
    VPGS, VPGL, VLSE, VOUT, VPFW, VPFR = VTRP, VXA, VPERM, VQP, VQT, VW1A
    RING = 128
    NR = P["nring"]
    def ring(i): return RING + (i % NR) * 4
    WV, XI, RR, BB, SS, TAG, KG, FG, FP, HTAG, SMASK, ST = 32, 33, 34, 35, 36, 37, 38, 39, 40, 41, 42, 43
    SK, SV, SWQ, SW1, SWO, SW2, SHS, SHL, SB1 = 44, 48, 52, 56, 60, 64, 68, 72, 76
    SOFF, SC = 88, 89
    XCC2, LOCAL = 83, 82
    SEL1, SEL2 = 14, 15
    CNT = 3
    dpp = "row_mask:0xf bank_mask:0xf"

    A.raw(HDR.rstrip("\n"))
    A.raw(f"; @launch grid=(256,1,1) block=(512,1,1) lds={L_END}")
    A.raw('.amdgcn_target "amdgcn-amd-amdhsa--gfx950"')
    A.raw(".text")
    A.raw(f".globl {NAME}_kernel")
    A.raw(".p2align 8")
    A.raw(f".type {NAME}_kernel,@function")
    A.raw(f"{NAME}_kernel:")
    stamp("entry")
    A(f"""
    s_cmp_ge_u32 s2, 256
    s_cbranch_scc1 L_end
    s_load_dwordx16 s[4:19], s[0:1], 0
    s_load_dwordx8 s[20:27], s[0:1], 64
    s_load_dwordx4 s[28:31], s[0:1], 96
    v_lshrrev_b32 v{T0}, 6, v0
    v_and_b32 v{LANE}, 63, v0
    s_and_b32 s{XI}, s2, 7
    v_readfirstlane_b32 s{WV}, v{T0}
    s_lshr_b32 s{RR}, s2, 3
    s_lshr_b32 s{BB}, s{RR}, 2
    s_and_b32 s{SS}, s{RR}, 3
    v_lshlrev_b32 v{VLIN}, 4, v{LANE}
    v_and_b32 v{VC}, 3, v{LANE}
    v_bfe_u32 v{VR}, v{LANE}, 2, 2
    v_lshrrev_b32 v{VS}, 4, v{LANE}
    v_lshlrev_b32 v{VKP}, 4, v{VC}
    v_lshl_add_u32 v{VKP}, v{VR}, 8, v{VKP}
    v_lshl_add_u32 v{VKP}, v{VS}, 6, v{VKP}
    s_lshl_b32 s{ST}, s{BB}, 3
    s_add_u32 s{ST}, s{ST}, s{XI}
    s_lshl_b32 s{ST}, s{ST}, 2
    s_add_u32 s{ST}, s{ST}, s{SS}
    s_lshl_b32 s{ST}, s{ST}, 18
    s_lshl_b32 s3, s{WV}, 4
    v_lshrrev_b32 v{T0}, 3, v{LANE}
    v_add_u32 v{T0}, s3, v{T0}
    v_and_b32 v{T0+1}, 1, v{VS}
    v_lshlrev_b32 v{T0+1}, 1, v{T0+1}
    v_and_b32 v{T0+2}, 7, v{LANE}
    v_xor_b32 v{T0+1}, v{T0+1}, v{T0+2}
    v_lshlrev_b32 v{T0+1}, 4, v{T0+1}
    v_mul_u32_u24 v{VW1A}, 3584, v{T0}
    v_add_u32 v{VW1A}, v{VW1A}, v{T0+1}
    v_lshl_add_u32 v{G}, v{T0}, 13, v{T0+1}
    v_xor_b32 v{G+1}, 64, v{G}
    s_lshl_b32 s3, s{WV}, 12
    s_lshl_b32 s{SMASK}, s{SS}, 8
    s_add_u32 s3, s3, s{SMASK}
    v_and_b32 v{T0}, 15, v{LANE}
    v_lshl_add_u32 v{G+2}, v{T0}, 4, s3
    v_lshl_add_u32 v{G+2}, v{VS}, 10, v{G+2}
    s_lshl_b32 s{KG}, s{SS}, 20
    s_lshl_b32 s3, s{XI}, 10
    s_add_u32 s{KG}, s{KG}, s3
    s_lshl_b32 s3, s{BB}, 7
    s_add_u32 s{KG}, s{KG}, s3
    s_lshl_b32 s{SOFF}, s{WV}, 12
    s_mov_b32 s{SK+3}, 0x20000
    s_mov_b32 s{SWQ+3}, 0x20000
    s_mov_b32 s{SK+2}, 0x40000
    s_sub_u32 s{SWQ+2}, 0x400000, s{KG}
    s_lshl_b32 s3, s{WV}, 10
    s_add_u32 m0, s3, {L_X}
    s_mov_b32 s{FG}, 0x10000
    s_cmp_gt_u32 s{WV}, 1
    s_waitcnt lgkmcnt(0)
    s_load_dword s{TAG}, s[30:31], 0
    s_cbranch_scc1 L_nox
    """)
    A.optional(f"global_load_lds_dwordx4 v{G+2}, s[4:5]")
    A(f"""
    L_nox:
    s_lshl_b32 m0, s{WV}, 11
    s_add_u32 s{SWQ}, s10, s{KG}
    s_addc_u32 s{SWQ+1}, s11, 0
    """)
    stamp("karg")
    A(f"buffer_load_dwordx4 v{G}, s[{SWQ}:{SWQ+3}], 0 offen {wflag} lds", "wq0")
    A(f"s_add_u32 m0, m0, 1024")
    A(f"s_add_u32 s{SK}, s6, s{ST}")
    A(f"buffer_load_dwordx4 v{G+1}, s[{SWQ}:{SWQ+3}], s{FG} offen {wflag} lds", "wq1")
    A(f"s_addc_u32 s{SK+1}, s7, 0")

    stream = []
    for i in range(32):
        if i == P["idpos"]: stream += ["ID"]
        if i == hpos: stream += ["W10", "W11"]
        if i == gpos: stream += ["XG", "GW", "B1", "B2"]
        if i == qpos: stream += ["I2", "Q"]
        stream.append(f"K{i}")
    for j in range(32):
        if j == vpos: stream += ["W2a", "W2b", "H"]
        if j == P["wopos"]: stream += ["WOa", "WOb"]
        stream.append(f"V{j}")
    if P["wopos"] >= 32: stream += ["WOa", "WOb"]
    done = set(); arrived = set(); issued = []
    isbig = lambda n: n[0] in "KV" or n[:2] == "WO"

    def tcode(t):
        m = {0: 0, 1: ((t & 1) << 1) | ((t >> 1) & 1) | (t & 4), 2: (t & 1) << 1, 3: t}[P["rot"]]
        return (t << 15) | (m << 12)
    def slot_free(i):
        return (f"KL{i}" if i < 32 else f"VL{i-32}") in done
    def issue(nm):
        if "L" + nm[:2] in P["skip"].split(","):
            arrived.add(nm)
        elif nm[0] == "K":
            i = int(nm[1:]); r = ring(i)
            A(f"buffer_load_dwordx4 v[{r}:{r+3}], v{VKP}, s[{SK}:{SK+3}], s{SOFF} offen offset:{(i%4)*1024} {kflag}", nm)
            if i % 4 == 3: A(f"s_xor_b32 s{SOFF}, s{SOFF}, {tcode(i//4) ^ tcode((i//4+1) % 8)}")
        elif nm[0] == "V":
            j = int(nm[1:]); r = ring(32 + j)
            assert 32 + j - NR < 0 or slot_free(32 + j - NR), nm
            A(f"buffer_load_dwordx4 v[{r}:{r+3}], v{VLIN}, s[{SV}:{SV+3}], s{SOFF} offen offset:{(j%4)*1024} {vflag}", nm)
            if j % 4 == 3 and j != 31: A(f"s_xor_b32 s{SOFF}, s{SOFF}, {tcode(j//4) ^ tcode(j//4+1)}")
        elif nm == "W10":
            A(f"s_lshl_b32 s3, s{WV}, 11")
            A(f"s_add_u32 m0, s3, {L_W1}")
            A(f"buffer_load_dwordx4 v{VW1A}, s[{SW1}:{SW1+3}], 0 offen {wflag} lds", nm)
        elif nm == "W11":
            A(f"s_add_u32 m0, m0, 1024")
            A(f"v_xor_b32 v{VW1A}, 64, v{VW1A}")
            A(f"s_movk_i32 s3, {8*3584}")
            A(f"buffer_load_dwordx4 v{VW1A}, s[{SW1}:{SW1+3}], s3 offen {wflag} lds", nm)
        elif nm == "XG":
            A(f"s_lshl_b32 s3, s{WV}, 10")
            A(f"v_add_u32 v{T0}, s3, v{VLIN}")
            A(f"global_load_dwordx4 v[{XG}:{XG+3}], v{T0}, s[4:5]", nm)
        elif nm == "GW":
            A(f"global_load_dwordx4 v[{XG+4}:{XG+7}], v{VLIN}, s[24:25]", nm)
        elif nm == "B1":
            A(f"v_lshlrev_b32 v{T0}, 3, v{VC}")
            A(f"v_lshl_add_u32 v{T0}, v{VS}, 5, v{T0}")
            A(f"buffer_load_dwordx2 v[{B1}:{B1+1}], v{T0}, s[{SB1}:{SB1+3}], 0 offen", nm)
        elif nm == "B2":
            A(f"""
            s_and_b32 s3, s{RR}, 15
            s_lshl_b32 s28, s{XI}, 4
            s_add_u32 s3, s3, s28
            s_lshl_b32 s3, s3, 3
            v_lshl_add_u32 v{T0}, v{VC}, 1, s3
            """)
            A(f"global_load_ushort v{B2}, v{T0}, s[22:23]", nm)
        elif nm == "ID":
            A(f"global_load_dword v{YA}, v{VQT}, s[30:31] sc1", nm)
        elif nm == "I2":
            assert "PS" in done
            A(f"global_load_dword v{YA}, v{VQT}, s[30:31] sc1", nm)
        elif nm == "Q":
            A(f"global_load_dwordx4 v[{G}:{G+3}], v{VQA}, s[30:31] sc1", nm)
        elif nm == "W2a":
            A(f"s_lshl_b32 s3, s{WV}, 11")
            A(f"s_add_u32 m0, s3, {L_W2}")
            A(f"buffer_load_dwordx4 v{VW2A}, s[{SW2}:{SW2+3}], 0 offen {wflag} lds", nm)
        elif nm == "W2b":
            A(f"s_add_u32 m0, m0, 1024")
            A(f"s_movk_i32 s3, 4096")
            A(f"buffer_load_dwordx4 v{VW2A}, s[{SW2}:{SW2+3}], s3 offen {wflag} lds", nm)
        elif nm == "H":
            assert "QC" in done
            A(f"buffer_load_dwordx4 v[{G}:{G+3}], v{VHA}, s[{SHL}:{SHL+3}], 0 offen sc1", nm)
        elif nm == "WOa":
            A(f"s_lshl_b32 s3, s{WV}, 11")
            A(f"s_add_u32 m0, s3, {L_WO}")
            A(f"buffer_load_dwordx4 v{VWOA}, s[{SWO}:{SWO+3}], 0 offen {wflag} lds", nm)
        elif nm == "WOb":
            A(f"s_add_u32 m0, m0, 1024")
            A(f"s_movk_i32 s3, 4096")
            A(f"buffer_load_dwordx4 v{VWOA}, s[{SWO}:{SWO+3}], s3 offen {wflag} lds", nm)
        issued.append(nm)

    def wait(nm):
        if nm in arrived: return
        A.wait_vm(nm)
        for x in issued[:issued.index(nm) + 1]: arrived.add(x)

    if P["p0bar"]: A("s_barrier")
    pos = 0
    while pos < N0:
        assert isbig(stream[pos])
        issue(stream[pos]); pos += 1
    stamp("kiss")
    A(f"""
    v_and_b32 v{T0}, 1, v{VS}
    v_lshrrev_b32 v{T0+1}, 1, v{VR}
    v_lshl_or_b32 v{T0+1}, v{T0}, 1, v{T0+1}
    s_and_b32 s{FP}, s{WV}, 3
    v_xor_b32 v{T0+1}, s{FP}, v{T0+1}
    v_lshlrev_b32 v{VTRP}, 3, v{VC}
    v_lshl_add_u32 v{VTRP}, v{T0+1}, 5, v{VTRP}
    v_lshl_add_u32 v{VTRP}, v{VR}, 7, v{VTRP}
    v_lshl_add_u32 v{VTRP}, v{VS}, 10, v{VTRP}
    v_and_b32 v{T0+2}, 7, v{LANE}
    v_lshlrev_b32 v{VXA}, 8, v{T0+2}
    v_lshl_add_u32 v{VXA}, v{VS}, 4, v{VXA}
    v_add_u32 v{VXA}, {L_X}, v{VXA}
    v_bfe_u32 v{TT}, v{LANE}, 2, 3
    v_lshl_add_u32 v{VPERM}, v{VC}, 4, v{TT}
    v_lshlrev_b32 v{VPERM}, 2, v{VPERM}
    s_lshl_b32 s3, s{XI}, 16
    s_lshl_b32 s{SMASK}, s{RR}, 8
    s_add_u32 s3, s3, s{SMASK}
    s_lshl_b32 s{SMASK}, s{FP}, 6
    s_add_u32 s3, s3, s{SMASK}
    s_add_u32 s3, s3, {WS_QG}
    v_lshl_add_u32 v{VQP}, v{VC}, 4, s3
    v_lshl_add_u32 v{VQP}, v{TT}, 13, v{VQP}
    s_mov_b32 s{SMASK}, 0xffffff00
    s_mov_b32 s{SEL1}, 0x0c0c0400
    s_mov_b32 s{SEL2}, 0x05040100
    s_waitcnt lgkmcnt(0)
    s_add_u32 s{TAG}, s{TAG}, 0x9e3779b9
    v_mov_b32 v{TB+3}, s{TAG}
    v_bfe_u32 v{TB}, v{TB+3}, 0, 8
    v_bfe_u32 v{TB+1}, v{TB+3}, 8, 8
    v_bfe_u32 v{TB+2}, v{TB+3}, 16, 8
    v_lshrrev_b32 v{TB+3}, 24, v{TB+3}
    """)
    SETUP2 = f"""
    ; A frag address: L_QC + (l&7)*128 + slab*16
    v_and_b32 v{T0+2}, 7, v{LANE}
    v_lshlrev_b32 v{VAF}, 7, v{T0+2}
    v_lshl_add_u32 v{VAF}, v{VS}, 4, v{VAF}
    v_add_u32 v{VAF}, {L_QC}, v{VAF}
    ; compact write address: L_QC + wv*128 + slab*32 + c*8
    s_lshl_b32 s3, s{WV}, 7
    s_add_u32 s3, s3, {L_QC}
    v_lshl_add_u32 v{VCW}, v{VC}, 3, s3
    v_lshl_add_u32 v{VCW}, v{VS}, 5, v{VCW}
    s_add_u32 s{SV}, s8, s{ST}
    s_addc_u32 s{SV+1}, s9, 0
    s_mov_b32 s{SV+2}, 0x40000
    s_mov_b32 s{SV+3}, 0x20000
    s_mov_b32 s{SW1+3}, 0x20000
    s_mov_b32 s{SWO+3}, 0x20000
    s_mov_b32 s{SW2+3}, 0x20000
    s_mov_b32 s{SHS+3}, 0x20000
    s_mov_b32 s{SHL+3}, 0x20000
    s_mov_b32 s{SB1+3}, 0x20000
    s_lshl_b32 s{FG}, s{BB}, 3
    s_add_u32 s{FG}, s{FG}, s{XI}
    s_lshl_b32 s{KG}, s{XI}, 3
    s_add_u32 s{KG}, s{KG}, s{BB}
    s_sub_u32 s{FP}, s{FG}, 32
    s_cmp_lt_u32 s{FP}, 28
    s_cselect_b32 s{FP}, s{FP}, 0
    s_cselect_b32 s{SW1+2}, {128*3584}, 0
    s_cselect_b32 s{SHS+2}, 8192, 0
    s_mul_i32 s3, s{SS}, {128*3584}
    s_lshl_b32 s28, s{FP}, 7
    s_add_u32 s3, s3, s28
    s_add_u32 s{SW1}, s16, s3
    s_addc_u32 s{SW1+1}, s17, 0
    s_lshl_b32 s3, s{FP}, 13
    s_add_u32 s3, s3, {WS_HG}
    s_add_u32 s{SHS}, s30, s3
    s_addc_u32 s{SHS+1}, s31, 0
    s_lshl_b32 s3, s{KG}, 16
    s_lshl_b32 s28, s{SS}, 8
    s_add_u32 s3, s3, s28
    s_add_u32 s{SWO}, s12, s3
    s_addc_u32 s{SWO+1}, s13, 0
    s_sub_u32 s{SWO+2}, 0x400000, s3
    s_cmp_lt_u32 s{FG}, 28
    s_cselect_b32 s{FG}, s{FG}, 0
    s_cselect_b32 s{SW2+2}, {63*1024+256}, 0
    s_cselect_b32 s{SHL+2}, 8192, 0
    s_cselect_b32 s{SB1+2}, 128, 0
    s_cselect_b32 s{HTAG}, s{TAG}, 0
    s_lshl_b32 s3, s{FG}, 16
    s_add_u32 s3, s3, s28
    s_add_u32 s{SW2}, s20, s3
    s_addc_u32 s{SW2+1}, s21, 0
    s_lshl_b32 s3, s{FG}, 13
    s_add_u32 s3, s3, {WS_HG}
    s_add_u32 s{SHL}, s30, s3
    s_addc_u32 s{SHL+1}, s31, 0
    s_lshl_b32 s3, s{FG}, 7
    s_add_u32 s{SB1}, s18, s3
    s_addc_u32 s{SB1+1}, s19, 0
    s_mov_b32 s{SC}, {hex(f2u(LOG2E * 128 ** -0.5))}
    v_and_b32 v{T0}, 1, v{LANE}
    v_lshlrev_b32 v{T0}, 4, v{T0}
    v_mov_b32 v{T0+1}, 0xffff
    v_lshlrev_b32 v{T0}, v{T0}, v{T0+1}
    v_bfe_i32 v{T0+1}, v{LANE}, 1, 1
    v_and_b32 v{MY}, v{T0}, v{T0+1}
    v_xor_b32 v{MX}, v{T0}, v{MY}
    v_mov_b32 v{T0}, s{SC}
    v_cmp_eq_u32 vcc, 0, v{VC}
    v_cndmask_b32 v{CM}, 0, v{T0}, vcc
    v_cmp_eq_u32 vcc, 1, v{VC}
    v_cndmask_b32 v{CM+1}, 0, v{T0}, vcc
    v_cmp_eq_u32 vcc, 2, v{VC}
    v_cndmask_b32 v{CM+2}, 0, v{T0}, vcc
    v_cmp_eq_u32 vcc, 3, v{VC}
    v_cndmask_b32 v{CM+3}, 0, v{T0}, vcc
    v_and_b32 v{T0}, 1, v{VS}
    v_lshl_or_b32 v{T0+1}, v{VR}, 1, v{T0}
    v_xor_b32 v{T0+1}, s{WV}, v{T0+1}
    v_lshlrev_b32 v{VTRWO}, 3, v{VC}
    v_lshl_add_u32 v{VTRWO}, v{T0+1}, 5, v{VTRWO}
    v_lshl_add_u32 v{VTRWO}, v{VR}, 11, v{VTRWO}
    v_lshl_add_u32 v{VTRWO}, v{VS}, 9, v{VTRWO}
    v_lshl_or_b32 v{T0+1}, v{T0}, 2, v{VR}
    v_xor_b32 v{T0+1}, s{WV}, v{T0+1}
    v_lshlrev_b32 v{VTRW2}, 3, v{VC}
    v_lshl_add_u32 v{VTRW2}, v{T0+1}, 5, v{VTRW2}
    v_lshl_add_u32 v{VTRW2}, v{VR}, 8, v{VTRW2}
    v_lshl_add_u32 v{VTRW2}, v{VS}, 11, v{VTRW2}
    s_lshl_b32 s3, s{WV}, 10
    v_add_u32 v{VHA}, s3, v{VKP}
    s_lshl_b32 s3, s{XI}, 3
    s_add_u32 s3, s3, s{BB}
    s_lshl_b32 s3, s3, 13
    s_add_u32 s3, s3, {WS_QG}
    v_add_u32 v{VQA}, s3, v{VHA}
    s_and_b32 s3, s{WV}, 3
    s_lshl_b32 s3, s3, 2
    v_lshrrev_b32 v{T0}, 5, v{LANE}
    v_lshl_or_b32 v{T0}, v{T0}, 1, s3
    v_and_b32 v{T0+1}, 15, v{LANE}
    v_xor_b32 v{T0}, v{T0}, v{T0+1}
    s_lshl_b32 s3, s{WV}, 13
    v_lshl_add_u32 v{VW2A}, v{VS}, 10, s3
    v_lshl_add_u32 v{VWOA}, v{T0}, 4, v{VW2A}
    s_and_b32 s3, s{WV}, 1
    s_lshl_b32 s3, s3, 3
    v_lshl_or_b32 v{T0}, v{VS}, 1, s3
    v_xor_b32 v{T0}, v{T0}, v{T0+1}
    v_lshl_add_u32 v{VW2A}, v{T0}, 4, v{VW2A}
    """
    IDPUB = f"""
    s_getreg_b32 s{XCC2}, hwreg(HW_REG_XCC_ID, 0, 3)
    s_lshl_b32 s3, s{XI}, 8
    s_add_u32 s3, s3, {WS_ID}
    v_and_b32 v{T0}, 31, v{LANE}
    v_lshl_add_u32 v{VQT}, v{T0}, 2, s3
    s_xor_b32 s{XCC2}, s{XCC2}, s{TAG}
    s_lshl_b32 s28, s{RR}, 2
    s_add_u32 s3, s3, s28
    s_add_u32 s84, s30, s3
    s_addc_u32 s85, s31, 0
    s_cmp_eq_u32 s{WV}, 4
    s_cselect_b32 s86, 4, 0
    s_mov_b32 s87, 0x20000
    v_mov_b32 v{T0+1}, s{XCC2}
    """
    A(IDPUB)
    A(f"buffer_store_dword v{T0+1}, v{VLIN}, s[84:87], 0 offen", "idst")
    issued.append("idst")
    A(SETUP2)
    if P["prio"]:
        A(f"""
        s_cmp_lt_u32 s{WV}, 4
        s_cbranch_scc1 L_prio
        s_setprio {P["prio"]}
        L_prio:
        """)
    stamp("setup")

    def p0tile(lw):
        W = TT; XR = TT + 16; D = KD
        for u in range(4):
            A(f"ds_read_b128 v[{XR+4*u}:{XR+4*u+3}], v{VXA} offset:{u*64}")
            for hf in range(2):
                A(f"ds_read_b64_tr_b16 v[{W+4*u+hf*2}:{W+4*u+hf*2+1}], v{VTRP} offset:{lw + u*4096 + hf*512}")
        for u in range(4):
            A(f"s_waitcnt lgkmcnt({9-3*u})")
            c = "0" if u == 0 else f"v[{D}:{D+3}]"
            A(f"v_mfma_f32_16x16x32_bf16 v[{D}:{D+3}], v[{W+4*u}:{W+4*u+3}], v[{XR+4*u}:{XR+4*u+3}], {c}")
        for r in range(4):
            A(f"v_and_or_b32 v{D+r}, v{D+r}, s{SMASK}, v{TB+r}")
        for r in range(4):
            A(f"ds_bpermute_b32 v{D+4+r}, v{VPERM}, v{D+r}")
        A("s_waitcnt lgkmcnt(0)")

    def pubstore(lbl, ins):
        A(f"""
        s_mov_b32 exec_hi, 0
        s_cmp_eq_u32 s{LOCAL}, 0
        s_cbranch_scc1 L_{lbl}_loc
        """)
        A.optional(ins + " sc1")
        A(f"""
        s_branch L_{lbl}_st
        L_{lbl}_loc:
        """)
        A.optional(ins)
        A(f"""
        L_{lbl}_st:
        s_mov_b32 exec_hi, -1
        s_nop 1
        """)

    def pbar():
        A.wait_vm("wq1")
        stamp("x1")
        A("s_barrier")
        stamp("bar1")
        if stamps: A("s_waitcnt lgkmcnt(0)")
        A(f"""
        s_cmp_gt_u32 s{WV}, 3
        s_cbranch_scc1 L_p0_done
        """)
        p0tile(L_WQ)
        A("L_p0_done:")
        stamp("p0done")

    def qpub():
        A(f"""
        v_cmp_ne_u32 vcc, s{XCC2}, v{YA}
        s_or_b32 s{LOCAL}, vcc_lo, {0 if P["local"] else 1}
        s_cmp_gt_u32 s{WV}, 3
        s_cbranch_scc1 L_qp_done
        """)
        pubstore("qp", f"global_store_dwordx4 v{VQP}, v[{KD+4}:{KD+7}], s[30:31]")
        A("L_qp_done:")
        stamp("qpub")

    def tagcheck(lbl, tagreg, reload):
        C = TT
        A(f"""
        s_mov_b32 s{CNT}, {spin}
        L_{lbl}_chk:
        v_perm_b32 v{C}, v{G+1}, v{G}, s{SEL1}
        v_perm_b32 v{C+1}, v{G+3}, v{G+2}, s{SEL1}
        v_perm_b32 v{C}, v{C+1}, v{C}, s{SEL2}
        v_cmp_ne_u32 vcc, s{tagreg}, v{C}
        s_cbranch_vccz L_{lbl}_ok
        s_sub_u32 s{CNT}, s{CNT}, 1
        s_cbranch_scc1 L_{lbl}_ok
        """)
        A.optional(reload)
        A(f"""
        s_waitcnt vmcnt(0)
        s_branch L_{lbl}_chk
        L_{lbl}_ok:
        """)
        for r in range(4):
            A(f"v_and_b32 v{G+r}, s{SMASK}, v{G+r}")
        for ror in (4, 8):
            for r in range(4):
                A(f"v_add_f32_dpp v{G+r}, v{G+r}, v{G+r} row_ror:{ror} {dpp}")

    def qcomb():
        stamp("qarr")
        tagcheck("q", TAG, f"global_load_dwordx4 v[{G}:{G+3}], v{VQA}, s[30:31] sc1")
        A(f"""
        v_cvt_pk_bf16_f32 v{G}, v{G}, v{G+1}
        v_cvt_pk_bf16_f32 v{G+1}, v{G+2}, v{G+3}
        v_cmp_ne_u32 vcc, s{XCC2}, v{YA}
        ds_write_b64 v{VCW}, v[{G}:{G+1}]
        s_or_b32 s{LOCAL}, vcc_lo, {0 if P["local"] else 1}
        """)
        stamp("qgot")

    def qbar():
        assert "W11" in arrived
        A(f"""
        s_waitcnt lgkmcnt(0)
        s_barrier
        v_add_u32 v{T0}, {L_QC}, v{VKP}
        ds_read_b128 v[{QF}:{QF+3}], v{T0}
        s_cmp_lt_u32 s{WV}, 4
        s_cselect_b32 s3, 0, s{SHS+2}
        s_waitcnt lgkmcnt(0)
        s_cmp_eq_u32 s3, 0
        s_cbranch_scc1 L_h_done
        s_lshl_b32 s3, s{SS}, 8
        s_and_b32 s28, s{WV}, 3
        s_lshl_b32 s28, s28, 6
        s_add_u32 s3, s3, s28
        v_bfe_u32 v{T0+1}, v{LANE}, 2, 3
        v_lshl_add_u32 v{T0}, v{VC}, 4, s3
        v_lshl_add_u32 v{T0}, v{T0+1}, 10, v{T0}
        """)
        p0tile(L_W1)
        pubstore("hp", f"buffer_store_dwordx4 v[{KD+4}:{KD+7}], v{T0}, s[{SHS}:{SHS+3}], 0 offen")
        A("L_h_done:")
        stamp("qready")

    def xreduce(reg, tmp, op):
        A(f"""
        v_mov_b32 v{tmp}, v{reg}
        v_permlane32_swap_b32 v{reg}, v{tmp}
        {op} v{reg}, v{reg}, v{tmp}
        v_mov_b32 v{tmp}, v{reg}
        v_permlane16_swap_b32 v{reg}, v{tmp}
        {op} v{reg}, v{reg}, v{tmp}
        """)

    def gate():
        A(f"v_dot2_f32_bf16 v{GV}, v{XG}, v{XG+4}, 0")
        for i in range(1, 4):
            A(f"v_dot2_f32_bf16 v{GV}, v{XG+i}, v{XG+4+i}, v{GV}")
        A(f"""
        v_add_f32_dpp v{GV}, v{GV}, v{GV} quad_perm:[1,0,3,2] {dpp}
        v_add_f32_dpp v{GV}, v{GV}, v{GV} quad_perm:[2,3,0,1] {dpp}
        v_add_f32_dpp v{GV}, v{GV}, v{GV} row_ror:4 {dpp}
        v_add_f32_dpp v{GV}, v{GV}, v{GV} row_ror:8 {dpp}
        """)
        xreduce(GV, T0, "v_add_f32")
        A(f"""
        v_mul_f32 v{GV}, {hex(f2u(-LOG2E))}, v{GV}
        v_exp_f32 v{GV}, v{GV}
        s_lshl_b32 s3, s{WV}, 2
        s_add_u32 s3, s3, {L_GT}
        v_add_f32 v{GV}, 1.0, v{GV}
        v_mov_b32 v{T0}, s3
        v_rcp_f32 v{GV}, v{GV}
        s_nop 0
        ds_write_b32 v{T0}, v{GV}
        """)

    def hcomb():
        tagcheck("h", HTAG, f"buffer_load_dwordx4 v[{G}:{G+3}], v{VHA}, s[{SHL}:{SHL+3}], 0 offen sc1")
        c1 = math.sqrt(2 / math.pi)
        k1 = -2 * c1 * LOG2E; k3 = k1 * 0.044715
        U = TT + 8
        A(f"""
        v_lshlrev_b32 v{TT}, 16, v{B1}
        v_and_b32 v{TT+1}, 0xffff0000, v{B1}
        v_lshlrev_b32 v{TT+2}, 16, v{B1+1}
        v_and_b32 v{TT+3}, 0xffff0000, v{B1+1}
        v_mov_b32 v{TT+4}, {hex(f2u(k1))}
        v_sub_f32 v{TT+5}, 1.0, v{GV}
        """)
        for r in range(4): A(f"v_add_f32 v{G+r}, v{G+r}, v{TT+r}")
        for r in range(4): A(f"v_mul_f32 v{U+r}, v{G+r}, v{G+r}")
        for r in range(4): A(f"v_fmamk_f32 v{U+r}, v{U+r}, {hex(f2u(k3))}, v{TT+4}")
        for r in range(4): A(f"v_mul_f32 v{U+r}, v{U+r}, v{G+r}")
        for r in range(4): A(f"v_exp_f32 v{U+r}, v{U+r}")
        for r in range(4): A(f"v_add_f32 v{U+r}, 1.0, v{U+r}")
        for r in range(4): A(f"v_rcp_f32 v{U+r}, v{U+r}")
        for r in range(4): A(f"v_mul_f32 v{G+r}, v{G+r}, v{TT+5}")
        for r in range(4): A(f"v_mul_f32 v{G+r}, v{G+r}, v{U+r}")
        A(f"""
        v_cvt_pk_bf16_f32 v{G}, v{G}, v{G+1}
        v_cvt_pk_bf16_f32 v{G+1}, v{G+2}, v{G+3}
        ds_write_b64 v{VCW}, v[{G}:{G+1}] offset:{L_HC - L_QC}
        """)

    pend = []
    def kextract():
        i = pend.pop(0); t = i % 4; d = KD + 4 * (i % 2)
        for c in range(4):
            op = "v_mul_f32_dpp" if t == 0 else "v_fmac_f32_dpp"
            A(f"{op} v{YA+c}, v{d+c}, v{CM+t} quad_perm:[{c},{c},{c},{c}] {dpp}")
        if t == 3:
            A(f"v_add_f32 v{T0}, v{YA}, v{YA+1}")
            A(f"v_add_f32 v{T0+1}, v{YA+2}, v{YA+3}")
            A(f"v_add_f32 v{SP + i//4}, v{T0}, v{T0+1}")
    def kload(i):
        r = ring(i); d = KD + 4 * (i % 2)
        A(f"v_mfma_f32_16x16x32_bf16 v[{d}:{d+3}], v[{r}:{r+3}], v[{QF}:{QF+3}], 0")
        if pend: kextract()
        pend.append(i)

    def qreduce(reg, op):
        A(f"{op}_dpp v{reg}, v{reg}, v{reg} quad_perm:[1,0,3,2] {dpp}")
        A(f"{op}_dpp v{reg}, v{reg}, v{reg} quad_perm:[2,3,0,1] {dpp}")

    def softmax():
        while pend: kextract()
        m = TT
        A(f"""
        v_max3_f32 v{m}, v{SP}, v{SP+1}, v{SP+2}
        v_max3_f32 v{m+1}, v{SP+3}, v{SP+4}, v{SP+5}
        v_max3_f32 v{m}, v{m}, v{SP+6}, v{SP+7}
        v_max_f32 v{MREG}, v{m}, v{m+1}
        """)
        qreduce(MREG, "v_max_f32")
        xreduce(MREG, m, "v_max_f32")
        for i in range(8): A(f"v_sub_f32 v{SP+i}, v{SP+i}, v{MREG}")
        for i in range(8): A(f"v_exp_f32 v{SP+i}, v{SP+i}")
        for i in range(4): A(f"v_add_f32 v{m+i}, v{SP+2*i}, v{SP+2*i+1}")
        A(f"v_add_f32 v{m}, v{m}, v{m+1}")
        A(f"v_add_f32 v{m+2}, v{m+2}, v{m+3}")
        for i in range(4): A(f"v_cvt_pk_bf16_f32 v{SP+i}, v{SP+i}, v{SP+i}")
        A(f"v_add_f32 v{m}, v{m}, v{m+2}")
        for i in range(4, 8): A(f"v_cvt_pk_bf16_f32 v{SP+i}, v{SP+i}, v{SP+i}")
        qreduce(m, "v_add_f32")
        xreduce(m, m + 1, "v_add_f32")
        A(f"""
        s_lshl_b32 s3, s{WV}, 2
        s_add_u32 s3, s3, {L_ML}
        v_lshl_add_u32 v{m+2}, v{VR}, 5, s3
        ds_write_b32 v{m+2}, v{MREG}
        ds_write_b32 v{m+2}, v{m} offset:128
        """)

    def vprep(j):
        x = XY + 2 * (j % 2); t = j % 4
        A(f"v_and_b32_dpp v{x}, v{SP + j//4}, v{MX} quad_perm:[{t},{t},{t},{t}] {dpp}")
        A(f"v_and_b32_dpp v{x+1}, v{SP + j//4}, v{MY} quad_perm:[{t},{t},{t},{t}] {dpp}")
    def vload(j):
        x = XY + 2 * (j % 2); r = ring(32 + j)
        for eh in range(2):
            o = OA + 4 * eh
            c = "0" if j == 0 else f"v[{o}:{o+3}]"
            A(f"v_mfma_f32_16x16x16_bf16 v[{o}:{o+3}], v[{r+2*eh}:{r+2*eh+1}], v[{x}:{x+1}], {c}")

    def mid():
        assert "W2b" in arrived
        m = TT
        AF = TT + 16
        GF = TT + 24
        A(f"""
        s_waitcnt lgkmcnt(0)
        s_barrier
        v_lshlrev_b32 v{T0}, 5, v{VR}
        v_add_u32 v{T0}, {L_ML}, v{T0}
        ds_read_b128 v[{m}:{m+3}], v{T0}
        ds_read_b128 v[{m+4}:{m+7}], v{T0} offset:16
        ds_read_b128 v[{m+8}:{m+11}], v{T0} offset:128
        ds_read_b128 v[{m+12}:{m+15}], v{T0} offset:144
        ds_read_b128 v[{AF}:{AF+3}], v{VAF} offset:{L_HC - L_QC}
        ds_read_b128 v[{AF+4}:{AF+7}], v{VAF} offset:{L_HC - L_QC + 64}
        """)
        for u in range(2):
            for hf in range(2):
                A(f"ds_read_b64_tr_b16 v[{WF+4*u+2*hf}:{WF+4*u+2*hf+1}], v{VTRW2} offset:{L_W2 + u*8192 + hf*1024}")
        M = T0 + 1
        A(f"""
        ds_read_b32 v{GF}, v{VQA}
        s_waitcnt lgkmcnt(0)
        v_mfma_f32_16x16x32_bf16 v[{D2}:{D2+3}], v[{AF}:{AF+3}], v[{WF}:{WF+3}], 0
        v_mfma_f32_16x16x32_bf16 v[{D2}:{D2+3}], v[{AF+4}:{AF+7}], v[{WF+4}:{WF+7}], v[{D2}:{D2+3}]
        v_max3_f32 v{M}, v{m}, v{m+1}, v{m+2}
        v_max3_f32 v{M}, v{M}, v{m+3}, v{m+4}
        v_max3_f32 v{M}, v{M}, v{m+5}, v{m+6}
        v_max_f32 v{M}, v{M}, v{m+7}
        """)
        for w in range(8):
            A(f"v_sub_f32 v{m+w}, v{m+w}, v{M}")
        A(f"v_sub_f32 v{FAC}, v{MREG}, v{M}")
        for w in range(8):
            A(f"v_exp_f32 v{m+w}, v{m+w}")
        A(f"v_exp_f32 v{FAC}, v{FAC}")
        A(f"v_mul_f32 v{m}, v{m}, v{m+8}")
        for w in range(1, 8):
            A(f"v_fmac_f32 v{m}, v{m+w}, v{m+8+w}")
        A(f"""
        v_rcp_f32 v{m+1}, v{m}
        v_log_f32 v{m+2}, v{m}
        v_mul_f32 v{FAC}, v{FAC}, v{m+1}
        v_add_f32 v{m+2}, v{m+2}, v{M}
        v_lshlrev_b32 v{m+3}, 2, v{VR}
        v_add_u32 v{m+3}, {L_LSE}, v{m+3}
        ds_write_b32 v{m+3}, v{m+2}
        v_sub_f32 v{GF}, 1.0, v{GF}
        v_lshlrev_b32 v{B2}, 16, v{B2}
        v_mul_f32 v{B2}, v{B2}, v{GF}
        """)

    def tailaddr():
        m = TT; BI = TT + 8
        A(f"""
        v_and_b32 v{T0}, 1, v{VS}
        v_lshlrev_b32 v{T0}, 1, v{T0}
        v_lshrrev_b32 v{BI}, 1, v{VS}
        v_or_b32 v{BI}, v{BI}, v{T0}
        s_lshr_b32 s3, s{RR}, 4
        s_lshl_b32 s3, s3, 2
        v_add_u32 v{BI}, s3, v{BI}
        v_lshlrev_b32 v{T0}, 2, v{BI}
        v_add_u32 v{VQA}, {L_GT}, v{T0}
        s_lshl_b32 s3, s{WV}, 11
        s_add_u32 s3, s3, {L_OP}
        v_add_u32 v{VOPW}, s3, v{VLIN}
        s_lshr_b32 s3, s{WV}, 1
        s_lshl_b32 s28, s3, 6
        s_lshl_b32 s3, s3, 2
        s_add_u32 s3, s3, {L_LSE}
        v_mov_b32 v{VLSE}, s3
        s_and_b32 s3, s{WV}, 1
        s_lshl_b32 s3, s3, 9
        s_add_u32 s3, s3, s28
        s_add_u32 s3, s3, {L_OP}
        v_lshl_add_u32 v{VOPR}, v{VC}, 4, s3
        v_lshl_add_u32 v{VOPR}, v{VR}, 12, v{VOPR}
        v_lshrrev_b32 v{m}, 1, v{VS}
        v_lshl_add_u32 v{VOPR}, v{m}, 8, v{VOPR}
        v_and_b32 v{m}, 1, v{VS}
        v_lshl_add_u32 v{VOPR}, v{m}, 10, v{VOPR}
        s_lshl_b32 s3, s{KG}, 13
        s_add_u32 s3, s3, {WS_OG}
        v_add_u32 v{VOGL}, s3, v{VHA}
        s_lshl_b32 s3, s{XI}, 3
        s_add_u32 s3, s3, s{WV}
        s_lshl_b32 s3, s3, 13
        s_lshl_b32 s28, s{RR}, 8
        s_add_u32 s3, s3, s28
        s_add_u32 s3, s3, {WS_OG}
        v_lshl_add_u32 v{VOGS}, v{VC}, 4, s3
        v_lshl_add_u32 v{VOGS}, v{VS}, 6, v{VOGS}
        s_lshl_b32 s3, s{SS}, 3
        s_add_u32 s3, s3, s{WV}
        s_lshl_b32 s3, s3, 9
        s_mul_i32 s28, s{KG}, {PGS}
        s_add_u32 s3, s3, s28
        s_add_u32 s3, s3, {WS_PG}
        v_add_u32 v{VPGS}, s3, v{VLIN}
        s_lshl_b32 s3, s{XI}, 2
        s_bfe_u32 s28, s{RR}, 0x20002
        s_add_u32 s3, s3, s28
        s_lshl_b32 s3, s3, 9
        s_lshr_b32 s28, s{RR}, 4
        s_lshl_b32 s28, s28, 8
        s_add_u32 s3, s3, s28
        s_lshl_b32 s28, s{SS}, 6
        s_add_u32 s3, s3, s28
        s_mul_i32 s28, s{WV}, {PGS}
        s_add_u32 s3, s3, s28
        s_add_u32 s3, s3, {WS_PG}
        v_bfe_u32 v{m+1}, v{LANE}, 2, 3
        v_mul_u32_u24 v{m+1}, {8*PGS}, v{m+1}
        v_lshl_add_u32 v{VPGL}, v{VC}, 4, s3
        v_add_u32 v{VPGL}, v{VPGL}, v{m+1}
        s_lshl_b32 s3, s{WV}, 9
        s_add_u32 s3, s3, {L_PF}
        v_add_u32 v{VPFW}, s3, v{VLIN}
        v_add_u32 v{VPFR}, {L_PF}, v{VLIN}
        s_and_b32 s3, s{RR}, 15
        s_lshl_b32 s28, s{XI}, 4
        s_add_u32 s3, s3, s28
        s_lshl_b32 s3, s3, 3
        v_lshl_add_u32 v{VOUT}, v{VC}, 1, s3
        v_lshl_add_u32 v{VOUT}, v{BI}, 10, v{VOUT}
        """)

    qstep = [0]; mstep = [0]
    def nbig(): return sum(1 for n in issued if isbig(n))
    def next_work(force=False):
        if "PB" not in done:
            return "PB" if nbig() >= N0 + P["pdelay"] else None
        if "PS" not in done and "ID" in arrived: return "PS"
        if "GT" not in done and "B2" in arrived: return "GT"
        if "PS" not in done: return None
        if "QC" not in done:
            return "QC" if "Q" in arrived else None
        if "QB" not in done:
            return "QB" if (force or nbig() >= qstep[0] + qdelay) else None
        for i in range(32):
            if f"KL{i}" not in done:
                if f"K{i}" in arrived: return f"KL{i}"
                return "TA" if "TA" not in done else None
        if "SM" not in done: return "SM"
        if "TA" not in done: return "TA"
        if "HC" not in done and "H" in arrived: return "HC"
        if "HC" in done and "MD" not in done and (force or nbig() >= mstep[0] + P["middelay"]): return "MD"
        for j in range(32):
            if f"VL{j}" not in done:
                return f"VL{j}" if f"V{j}" in arrived else None
        return None
    def run(w):
        if w[:2] in P["skip"].split(","):
            if w == "QC": qstep[0] = nbig()
        elif w == "PB": pbar()
        elif w == "PS": qpub()
        elif w == "GT": gate()
        elif w == "QC": qcomb(); qstep[0] = nbig()
        elif w == "QB": qbar()
        elif w == "HC": hcomb(); mstep[0] = nbig()
        elif w == "MD": mid()
        elif w == "TA": tailaddr()
        elif w[:2] == "KL": kload(int(w[2:]))
        elif w == "SM": softmax()
        elif w[:2] == "VL":
            j = int(w[2:]); vprep(j); vload(j)
        done.add(w)

    def can_issue(nm):
        if nm[0] == "V": return 32 + int(nm[1:]) - NR < 0 or slot_free(32 + int(nm[1:]) - NR)
        if nm == "H": return "QC" in done
        if nm in ("XG", "GW"): return "PB" in done
        return True
    if P["pdelay"] == 0: run("PB")
    while pos < len(stream):
        nm = stream[pos]
        assert nm not in ("XG", "GW") or "PB" in done
        if isbig(nm):
            prev = [n for n in stream[:pos] if isbig(n)]
            Nc = P["Nend"] if len(prev) >= P["endpos"] else N
            if len(prev) >= Nc: wait(prev[-Nc])
        if nm[0] == "V" and 32 + int(nm[1:]) - NR >= 0:
            while not slot_free(32 + int(nm[1:]) - NR):
                w = next_work(force=True)
                assert w is not None, "stream stalls on processing"
                run(w)
        issue(nm); pos += 1
        stamp("i" + nm)
        if nm in P["sync"].split(","): A("s_barrier")
        if pos < len(stream) and not isbig(stream[pos]): continue
        w = next_work()
        if w in ("PB", "QB", "MD", "SM", "HC", "TA"):
            nb = 0
            while nb < P["boost"] and pos < len(stream) and can_issue(stream[pos]):
                nb += isbig(stream[pos])
                issue(stream[pos]); stamp("i" + stream[pos]); pos += 1
        if w:
            run(w)
            k = 1
            while w and w[:2] in ("VL", "KL") and k < P["kburst"]:
                w = next_work()
                if w and w[:2] in ("VL", "KL"): run(w); k += 1
    while True:
        w = next_work(force=True)
        if not w: break
        run(w)
    assert {"SM", "HC", "GT", "MD", "TA"} <= done
    stamp("allissued")
    A(f"v_mov_b32 v{TT+3}, s{TAG}")
    for j in range(32):
        if f"VL{j}" not in done:
            vprep(j); wait(f"V{j}"); vload(j); done.add(f"VL{j}")
    stamp("vdone")
    for i in range(8):
        A(f"v_mul_f32 v{OA+i}, v{OA+i}, v{FAC}")
    R0 = TT + 16
    wo_in = "WOb" in arrived
    A(f"""
    ds_write_b128 v{VOPW}, v[{OA}:{OA+3}]
    ds_write_b128 v{VOPW}, v[{OA+4}:{OA+7}] offset:1024
    s_waitcnt lgkmcnt(0)
    s_barrier
    ds_read_b128 v[{R0}:{R0+3}], v{VOPR}
    ds_read_b128 v[{R0+4}:{R0+7}], v{VOPR} offset:2048
    ds_read_b32 v{TT+2}, v{VLSE}
    s_cmp_eq_u32 s{LOCAL}, 0
    s_waitcnt lgkmcnt(1)
    """)
    for r in range(4):
        A(f"v_add_f32 v{R0+r}, v{R0+r}, v{R0+4+r}")
    for ror in (4, 8):
        for r in range(4):
            A(f"v_add_f32_dpp v{R0+r}, v{R0+r}, v{R0+r} row_ror:{ror} {dpp}")
    A(f"""
    v_cvt_pk_bf16_f32 v{TT}, v{R0}, v{R0+1}
    v_cvt_pk_bf16_f32 v{TT+1}, v{R0+2}, v{R0+3}
    s_mov_b32 exec_lo, 0x000f000f
    s_mov_b32 exec_hi, 0x000f000f
    s_waitcnt lgkmcnt(0)
    s_cbranch_scc0 L_og_glob
    """)
    A.optional(f"global_store_dwordx4 v{VOGS}, v[{TT}:{TT+3}], s[30:31]")
    A("L_og_done:")
    A("s_mov_b64 exec, -1")
    stamp("ogpub")
    A.optional(f"global_load_dwordx4 v[{G}:{G+3}], v{VOGL}, s[30:31] sc1")
    if not wo_in:
        A(f"""
        s_waitcnt vmcnt(2)
        s_barrier
        """)
    for u in range(2):
        for hf in range(2):
            A(f"ds_read_b64_tr_b16 v[{WF+4*u+2*hf}:{WF+4*u+2*hf+1}], v{VTRWO} offset:{L_WO + u*8192 + hf*256}")
    C = TT + 8
    A(f"""
    s_mov_b32 s{CNT}, {spin}
    s_waitcnt vmcnt(0)
    L_o_chk:
    v_cmp_ne_u32 vcc, s{TAG}, v{G+3}
    s_cbranch_vccz L_o_ok
    s_sub_u32 s{CNT}, s{CNT}, 1
    s_cbranch_scc1 L_o_ok
    s_mov_b64 exec, vcc
    """)
    if P["osleep"]: A(f"s_sleep {P['osleep']}")
    A.optional(f"global_load_dwordx4 v[{G}:{G+3}], v{VOGL}, s[30:31] sc1")
    A(f"""
    s_mov_b64 exec, -1
    s_waitcnt vmcnt(0)
    s_branch L_o_chk
    L_og_glob:
    """)
    A.optional(f"global_store_dwordx4 v{VOGS}, v[{TT}:{TT+3}], s[30:31] sc1")
    A(f"""
    s_branch L_og_done
    L_o_ok:
    """)
    stamp("ogot")
    A(f"""
    v_max_f32_dpp v{C}, v{G+2}, v{G+2} row_ror:4 {dpp}
    v_lshlrev_b32 v{C+4}, 16, v{G}
    v_and_b32 v{C+5}, 0xffff0000, v{G}
    v_max_f32_dpp v{C+1}, v{C}, v{C} row_ror:8 {dpp}
    v_lshlrev_b32 v{C+6}, 16, v{G+1}
    v_sub_f32 v{C+1}, v{G+2}, v{C+1}
    v_exp_f32 v{C+1}, v{C+1}
    v_and_b32 v{C+7}, 0xffff0000, v{G+1}
    v_mul_f32 v{C+4}, v{C+4}, v{C+1}
    v_mul_f32 v{C+5}, v{C+5}, v{C+1}
    v_add_f32_dpp v{C}, v{C+1}, v{C+1} row_ror:4 {dpp}
    v_mul_f32 v{C+6}, v{C+6}, v{C+1}
    v_mul_f32 v{C+7}, v{C+7}, v{C+1}
    v_add_f32_dpp v{C+2}, v{C}, v{C} row_ror:8 {dpp}
    v_add_f32_dpp v{C+4}, v{C+4}, v{C+4} row_ror:4 {dpp}
    v_rcp_f32 v{C+2}, v{C+2}
    v_add_f32_dpp v{C+5}, v{C+5}, v{C+5} row_ror:4 {dpp}
    v_add_f32_dpp v{C+6}, v{C+6}, v{C+6} row_ror:4 {dpp}
    v_add_f32_dpp v{C+7}, v{C+7}, v{C+7} row_ror:4 {dpp}
    v_mul_f32 v{C+2}, v{C+2}, v{GV}
    v_add_f32_dpp v{C+4}, v{C+4}, v{C+4} row_ror:8 {dpp}
    v_add_f32_dpp v{C+5}, v{C+5}, v{C+5} row_ror:8 {dpp}
    v_add_f32_dpp v{C+6}, v{C+6}, v{C+6} row_ror:8 {dpp}
    v_add_f32_dpp v{C+7}, v{C+7}, v{C+7} row_ror:8 {dpp}
    v_mul_f32 v{C+4}, v{C+4}, v{C+2}
    v_mul_f32 v{C+5}, v{C+5}, v{C+2}
    v_mul_f32 v{C+6}, v{C+6}, v{C+2}
    v_mul_f32 v{C+7}, v{C+7}, v{C+2}
    v_cvt_pk_bf16_f32 v{C}, v{C+4}, v{C+5}
    v_cvt_pk_bf16_f32 v{C+1}, v{C+6}, v{C+7}
    ds_write_b64 v{VCW}, v[{C}:{C+1}] offset:{L_OC - L_QC}
    s_waitcnt lgkmcnt(0)
    s_barrier
    ds_read_b128 v[{R0}:{R0+3}], v{VAF} offset:{L_OC - L_QC}
    ds_read_b128 v[{R0+4}:{R0+7}], v{VAF} offset:{L_OC - L_QC + 64}
    s_waitcnt lgkmcnt(1)
    v_mfma_f32_16x16x32_bf16 v[{D2}:{D2+3}], v[{R0}:{R0+3}], v[{WF}:{WF+3}], v[{D2}:{D2+3}]
    s_waitcnt lgkmcnt(0)
    v_mfma_f32_16x16x32_bf16 v[{D2}:{D2+3}], v[{R0+4}:{R0+7}], v[{WF+4}:{WF+7}], v[{D2}:{D2+3}]
    s_mov_b32 exec_hi, 0
    """)
    for r in range(4):
        A(f"v_and_or_b32 v{D2+r}, v{D2+r}, s{SMASK}, v{TB+r}")
    A.optional(f"global_store_dwordx4 v{VPGS}, v[{D2}:{D2+3}], s[30:31] {P['pgst']}")
    stamp("pgpub")
    PP = TT + 16
    if P["pgdelay"]: A(f"s_sleep {P['pgdelay']}")
    elif P["ackwait"]: A("s_waitcnt vmcnt(0)")
    A.optional(f"global_load_dwordx4 v[{G}:{G+3}], v{VPGL}, s[30:31] sc1")
    A(f"""
    s_mov_b32 s{CNT}, {P["pspin"] or spin}
    s_waitcnt vmcnt(0)
    """)
    stamp("pg1")
    A(f"""
    L_p_chk:
    v_perm_b32 v{C}, v{G+1}, v{G}, s{SEL1}
    v_perm_b32 v{C+1}, v{G+3}, v{G+2}, s{SEL1}
    v_perm_b32 v{C}, v{C+1}, v{C}, s{SEL2}
    v_cmp_ne_u32 vcc, s{TAG}, v{C}
    s_cbranch_vccz L_p_ok
    s_sub_u32 s{CNT}, s{CNT}, 1
    s_cbranch_scc1 L_p_ok
    s_mov_b64 exec, vcc
    """)
    if sleep: A(f"s_sleep {sleep}")
    A.optional(f"global_load_dwordx4 v[{G}:{G+3}], v{VPGL}, s[30:31] sc1")
    A(f"""
    s_mov_b32 exec_lo, -1
    s_waitcnt vmcnt(0)
    s_branch L_p_chk
    L_p_ok:
    """)
    stamp("pgot")
    for r in range(4):
        A(f"v_and_b32 v{G+r}, s{SMASK}, v{G+r}")
    A(f"""
    ds_write_b128 v{VPFW}, v[{G}:{G+3}]
    s_mov_b64 exec, -1
    s_waitcnt lgkmcnt(0)
    s_barrier
    """)
    if P["allwaves"]:
        n = len(stnames)
        A(f"""
        s_lshl_b32 s3, s2, 3
        s_add_u32 s3, s3, s{WV}
        s_mul_i32 s3, s3, {8*n}
        s_add_u32 s3, s3, {WS_STAMP}
        v_mov_b32 v{C}, s3
        s_mov_b64 exec, 1
        """)
        for k in range(n):
            A(f"v_mov_b32 v{C+2}, s{STREGS[k]}")
            A(f"v_mov_b32 v{C+3}, s{STREGS[k]+1}")
            A.optional(f"global_store_dwordx2 v{C}, v[{C+2}:{C+3}], s[30:31] offset:{8*k}")
            A("s_nop 1")
        A("s_mov_b64 exec, -1")
        stamps = None
    A(f"""
    s_cmp_lg_u32 s{WV}, 0
    s_cbranch_scc1 L_end
    """)
    stamp("pbar")
    for i in range(4):
        A(f"ds_read_b128 v[{PP+4*i}:{PP+4*i+3}], v{VPFR} offset:{i*1024}")
    A("s_waitcnt lgkmcnt(0)")
    for (a, b) in ((0, 1), (2, 3), (0, 2)):
        for r in range(4):
            A(f"v_add_f32 v{PP+4*a+r}, v{PP+4*a+r}, v{PP+4*b+r}")
    A(f"""
    v_permlane32_swap_b32 v{PP}, v{PP+1}
    v_permlane32_swap_b32 v{PP+2}, v{PP+3}
    v_add_f32 v{PP}, v{PP}, v{PP+1}
    v_add_f32 v{PP+2}, v{PP+2}, v{PP+3}
    v_permlane16_swap_b32 v{PP}, v{PP+2}
    v_add_f32 v{PP}, v{PP}, v{PP+2}
    v_add_f32_dpp v{PP}, v{PP}, v{PP} row_ror:4 {dpp}
    v_add_f32_dpp v{PP}, v{PP}, v{PP} row_ror:8 {dpp}
    v_add_f32 v{PP}, v{PP}, v{B2}
    v_cvt_pk_bf16_f32 v{PP}, v{PP}, v{PP}
    s_mov_b32 exec_lo, 0x000f000f
    s_mov_b32 exec_hi, 0x000f000f
    """)
    A.optional(f"global_store_short v{VOUT}, v{PP}, s[26:27]")
    A(f"""
    s_mov_b64 exec, 1
    s_cmp_lg_u32 s2, 0
    s_cbranch_scc1 L_noep
    v_mov_b32 v{C}, 0
    v_mov_b32 v{C+1}, s{TAG}
    """)
    A.optional(f"global_store_dword v{C}, v{C+1}, s[30:31] sc1")
    A("L_noep:")
    if stamps:
        stamp("outst")
        A("s_waitcnt vmcnt(0)")
        stamp("end")
        n = len(stnames)
        A(f"""
        s_waitcnt lgkmcnt(0)
        s_mul_i32 s3, s2, {8*n}
        s_add_u32 s3, s3, {WS_STAMP}
        v_mov_b32 v{C}, s3
        """)
        for k in range(n):
            A(f"v_mov_b32 v{C+2}, s{STREGS[k]}")
            A(f"v_mov_b32 v{C+3}, s{STREGS[k]+1}")
            A.optional(f"global_store_dwordx2 v{C}, v[{C+2}:{C+3}], s[30:31] offset:{8*k}")
            A("s_nop 1")
        if P["probe"]:
            k = stnames.index(P["probe"])
            A(f"""
            s_add_u32 s14, s{STREGS[k]}, 10000
            L_probe:
            s_sleep 4
            s_memrealtime s[4:5]
            s_waitcnt lgkmcnt(0)
            s_sub_u32 s3, s4, s14
            s_cmp_lt_i32 s3, 0
            s_cbranch_scc1 L_probe
            """)
    A.raw("L_end:")
    A.raw("  s_endpgm")
    A.raw('.section .rodata,"a"')
    A.raw(".p2align 6")
    A.raw(f".amdhsa_kernel {NAME}_kernel")
    A.raw("  .amdhsa_next_free_vgpr 256")
    A.raw("  .amdhsa_next_free_sgpr 102")
    A.raw("  .amdhsa_accum_offset 256")
    A.raw("  .amdhsa_group_segment_fixed_size 0")
    A.raw("  .amdhsa_kernarg_size 112")
    A.raw("  .amdhsa_user_sgpr_count 2")
    A.raw("  .amdhsa_user_sgpr_kernarg_segment_ptr 1")
    A.raw("  .amdhsa_system_sgpr_workgroup_id_x 1")
    A.raw(".end_amdhsa_kernel")
    return A.text(), stnames

if __name__ == "__main__":
    out = f"cdna_kernels/{NAME}.s"
    kw = {}
    for a in sys.argv[1:]:
        k, v = a.split("=", 1)
        if k == "o": out = v
        elif k == "stamps": kw[k] = v.split(",")
        elif isinstance(DEF[k], bool): kw[k] = bool(int(v))
        elif isinstance(DEF[k], int): kw[k] = int(v)
        else: kw[k] = v
    t, n = gen(**kw)
    open(out, "w").write(t)
    print("wrote", out, "stamps", len(n), n)
```

```python
import sys, argparse, struct, math
sys.path.insert(0, "tools")
from asmlib import Asm
NAME = "gated_mix__gqa_block_cached__dense_activation_gelu__decode"
HDR = open("cdna_kernels/%s.s.ref" % NAME).read().split("; Override")[0]

def f2u(x): return struct.unpack("<I", struct.pack("<f", x))[0]
LOG2E = 1.4426950408889634

WS_ID = 0x1000
WS_VT = 0x2000
WS_RC = 0x8000
WS_HG = 0x40000
WS_QG = 0x80000
WS_OG0 = 0x300000
WS_PG = 0x100000
WS_STAMP = 0x8000000
L_WQ = 0
L_W1 = 16384
L_WO = 32768
L_W2 = 49152
OPS = 2048 + 32
CRS = 160
L_OP = 65536
L_X = L_OP + 8 * OPS
L_QC = L_X + 2048
L_HC = L_QC + 1024
L_OC = L_HC + 8 * CRS
L_ML = L_OC + 8 * CRS
L_GT = L_ML + 256
L_LSE = L_GT + 32
L_LF = L_LSE + 32
L_PF = L_LF + 32
L_END = L_PF + 4096

DEF = dict(N=3, N0=3, idpos=9, hpos=4, gpos=6, qpos=19, qdelay=2, vpos=8, stamps=None, kflag="nt", vflag="nt", wflag="nt",
           spin=4000000, sleep=0, dbg=False, probe=None, p0bar=True, pgpad=0, skip="", wopos=32, local=True, ackwait=True, allwaves=False, prio=0, sync="", kburst=4, middelay=3, nring=32, Nend=6, endpos=52, alo=0, adelta=290, at0=30, boost=0, pdelay=0, osleep=0, rot=0, cntst=False, qst="sc1", pgst="sc1", hst="sc1", pspin=0, pgdelay=0, split=True, psleep0=18, kfirst=False, late=1, latepos=31, lw=4, warm="", warmpos=22, pgflip=-1, pad=0x600, pg1="", pg2="", pgw=True, amp="", rank=0, rpos=25, lhalf=0, forcelocal=False, idlate=True, ogl="", qhl="", wb="", alias=True, race=1, racedbg=False, raceinv=False, onew=True, racelate=True, ampm=50, epst="", pt="", ackbar=True)

def gen(**kw):
    P = dict(DEF); P.update(kw)
    N, N0, hpos, gpos, qpos, qdelay, vpos = (P[k] for k in ("N", "N0", "hpos", "gpos", "qpos", "qdelay", "vpos"))
    stamps, kflag, vflag, wflag, spin, sleep = (P[k] for k in ("stamps", "kflag", "vflag", "wflag", "spin", "sleep"))
    PGS = 16384 + P["pgpad"]
    WS_OG = WS_QG if P["alias"] else WS_OG0
    OTAG = 80
    A = Asm()
    stnames = []
    STREGS = [90, 92, 94, 96, 98, 100, 6, 8, 10, 12, 16, 18]
    def stamp(nm):
        if stamps and nm in stamps:
            r = STREGS[len(stnames)]
            stnames.append(nm)
            A(f"s_memrealtime s[{r}:{r+1}]")
    LANE, VLIN, VKP, MX, MY, VC, VR, VS = 1, 2, 3, 4, 5, 6, 7, 8
    TB = 9; GV = 13; FAC = 14; MREG = 15
    QF = 16
    CM = 20
    YA = 24
    KD = 28
    SP = 36
    OA = 44; D2 = 52; G = 56; XY = 60
    TT = 64
    WF = 96
    WF2 = QF
    D2B = YA
    SPL = P["split"]
    CB = 81
    VQA, VHA, VW2A, VWOA, VW1A, VTRP, VXA, VPERM, VCW, VAF, VTRWO, VTRW2, B2, VQP, VQT = range(104, 119)
    T0 = 119
    B1 = 122
    XG = TT + 16
    VOPW, VOPR, VOGS, VOGL = 124, 125, 126, 127
    VPGS, VPGL, VLSE, VOUT, VPFW, VPFR = VTRP, VXA, VPERM, VQP, VQT, VW1A
    VRK, RK = 0, 121
    RING = 128
    NR = P["nring"]
    def ring(i): return RING + (i % NR) * 4
    WV, XI, RR, BB, SS, TAG, KG, FG, FP, HTAG, SMASK, ST = 32, 33, 34, 35, 36, 37, 38, 39, 40, 41, 42, 43
    SK, SV, SWQ, SW1, SWO, SW2, SHS, SHL, SB1 = 44, 48, 52, 56, 60, 64, 68, 72, 76
    SOFF, SC = 88, 89
    XCC2, LOCAL = 83, 82
    SEL1, SEL2 = 14, 15
    CNT = 3
    dpp = "row_mask:0xf bank_mask:0xf"

    A.raw(HDR.rstrip("\n"))
    A.raw(f"; @launch grid=(256,1,1) block=(512,1,1) lds={L_END}")
    A.raw('.amdgcn_target "amdgcn-amd-amdhsa--gfx950"')
    A.raw("""; ---------------------------------------------------------------------------------------------------------
; One persistent launch, 256 workgroups (one per CU) x 8 waves.  Workgroup w: xi = w&7 (kv head / hand-off
; group), r = w>>3 = (batch b, key quarter s).  Every wave streams 128 K rows then 128 V rows straight into a
;   q      : wg (xi,r) computes x @ wq for 64 columns x 128 k-rows, hands fp32 partials to its group
;   out    : 64 partials per output gathered across groups, + (1-g)*b2, bf16 store
; the end).  Loads of handed-off data are sc1.  Stores are write-through (sc1) unless this workgroup has seen,
; in this launch, that all 32 members of its group report its own XCC id; then they stay in the shared L2.
; race two scalar loads to learn which half of the page is near and publish the bit; it only moves addresses.
; ---------------------------------------------------------------------------------------------------------""")
    A.raw(".text")
    if P["pg1"]:
        A.raw(".p2align 12")
    elif P["pad"]:
        A.raw("; keep 4 KiB code-page crossings out of the prologue and of the tail")
        A.raw(".p2align 12")
        A.raw(f".fill {P['pad'] // 4}, 4, 0xbf810000")
    A.raw(f".globl {NAME}_kernel")
    A.raw(".p2align 8")
    A.raw(f".type {NAME}_kernel,@function")
    A.raw(f"{NAME}_kernel:")
    stamp("entry")
    PRO1 = f"""
    s_load_dwordx16 s[4:19], s[0:1], 0
    s_cmp_ge_u32 s2, 256
    s_cbranch_scc1 L_end
    s_load_dwordx8 s[20:27], s[0:1], 64
    s_load_dwordx4 s[28:31], s[0:1], 96
    v_lshrrev_b32 v{T0}, 6, v0
    v_and_b32 v{VC}, 3, v0
    v_readfirstlane_b32 s{WV}, v{T0}
    v_bfe_u32 v{VR}, v0, 2, 2
    v_bfe_u32 v{VS}, v0, 4, 2
    s_and_b32 s{XI}, s2, 7
    s_lshr_b32 s{BB}, s2, 5
    s_bfe_u32 s{SS}, s2, 0x20003
    v_lshlrev_b32 v{VKP}, 4, v{VC}
    v_lshl_add_u32 v{VKP}, v{VR}, 8, v{VKP}
    v_lshl_add_u32 v{VKP}, v{VS}, 6, v{VKP}
    s_lshl3_add_u32 s{ST}, s{BB}, s{XI}
    s_lshl2_add_u32 s{ST}, s{ST}, s{SS}
    s_lshl_b32 s{ST}, s{ST}, 18
    s_lshl_b32 s{SOFF}, s{WV}, 12
    s_mov_b32 s{SK+3}, 0x20000
    s_mov_b32 s{SK+2}, 0x40000
    """
    PRO2 = f"""
    s_lshr_b32 s{RR}, s2, 3
    v_and_b32 v{LANE}, 63, v0
    v_lshlrev_b32 v{VLIN}, 4, v{LANE}
    s_lshl_b32 s3, s{WV}, 4
    v_lshrrev_b32 v{T0}, 3, v{LANE}
    v_add_u32 v{T0}, s3, v{T0}
    v_and_b32 v{T0+1}, 1, v{VS}
    v_lshlrev_b32 v{T0+1}, 1, v{T0+1}
    v_and_b32 v{T0+2}, 7, v{LANE}
    v_xor_b32 v{T0+1}, v{T0+1}, v{T0+2}
    v_lshlrev_b32 v{T0+1}, 4, v{T0+1}
    v_mul_u32_u24 v{VW1A}, 3584, v{T0}
    v_add_u32 v{VW1A}, v{VW1A}, v{T0+1}
    v_lshl_add_u32 v{G}, v{T0}, 13, v{T0+1}
    v_xor_b32 v{G+1}, 64, v{G}
    s_lshl_b32 s3, s{WV}, 12
    s_lshl_b32 s{SMASK}, s{SS}, 8
    s_add_u32 s3, s3, s{SMASK}
    v_and_b32 v{T0}, 15, v{LANE}
    v_lshl_add_u32 v{G+2}, v{T0}, 4, s3
    v_lshl_add_u32 v{G+2}, v{VS}, 10, v{G+2}
    s_lshl_b32 s{KG}, s{SS}, 20
    s_lshl_b32 s3, s{XI}, 10
    s_add_u32 s{KG}, s{KG}, s3
    s_lshl_b32 s3, s{BB}, 7
    s_add_u32 s{KG}, s{KG}, s3
    s_mov_b32 s{SWQ+3}, 0x20000
    s_sub_u32 s{SWQ+2}, 0x400000, s{KG}
    s_lshl_b32 s3, s{WV}, 10
    s_add_u32 m0, s3, {L_X}
    s_mov_b32 s{FG}, 0x10000
    """
    def wq_issue():
        A(f"""
        s_cmp_gt_u32 s{WV}, 1
        s_cbranch_scc1 L_nox
        """)
        A.optional(f"global_load_lds_dwordx4 v{G+2}, s[4:5]")
        A(f"""
        L_nox:
        s_lshl_b32 m0, s{WV}, 11
        s_add_u32 s{SWQ}, s10, s{KG}
        s_addc_u32 s{SWQ+1}, s11, 0
        """)
        A(f"buffer_load_dwordx4 v{G}, s[{SWQ}:{SWQ+3}], 0 offen {wflag} lds", "wq0")
        A(f"s_add_u32 m0, m0, 1024")
        A(f"buffer_load_dwordx4 v{G+1}, s[{SWQ}:{SWQ+3}], s{FG} offen {wflag} lds", "wq1")
        issued.extend(["wq0", "wq1"])
    A(PRO1)
    if not P["kfirst"]: A(PRO2)
    A(f"""
    s_waitcnt lgkmcnt(0)
    s_add_u32 s{SK}, s6, s{ST}
    s_addc_u32 s{SK+1}, s7, 0
    """)
    stamp("karg")

    stream = []
    for i in range(32):
        if i == P["idpos"]: stream += ["ID"]
        if i == hpos: stream += ["W10", "W11"]
        if i == gpos: stream += ["XG", "GW", "B1", "B2"]
        if i == qpos: stream += ["I2", "Q"]
        stream.append(f"K{i}")
    for j in range(32):
        if j == vpos: stream += (["H"] if P["late"] >= 2 else ["W2a", "W2b", "H"])
        if j == vpos and P["alias"]: stream.insert(len(stream) - 1, "rl")
        if j == vpos and P["race"]: stream.insert(len(stream) - 1, "vl")
        if j == P["rpos"] and P["rank"]: stream += ["rl", "rs"]
        if j == P["warmpos"]: stream += ["t" + c for c in P["warm"]]
        if j == P["wopos"] and not P["late"]: stream += ["WOa", "WOb"]
        stream.append(f"V{j}")
    if P["wopos"] >= 32 and not P["late"]: stream += ["WOa", "WOb"]
    done = set(); arrived = set(); issued = []
    isbig = lambda n: n[0] in "KV" or n[:2] == "WO"

    def tcode(t):
        m = {0: 0, 1: ((t & 1) << 1) | ((t >> 1) & 1) | (t & 4), 2: (t & 1) << 1, 3: t}[P["rot"]]
        return (t << 15) | (m << 12)
    def slot_free(i):
        return (f"KL{i}" if i < 32 else f"VL{i-32}") in done
    def issue(nm):
        if "L" + nm[:2] in P["skip"].split(","):
            arrived.add(nm)
        elif nm[0] == "K":
            i = int(nm[1:]); r = ring(i)
            A(f"buffer_load_dwordx4 v[{r}:{r+3}], v{VKP}, s[{SK}:{SK+3}], s{SOFF} offen offset:{(i%4)*1024} {kflag}", nm)
            if i % 4 == 3: A(f"s_xor_b32 s{SOFF}, s{SOFF}, {tcode(i//4) ^ tcode((i//4+1) % 8)}")
        elif nm[0] == "V":
            j = int(nm[1:]); r = ring(32 + j)
            assert 32 + j - NR < 0 or slot_free(32 + j - NR), nm
            A(f"buffer_load_dwordx4 v[{r}:{r+3}], v{VLIN}, s[{SV}:{SV+3}], s{SOFF} offen offset:{(j%4)*1024} {vflag}", nm)
            if j % 4 == 3 and j != 31: A(f"s_xor_b32 s{SOFF}, s{SOFF}, {tcode(j//4) ^ tcode(j//4+1)}")
        elif nm == "W10":
            A(f"s_lshl_b32 s3, s{WV}, 11")
            A(f"s_add_u32 m0, s3, {L_W1}")
            A(f"buffer_load_dwordx4 v{VW1A}, s[{SW1}:{SW1+3}], 0 offen {wflag} lds", nm)
        elif nm == "W11":
            A(f"s_add_u32 m0, m0, 1024")
            A(f"v_xor_b32 v{VW1A}, 64, v{VW1A}")
            A(f"s_movk_i32 s3, {8*3584}")
            A(f"buffer_load_dwordx4 v{VW1A}, s[{SW1}:{SW1+3}], s3 offen {wflag} lds", nm)
        elif nm == "XG":
            A(f"s_lshl_b32 s3, s{WV}, 10")
            A(f"v_add_u32 v{T0}, s3, v{VLIN}")
            A(f"global_load_dwordx4 v[{XG}:{XG+3}], v{T0}, s[4:5]", nm)
        elif nm == "GW":
            A(f"global_load_dwordx4 v[{XG+4}:{XG+7}], v{VLIN}, s[24:25]", nm)
        elif nm == "B1":
            A(f"v_lshlrev_b32 v{T0}, 3, v{VC}")
            A(f"v_lshl_add_u32 v{T0}, v{VS}, 5, v{T0}")
            A(f"buffer_load_dwordx2 v[{B1}:{B1+1}], v{T0}, s[{SB1}:{SB1+3}], 0 offen", nm)
        elif nm == "B2":
            A(f"""
            s_and_b32 s3, s{RR}, 15
            s_lshl_b32 s28, s{XI}, 4
            s_add_u32 s3, s3, s28
            s_lshl_b32 s3, s3, 3
            v_lshl_add_u32 v{T0}, v{VC}, 1, s3
            """)
            A(f"global_load_ushort v{B2}, v{T0}, s[22:23]", nm)
        elif nm[0] == "t":
            assert "TA" in done and "MD" in done
            d = T0 + 2
            if nm == "tw":
                A("s_mov_b64 exec, 1")
                A(f"buffer_load_dword v{d}, v{VWOA}, s[{SWO}:{SWO+3}], 0 offen {wflag}", nm)
                A("s_mov_b64 exec, -1")
            elif nm == "to":
                A("s_mov_b64 exec, 1")
                A(f"global_load_ushort v{d}, v{VOUT}, s[26:27]", nm)
                A("s_mov_b64 exec, -1")
            elif nm == "tp":
                A(f"v_mul_u32_u24 v{T0}, {PGS}, v{LANE}")
                A(f"v_add_u32 v{T0}, {WS_PG + 16384}, v{T0}")
                A(f"s_lshl_b64 exec, 0x0101, s{WV}")
                A(f"s_lshl_b32 exec_hi, exec_lo, 16")
                A(f"s_or_b32 exec_lo, exec_lo, exec_hi")
                A(f"s_mov_b32 exec_hi, exec_lo")
                A(f"global_load_dword v{d}, v{T0}, s[30:31]", nm)
                A("s_mov_b64 exec, -1")
            elif nm == "tg":
                A(f"global_load_dword v{d}, v{VOGL}, s[30:31] sc1", nm)
            elif nm == "ts":
                A(f"global_load_dword v{d}, v{VOGS}, s[30:31] sc1", nm)
        elif nm == "rl":
            assert "TA" in done
            if P["onew"]:
                A(f"s_cmp_lg_u32 s{WV}, 2\ns_cbranch_scc1 L_norl")
                A.optional(f"global_load_dword v{RK}, v{VRK}, s[30:31] offset:128 sc1")
                A("L_norl:")
            else:
                A(f"global_load_dword v{RK}, v{VRK}, s[30:31] offset:128 sc1", nm)
        elif nm == "vl":
            assert "SM" in done and "MD" not in done
            A(f"s_cmp_lg_u32 s{WV}, 1\ns_cbranch_scc1 L_novl")
            A(f"v_lshlrev_b32 v{QF+2}, 3, v{VC}")
            A(f"v_add_u32 v{QF+2}, {WS_VT}, v{QF+2}")
            A.optional(f"global_load_dwordx2 v[{QF}:{QF+1}], v{QF+2}, s[30:31] sc1")
            A("L_novl:")
        elif nm == "rs":
            A(f"s_add_u32 s84, s84, 128")
            A(f"s_addc_u32 s85, s85, 0")
            A(f"v_mov_b32 v{T0}, s{TAG}")
            A(f"buffer_store_dword v{T0}, v{VLIN}, s[84:87], 0 offen", nm)
        elif nm == "ID":
            A(f"global_load_dword v{YA}, v{VQT}, s[30:31] sc1", nm)
        elif nm == "I2":
            assert "PS" in done
            A(f"global_load_dword v{YA}, v{VQT}, s[30:31] sc1", nm)
        elif nm == "Q":
            A(f"global_load_dwordx4 v[{G}:{G+3}], v{VQA}, s[30:31] sc1", nm)
        elif nm == "W2a":
            A(f"s_lshl_b32 s3, s{WV}, 11")
            A(f"s_add_u32 m0, s3, {L_W2}")
            A(f"buffer_load_dwordx4 v{VW2A}, s[{SW2}:{SW2+3}], 0 offen {wflag} lds", nm)
        elif nm == "W2b":
            A(f"s_add_u32 m0, m0, 1024")
            A(f"s_movk_i32 s3, 4096")
            A(f"buffer_load_dwordx4 v{VW2A}, s[{SW2}:{SW2+3}], s3 offen {wflag} lds", nm)
        elif nm == "H":
            assert "QC" in done
            A(f"buffer_load_dwordx4 v[{G}:{G+3}], v{VHA}, s[{SHL}:{SHL+3}], 0 offen sc1", nm)
        elif nm == "WOa":
            A(f"s_lshl_b32 s3, s{WV}, 11")
            A(f"s_add_u32 m0, s3, {L_WO}")
            A(f"buffer_load_dwordx4 v{VWOA}, s[{SWO}:{SWO+3}], 0 offen {wflag} lds", nm)
        elif nm == "WOb":
            A(f"s_add_u32 m0, m0, 1024")
            A(f"s_movk_i32 s3, 4096")
            A(f"buffer_load_dwordx4 v{VWOA}, s[{SWO}:{SWO+3}], s3 offen {wflag} lds", nm)
        issued.append(nm)

    def wait(nm):
        if nm in arrived or nm not in A.vm: return
        A.wait_vm(nm)
        for x in issued[:issued.index(nm) + 1]: arrived.add(x)

    if not P["kfirst"]:
        A(f"s_load_dword s{TAG}, s[30:31], 0")
        wq_issue()
        if P["p0bar"]: A("s_barrier")
    pos = 0
    while pos < N0:
        assert isbig(stream[pos])
        issue(stream[pos]); pos += 1
    stamp("kiss")
    if P["kfirst"]:
        A(f"s_load_dword s{TAG}, s[30:31], 0")
        A(PRO2)
        wq_issue()
    if P["pg1"]:
        if P["pgw"]:
            A(f"""
            ; touch the later code pages once while the first loads are in flight
            s_cmp_eq_u32 s{WV}, 6
            s_cbranch_scc1 L_pg1_stub
            s_cmp_eq_u32 s{WV}, 7
            s_cbranch_scc1 L_pg2_stub
            """)
        A("L_pg_ret:")
    A(f"""
    v_and_b32 v{T0}, 1, v{VS}
    v_lshrrev_b32 v{T0+1}, 1, v{VR}
    v_lshl_or_b32 v{T0+1}, v{T0}, 1, v{T0+1}
    s_and_b32 s{FP}, s{WV}, 3
    v_xor_b32 v{T0+1}, s{FP}, v{T0+1}
    v_lshlrev_b32 v{VTRP}, 3, v{VC}
    v_lshl_add_u32 v{VTRP}, v{T0+1}, 5, v{VTRP}
    v_lshl_add_u32 v{VTRP}, v{VR}, 7, v{VTRP}
    v_lshl_add_u32 v{VTRP}, v{VS}, 10, v{VTRP}
    v_and_b32 v{T0+2}, 7, v{LANE}
    v_lshlrev_b32 v{VXA}, 8, v{T0+2}
    v_lshl_add_u32 v{VXA}, v{VS}, 4, v{VXA}
    v_add_u32 v{VXA}, {L_X}, v{VXA}
    v_bfe_u32 v{TT}, v{LANE}, 2, 3
    v_lshl_add_u32 v{VPERM}, v{VC}, 4, v{TT}
    v_lshlrev_b32 v{VPERM}, 2, v{VPERM}
    s_lshl_b32 s3, s{XI}, 16
    s_lshl_b32 s{SMASK}, s{RR}, 8
    s_add_u32 s3, s3, s{SMASK}
    s_lshl_b32 s{SMASK}, s{FP}, 6
    s_add_u32 s3, s3, s{SMASK}
    s_add_u32 s3, s3, {WS_QG}
    v_lshl_add_u32 v{VQP}, v{VC}, 4, s3
    v_lshl_add_u32 v{VQP}, v{TT}, 13, v{VQP}
    s_mov_b32 s{SMASK}, 0xffffff00
    s_mov_b32 s{SEL1}, 0x0c0c0400
    s_mov_b32 s{SEL2}, 0x05040100
    s_waitcnt lgkmcnt(0)
    s_add_u32 s{TAG}, s{TAG}, 0x9e3779b9
    v_mov_b32 v{TB+3}, s{TAG}
    v_bfe_u32 v{TB}, v{TB+3}, 0, 8
    v_bfe_u32 v{TB+1}, v{TB+3}, 8, 8
    v_bfe_u32 v{TB+2}, v{TB+3}, 16, 8
    v_lshrrev_b32 v{TB+3}, 24, v{TB+3}
    """)
    SETUP2 = f"""
    ; A frag address: L_HC + (l&7)*CRS + slab*16
    v_and_b32 v{T0+2}, 7, v{LANE}
    v_mul_u32_u24 v{VAF}, {CRS}, v{T0+2}
    v_lshl_add_u32 v{VAF}, v{VS}, 4, v{VAF}
    v_add_u32 v{VAF}, {L_HC}, v{VAF}
    ; compact write address: L_QC + wv*128 + slab*32 + c*8
    s_lshl_b32 s3, s{WV}, 7
    s_add_u32 s3, s3, {L_QC}
    v_lshl_add_u32 v{VCW}, v{VC}, 3, s3
    v_lshl_add_u32 v{VCW}, v{VS}, 5, v{VCW}
    s_add_u32 s{SV}, s8, s{ST}
    s_addc_u32 s{SV+1}, s9, 0
    s_mov_b32 s{SV+2}, 0x40000
    s_mov_b32 s{SV+3}, 0x20000
    s_mov_b32 s{SW1+3}, 0x20000
    s_mov_b32 s{SWO+3}, 0x20000
    s_mov_b32 s{SW2+3}, 0x20000
    s_mov_b32 s{SHS+3}, 0x20000
    s_mov_b32 s{SHL+3}, 0x20000
    s_mov_b32 s{SB1+3}, 0x20000
    s_lshl_b32 s{FG}, s{BB}, 3
    s_add_u32 s{FG}, s{FG}, s{XI}
    s_lshl_b32 s{KG}, s{XI}, 3
    s_add_u32 s{KG}, s{KG}, s{BB}
    s_sub_u32 s{FP}, s{FG}, 32
    s_cmp_lt_u32 s{FP}, 28
    s_cselect_b32 s{FP}, s{FP}, 0
    s_cselect_b32 s{SW1+2}, {128*3584}, 0
    s_cselect_b32 s{SHS+2}, 8192, 0
    s_mul_i32 s3, s{SS}, {128*3584}
    s_lshl_b32 s28, s{FP}, 7
    s_add_u32 s3, s3, s28
    s_add_u32 s{SW1}, s16, s3
    s_addc_u32 s{SW1+1}, s17, 0
    s_lshl_b32 s3, s{FP}, 13
    s_add_u32 s3, s3, {WS_HG}
    s_add_u32 s{SHS}, s30, s3
    s_addc_u32 s{SHS+1}, s31, 0
    s_lshl_b32 s3, s{KG}, 16
    s_lshl_b32 s28, s{SS}, 8
    s_add_u32 s3, s3, s28
    s_add_u32 s{SWO}, s12, s3
    s_addc_u32 s{SWO+1}, s13, 0
    s_sub_u32 s{SWO+2}, 0x400000, s3
    s_cmp_lt_u32 s{FG}, 28
    s_cselect_b32 s{FG}, s{FG}, 0
    s_cselect_b32 s{SW2+2}, {63*1024+256}, 0
    s_cselect_b32 s{SHL+2}, 8192, 0
    s_cselect_b32 s{SB1+2}, 128, 0
    s_cselect_b32 s{HTAG}, s{TAG}, 0
    s_lshl_b32 s3, s{FG}, 16
    s_add_u32 s3, s3, s28
    s_add_u32 s{SW2}, s20, s3
    s_addc_u32 s{SW2+1}, s21, 0
    s_lshl_b32 s3, s{FG}, 13
    s_add_u32 s3, s3, {WS_HG}
    s_add_u32 s{SHL}, s30, s3
    s_addc_u32 s{SHL+1}, s31, 0
    s_lshl_b32 s3, s{FG}, 7
    s_add_u32 s{SB1}, s18, s3
    s_addc_u32 s{SB1+1}, s19, 0
    s_mov_b32 s{SC}, {hex(f2u(LOG2E * 128 ** -0.5))}
    v_and_b32 v{T0}, 1, v{LANE}
    v_lshlrev_b32 v{T0}, 4, v{T0}
    v_mov_b32 v{T0+1}, 0xffff
    v_lshlrev_b32 v{T0}, v{T0}, v{T0+1}
    v_bfe_i32 v{T0+1}, v{LANE}, 1, 1
    v_and_b32 v{MY}, v{T0}, v{T0+1}
    v_xor_b32 v{MX}, v{T0}, v{MY}
    v_mov_b32 v{T0}, s{SC}
    v_cmp_eq_u32 vcc, 0, v{VC}
    v_cndmask_b32 v{CM}, 0, v{T0}, vcc
    v_cmp_eq_u32 vcc, 1, v{VC}
    v_cndmask_b32 v{CM+1}, 0, v{T0}, vcc
    v_cmp_eq_u32 vcc, 2, v{VC}
    v_cndmask_b32 v{CM+2}, 0, v{T0}, vcc
    v_cmp_eq_u32 vcc, 3, v{VC}
    v_cndmask_b32 v{CM+3}, 0, v{T0}, vcc
    s_and_b32 s{CB}, s{WV}, {3 if SPL else 7}
    s_lshl_b32 s{CB}, s{CB}, {1 if SPL else 0}
    v_and_b32 v{T0}, 1, v{VS}
    v_lshl_or_b32 v{T0+1}, v{VR}, 1, v{T0}
    v_xor_b32 v{T0+1}, s{CB}, v{T0+1}
    v_lshlrev_b32 v{VTRWO}, 3, v{VC}
    v_lshl_add_u32 v{VTRWO}, v{T0+1}, 5, v{VTRWO}
    v_lshl_add_u32 v{VTRWO}, v{VR}, 11, v{VTRWO}
    v_lshl_add_u32 v{VTRWO}, v{VS}, 9, v{VTRWO}
    v_lshl_or_b32 v{T0+1}, v{T0}, 2, v{VR}
    v_xor_b32 v{T0+1}, s{CB}, v{T0+1}
    v_lshlrev_b32 v{VTRW2}, 3, v{VC}
    v_lshl_add_u32 v{VTRW2}, v{T0+1}, 5, v{VTRW2}
    v_lshl_add_u32 v{VTRW2}, v{VR}, 8, v{VTRW2}
    v_lshl_add_u32 v{VTRW2}, v{VS}, 11, v{VTRW2}
    ; gather offsets: h: wv*1024 + VKP ; q: QG + (hkv*8+b)*8192 + wv*1024 + VKP
    s_lshl_b32 s3, s{WV}, 10
    v_add_u32 v{VHA}, s3, v{VKP}
    s_lshl_b32 s3, s{XI}, 3
    s_add_u32 s3, s3, s{BB}
    s_lshl_b32 s3, s3, 13
    s_add_u32 s3, s3, {WS_QG}
    v_add_u32 v{VQA}, s3, v{VHA}
    s_and_b32 s3, s{WV}, 3
    s_lshl_b32 s3, s3, 2
    v_lshrrev_b32 v{T0}, 5, v{LANE}
    v_lshl_or_b32 v{T0}, v{T0}, 1, s3
    v_and_b32 v{T0+1}, 15, v{LANE}
    v_xor_b32 v{T0}, v{T0}, v{T0+1}
    s_lshl_b32 s3, s{WV}, 13
    v_lshl_add_u32 v{VW2A}, v{VS}, 10, s3
    v_lshl_add_u32 v{VWOA}, v{T0}, 4, v{VW2A}
    s_and_b32 s3, s{WV}, 1
    s_lshl_b32 s3, s3, 3
    v_lshl_or_b32 v{T0}, v{VS}, 1, s3
    v_xor_b32 v{T0}, v{T0}, v{T0+1}
    v_lshl_add_u32 v{VW2A}, v{T0}, 4, v{VW2A}
    """
    IDPUB = f"""
    s_lshr_b32 s3, s{TAG}, 24
    s_add_u32 s3, s3, 0x40
    s_and_b32 s3, s3, 0xff
    s_and_b32 s{OTAG}, s{TAG}, s{SMASK}
    s_or_b32 s{OTAG}, s{OTAG}, s3
    s_getreg_b32 s{XCC2}, hwreg(HW_REG_XCC_ID, 0, 4)
    s_lshl_b32 s3, s{XI}, 8
    s_add_u32 s3, s3, {WS_ID}
    v_and_b32 v{T0}, 31, v{LANE}
    v_lshl_add_u32 v{VQT}, v{T0}, 2, s3
    s_xor_b32 s{XCC2}, s{XCC2}, s{TAG}
    s_lshl_b32 s28, s{RR}, 2
    s_add_u32 s3, s3, s28
    s_add_u32 s84, s30, s3
    s_addc_u32 s85, s31, 0
    s_mov_b32 s86, 4
    s_mov_b32 s87, 0x20000
    v_mov_b32 v{T0+1}, s{XCC2}
    """
    A(IDPUB)
    VOTE = 43
    DEC = 89
    def racepre():
        assert P["race"] == 1
        A(f"""
        s_sub_u32 s{DEC}, s2, {28*8+4}
        s_lshr_b32 s3, s{DEC}, 3
        s_and_b32 s{DEC}, s{DEC}, 7
        s_cmp_eq_u32 s{DEC}, 0
        s_cselect_b32 s{DEC}, s3, 99
        s_cmp_gt_u32 s{DEC}, 3
        s_cbranch_scc1 L_nopre
        s_lshl3_add_u32 s{VOTE}, s{DEC}, s{WV}
        s_lshl_b32 s{VOTE}, s{VOTE}, 7
        s_add_u32 s{VOTE}, s{VOTE}, {WS_RC}
        v_lshl_add_u32 v{T0}, v{LANE}, 13, s{VOTE}
        v_mov_b32 v{T0+1}, s{TAG}
        s_mov_b64 exec, 3
        """)
        A.optional(f"global_store_dword v{T0}, v{T0+1}, s[30:31] sc1")
        A(f"""
        s_mov_b64 exec, -1
        L_nopre:
        """)
    def race():
        A(f"""
        s_cmp_gt_u32 s{DEC}, 3
        s_cbranch_scc1 L_norace
        s_and_b32 s28, s{WV}, 1
        s_lshl_b32 s28, s28, 13
        s_add_u32 s28, s28, s{VOTE}
        s_xor_b32 s29, s28, 0x2000
        s_not_b32 s17, s{TAG}
        s_load_dword s16, s[30:31], s28
        s_load_dword s17, s[30:31], s29
        s_waitcnt lgkmcnt(1)
        s_cmp_lg_u32 s17, s{TAG}
        s_cselect_b32 s{VOTE}, 1, 0
        s_waitcnt lgkmcnt(0)
        """)
        A(f"""
        s_sub_u32 s3, 0, s{VOTE}
        s_bitcmp1_b32 s{WV}, 0
        s_cselect_b32 s{VOTE}, s3, s{VOTE}
        s_lshl_b32 s3, s{WV}, 2
        s_add_u32 s3, s3, {L_LF}
        v_mov_b32 v{T0}, s3
        v_mov_b32 v{T0+1}, s{VOTE}
        ds_write_b32 v{T0}, v{T0+1}
        s_waitcnt lgkmcnt(0)
        L_norace:
        """)
    def votepub():
        A(f"""
        s_cmp_lg_u32 s{WV}, 5
        s_cbranch_scc1 L_novote
        s_cmp_gt_u32 s{DEC}, 3
        s_cbranch_scc1 L_novote
        v_mov_b32 v{T0}, {L_LF}
        ds_read_b128 v[{TT}:{TT+3}], v{T0}
        ds_read_b128 v[{TT+4}:{TT+7}], v{T0} offset:16
        s_lshl_b32 s3, s{DEC}, 3
        s_add_u32 s3, s3, {WS_VT}
        v_mov_b32 v{T0}, s3
        s_waitcnt lgkmcnt(0)
        v_add3_u32 v{TT+1}, v{TT}, v{TT+1}, v{TT+2}
        v_add3_u32 v{TT+3}, v{TT+3}, v{TT+4}, v{TT+5}
        v_add3_u32 v{TT+1}, v{TT+1}, v{TT+6}, v{TT+7}
        v_add_u32 v{TT+1}, v{TT+1}, v{TT+3}
        v_mov_b32 v{TT}, s{TAG}
        s_mov_b64 exec, 1
        """)
        A.optional(f"global_store_dwordx2 v{T0}, v[{TT}:{TT+1}], s[30:31] sc1")
        A("""
        s_mov_b64 exec, -1
        L_novote:
        """)
    if not P["idlate"]:
        A(f"buffer_store_dword v{T0+1}, v{VLIN}, s[84:87], 0 offen", "idst")
        issued.append("idst")
    A(SETUP2)
    if P["prio"]:
        A(f"""
        s_cmp_lt_u32 s{WV}, 4
        s_cbranch_scc1 L_prio
        s_setprio {P["prio"]}
        L_prio:
        """)
    stamp("setup")

    def p0tile(lw):
        W = TT; XR = TT + 16; D = KD
        for u in range(4):
            A(f"ds_read_b128 v[{XR+4*u}:{XR+4*u+3}], v{VXA} offset:{u*64}")
            for hf in range(2):
                A(f"ds_read_b64_tr_b16 v[{W+4*u+hf*2}:{W+4*u+hf*2+1}], v{VTRP} offset:{lw + u*4096 + hf*512}")
        for u in range(4):
            A(f"s_waitcnt lgkmcnt({9-3*u})")
            c = "0" if u == 0 else f"v[{D}:{D+3}]"
            A(f"v_mfma_f32_16x16x32_bf16 v[{D}:{D+3}], v[{W+4*u}:{W+4*u+3}], v[{XR+4*u}:{XR+4*u+3}], {c}")
        for r in range(4):
            A(f"v_and_or_b32 v{D+r}, v{D+r}, s{SMASK}, v{TB+r}")
        for r in range(4):
            A(f"ds_bpermute_b32 v{D+4+r}, v{VPERM}, v{D+r}")
        A("s_waitcnt lgkmcnt(0)")

    def pubstore(lbl, ins):
        A(f"""
        s_mov_b32 exec_hi, 0
        s_cmp_eq_u32 s{LOCAL}, 0
        s_cbranch_scc1 L_{lbl}_loc
        """)
        A.optional(ins + " sc1")
        A(f"""
        s_branch L_{lbl}_st
        L_{lbl}_loc:
        """)
        A.optional(ins + " " + P["qhl"])
        A(f"""
        L_{lbl}_st:
        s_mov_b32 exec_hi, -1
        s_nop 1
        """)

    def pbar():
        wait("wq1")
        stamp("x1")
        if P["idlate"]:
            A(f"""
            s_cmp_lg_u32 s{WV}, 4
            s_cbranch_scc1 L_noid
            v_mov_b32 v{T0+1}, s{XCC2}
            """)
            A.optional(f"buffer_store_dword v{T0+1}, v{VLIN}, s[84:87], 0 offen")
            A("L_noid:")
        A("s_barrier")
        stamp("bar1")
        if stamps: A("s_waitcnt lgkmcnt(0)")
        A(f"""
        s_cmp_gt_u32 s{WV}, 3
        s_cbranch_scc1 L_p0_done
        """)
        p0tile(L_WQ)
        A("L_p0_done:")
        if P["race"]: racepre()
        if P["pt"]:
            A(f"""
            s_cmp_lg_u32 s{WV}, 7
            s_cbranch_scc1 L_nopt
            s_mov_b64 exec, 1
            """)
            for c in P["pt"]:
                srd = dict(v=SV, o=SWO, w=SW2, u=SW1, b=SB1).get(c)
                if srd: A.optional(f"buffer_load_dword v{T0+2}, v{VLIN}, s[{srd}:{srd+3}], 0 offen nt")
                else:
                    p = dict(g=24, c=22, d=26)[c]
                    A.optional(f"global_load_dword v{T0+2}, v{VLIN}, s[{p}:{p+1}]")
            A(f"""
            s_mov_b64 exec, -1
            L_nopt:
            """)
        stamp("p0done")

    def qpub():
        A(f"""
        v_cmp_ne_u32 vcc, s{XCC2}, v{YA}
        {"s_and_b32" if P["forcelocal"] else "s_or_b32"} s{LOCAL}, vcc_lo, {0 if P["local"] else 1}
        s_cmp_gt_u32 s{WV}, 3
        s_cbranch_scc1 L_qp_done
        """)
        pubstore("qp", f"global_store_dwordx4 v{VQP}, v[{KD+4}:{KD+7}], s[30:31]")
        A("L_qp_done:")
        if P["race"] and P["racelate"]:
            A("s_waitcnt lgkmcnt(0)")
            race()
        stamp("qpub")

    def tagcheck(lbl, tagreg, reload):
        C = TT
        A(f"""
        s_mov_b32 s{CNT}, {spin}
        L_{lbl}_chk:
        v_perm_b32 v{C}, v{G+1}, v{G}, s{SEL1}
        v_perm_b32 v{C+1}, v{G+3}, v{G+2}, s{SEL1}
        v_perm_b32 v{C}, v{C+1}, v{C}, s{SEL2}
        v_cmp_ne_u32 vcc, s{tagreg}, v{C}
        s_cbranch_vccz L_{lbl}_ok
        s_sub_u32 s{CNT}, s{CNT}, 1
        s_cbranch_scc1 L_{lbl}_ok
        """)
        A.optional(reload)
        A(f"""
        s_waitcnt vmcnt(0)
        s_branch L_{lbl}_chk
        L_{lbl}_ok:
        """)
        for r in range(4):
            A(f"v_and_b32 v{G+r}, s{SMASK}, v{G+r}")
        for ror in (8, 4):
            for r in range(4):
                A(f"v_add_f32_dpp v{G+r}, v{G+r}, v{G+r} row_ror:{ror} {dpp}")

    def qcomb():
        stamp("qarr")
        tagcheck("q", TAG, f"global_load_dwordx4 v[{G}:{G+3}], v{VQA}, s[30:31] sc1")
        A(f"""
        v_cvt_pk_bf16_f32 v{G}, v{G}, v{G+1}
        v_cvt_pk_bf16_f32 v{G+1}, v{G+2}, v{G+3}
        v_cmp_ne_u32 vcc, s{XCC2}, v{YA}
        ds_write_b64 v{VCW}, v[{G}:{G+1}]
        {"s_and_b32" if P["forcelocal"] else "s_or_b32"} s{LOCAL}, vcc_lo, {0 if P["local"] else 1}
        s_mul_i32 s3, s{WV}, {CRS - 128}
        s_add_u32 s3, s3, {L_HC - L_QC}
        v_add_u32 v{VCW}, s3, v{VCW}
        """)
        stamp("qgot")

    def qbar():
        assert "W11" in arrived
        A(f"""
        s_waitcnt lgkmcnt(0)
        s_barrier
        v_add_u32 v{T0}, {L_QC}, v{VKP}
        ds_read_b128 v[{QF}:{QF+3}], v{T0}
        """)
        if P["alias"]:
            A(f"""
            ; this workgroup has read its q granules: their slots may now be reused
            s_cmp_lg_u32 s{WV}, 3
            s_cbranch_scc1 L_ct_done
            s_add_u32 s84, s84, 128
            s_addc_u32 s85, s85, 0
            v_mov_b32 v{T0+1}, s{TAG}
            """)
            pubstore("ct", f"buffer_store_dword v{T0+1}, v{VLIN}, s[84:87], 0 offen")
            A("L_ct_done:")
        A(f"""
        s_cmp_lt_u32 s{WV}, 4
        s_cselect_b32 s3, 0, s{SHS+2}
        s_waitcnt lgkmcnt(0)
        s_cmp_eq_u32 s3, 0
        s_cbranch_scc1 L_h_done
        s_lshl_b32 s3, s{SS}, 8
        s_and_b32 s28, s{WV}, 3
        s_lshl_b32 s28, s28, 6
        s_add_u32 s3, s3, s28
        v_bfe_u32 v{T0+1}, v{LANE}, 2, 3
        v_lshl_add_u32 v{T0}, v{VC}, 4, s3
        v_lshl_add_u32 v{T0}, v{T0+1}, 10, v{T0}
        """)
        p0tile(L_W1)
        pubstore("hp", f"buffer_store_dwordx4 v[{KD+4}:{KD+7}], v{T0}, s[{SHS}:{SHS+3}], 0 offen")
        A("L_h_done:")
        if P["race"] and P["racelate"]: votepub()
        stamp("qready")

    def xreduce(reg, tmp, op):
        A(f"""
        v_mov_b32 v{tmp}, v{reg}
        v_permlane32_swap_b32 v{reg}, v{tmp}
        {op} v{reg}, v{reg}, v{tmp}
        v_mov_b32 v{tmp}, v{reg}
        v_permlane16_swap_b32 v{reg}, v{tmp}
        {op} v{reg}, v{reg}, v{tmp}
        """)

    def gate():
        A(f"v_dot2_f32_bf16 v{GV}, v{XG}, v{XG+4}, 0")
        for i in range(1, 4):
            A(f"v_dot2_f32_bf16 v{GV}, v{XG+i}, v{XG+4+i}, v{GV}")
        A(f"""
        v_add_f32_dpp v{GV}, v{GV}, v{GV} quad_perm:[1,0,3,2] {dpp}
        v_add_f32_dpp v{GV}, v{GV}, v{GV} quad_perm:[2,3,0,1] {dpp}
        v_add_f32_dpp v{GV}, v{GV}, v{GV} row_ror:8 {dpp}
        v_add_f32_dpp v{GV}, v{GV}, v{GV} row_ror:4 {dpp}
        """)
        xreduce(GV, T0, "v_add_f32")
        A(f"""
        v_mul_f32 v{GV}, {hex(f2u(-LOG2E))}, v{GV}
        v_exp_f32 v{GV}, v{GV}
        s_lshl_b32 s3, s{WV}, 2
        s_add_u32 s3, s3, {L_GT}
        v_add_f32 v{GV}, 1.0, v{GV}
        v_mov_b32 v{T0}, s3
        v_rcp_f32 v{GV}, v{GV}
        s_nop 0
        ds_write_b32 v{T0}, v{GV}
        """)

    def hcomb():
        if P["alias"]:
            A(f"""
            {f"s_cmp_lg_u32 s{WV}, 2" if P["onew"] else "s_cmp_lg_u32 s2, s2"}
            s_cbranch_scc1 L_c_ok
            s_mov_b32 s{CNT}, {spin}
            L_c_chk:
            v_cmp_ne_u32 vcc, s{TAG}, v{RK}
            s_cbranch_vccz L_c_ok
            s_sub_u32 s{CNT}, s{CNT}, 1
            s_cbranch_scc1 L_c_ok
            """)
            A.optional(f"global_load_dword v{RK}, v{VRK}, s[30:31] offset:128 sc1")
            A(f"""
            s_waitcnt vmcnt(0)
            s_branch L_c_chk
            L_c_ok:
            """)
        if P["race"]:
            A(f"""
            s_cmp_lg_u32 s{WV}, 1
            s_cbranch_scc1 L_v_done
            s_mov_b32 s{CNT}, {spin}
            L_v_chk:
            v_cmp_ne_u32 vcc, s{TAG}, v{QF}
            s_cbranch_vccz L_v_ok
            s_sub_u32 s{CNT}, s{CNT}, 1
            s_cbranch_scc1 L_v_ok
            """)
            A.optional(f"global_load_dwordx2 v[{QF}:{QF+1}], v{QF+2}, s[30:31] sc1")
            A(f"""
            s_waitcnt vmcnt(0)
            s_branch L_v_chk
            L_v_ok:
            v_add_u32_dpp v{QF+1}, v{QF+1}, v{QF+1} quad_perm:[1,0,3,2] {dpp}
            v_add_u32_dpp v{QF+1}, v{QF+1}, v{QF+1} quad_perm:[2,3,0,1] {dpp}
            ; deciders sit in groups 4..7, whose lines have bit13 = 1: flip when that side looked far
            v_sub_u32 v{QF+1}, {1 if P["raceinv"] else 0}, v{QF+1}
            v_lshrrev_b32 v{QF+1}, 31, v{QF+1}
            v_lshlrev_b32 v{QF+1}, 13, v{QF+1}
            """)
            if P["raceinv"]: A(f"v_xor_b32 v{QF+1}, 0x2000, v{QF+1}")
            A(f"""
            v_mov_b32 v{QF}, {L_LF}
            ds_write_b32 v{QF}, v{QF+1}
            L_v_done:
            """)
        tagcheck("h", HTAG, f"buffer_load_dwordx4 v[{G}:{G+3}], v{VHA}, s[{SHL}:{SHL+3}], 0 offen sc1")
        c1 = math.sqrt(2 / math.pi)
        k1 = -2 * c1 * LOG2E; k3 = k1 * 0.044715
        U = TT + 8
        A(f"""
        v_lshlrev_b32 v{TT}, 16, v{B1}
        v_and_b32 v{TT+1}, 0xffff0000, v{B1}
        v_lshlrev_b32 v{TT+2}, 16, v{B1+1}
        v_and_b32 v{TT+3}, 0xffff0000, v{B1+1}
        v_mov_b32 v{TT+4}, {hex(f2u(k1))}
        v_sub_f32 v{TT+5}, 1.0, v{GV}
        """)
        for r in range(4): A(f"v_add_f32 v{G+r}, v{G+r}, v{TT+r}")
        for r in range(4): A(f"v_mul_f32 v{U+r}, v{G+r}, v{G+r}")
        for r in range(4): A(f"v_fmamk_f32 v{U+r}, v{U+r}, {hex(f2u(k3))}, v{TT+4}")
        for r in range(4): A(f"v_mul_f32 v{U+r}, v{U+r}, v{G+r}")
        for r in range(4): A(f"v_exp_f32 v{U+r}, v{U+r}")
        for r in range(4): A(f"v_add_f32 v{U+r}, 1.0, v{U+r}")
        for r in range(4): A(f"v_rcp_f32 v{U+r}, v{U+r}")
        for r in range(4): A(f"v_mul_f32 v{G+r}, v{G+r}, v{TT+5}")
        for r in range(4): A(f"v_mul_f32 v{G+r}, v{G+r}, v{U+r}")
        A(f"""
        v_cvt_pk_bf16_f32 v{G}, v{G}, v{G+1}
        v_cvt_pk_bf16_f32 v{G+1}, v{G+2}, v{G+3}
        ds_write_b64 v{VCW}, v[{G}:{G+1}]
        """)

    pend = []
    def kextract():
        i = pend.pop(0); t = i % 4; d = KD + 4 * (i % 2)
        for c in range(4):
            op = "v_mul_f32_dpp" if t == 0 else "v_fmac_f32_dpp"
            A(f"{op} v{YA+c}, v{d+c}, v{CM+t} quad_perm:[{c},{c},{c},{c}] {dpp}")
        if t == 3:
            A(f"v_add_f32 v{T0}, v{YA}, v{YA+1}")
            A(f"v_add_f32 v{T0+1}, v{YA+2}, v{YA+3}")
            A(f"v_add_f32 v{SP + i//4}, v{T0}, v{T0+1}")
    def kload(i):
        r = ring(i); d = KD + 4 * (i % 2)
        A(f"v_mfma_f32_16x16x32_bf16 v[{d}:{d+3}], v[{r}:{r+3}], v[{QF}:{QF+3}], 0")
        if pend: kextract()
        pend.append(i)

    def qreduce(reg, op):
        A(f"{op}_dpp v{reg}, v{reg}, v{reg} quad_perm:[1,0,3,2] {dpp}")
        A(f"{op}_dpp v{reg}, v{reg}, v{reg} quad_perm:[2,3,0,1] {dpp}")

    def softmax():
        while pend: kextract()
        m = TT
        A(f"""
        v_max3_f32 v{m}, v{SP}, v{SP+1}, v{SP+2}
        v_max3_f32 v{m+1}, v{SP+3}, v{SP+4}, v{SP+5}
        v_max3_f32 v{m}, v{m}, v{SP+6}, v{SP+7}
        v_max_f32 v{MREG}, v{m}, v{m+1}
        """)
        qreduce(MREG, "v_max_f32")
        xreduce(MREG, m, "v_max_f32")
        for i in range(8): A(f"v_sub_f32 v{SP+i}, v{SP+i}, v{MREG}")
        for i in range(8): A(f"v_exp_f32 v{SP+i}, v{SP+i}")
        for i in range(4): A(f"v_add_f32 v{m+i}, v{SP+2*i}, v{SP+2*i+1}")
        A(f"v_add_f32 v{m}, v{m}, v{m+1}")
        A(f"v_add_f32 v{m+2}, v{m+2}, v{m+3}")
        for i in range(4): A(f"v_cvt_pk_bf16_f32 v{SP+i}, v{SP+i}, v{SP+i}")
        A(f"v_add_f32 v{m}, v{m}, v{m+2}")
        for i in range(4, 8): A(f"v_cvt_pk_bf16_f32 v{SP+i}, v{SP+i}, v{SP+i}")
        qreduce(m, "v_add_f32")
        xreduce(m, m + 1, "v_add_f32")
        A(f"""
        s_lshl_b32 s3, s{WV}, 2
        s_add_u32 s3, s3, {L_ML}
        v_lshl_add_u32 v{m+2}, v{VR}, 5, s3
        ds_write_b32 v{m+2}, v{MREG}
        ds_write_b32 v{m+2}, v{m} offset:128
        """)

    def vprep(j):
        x = XY + 2 * (j % 2); t = j % 4
        A(f"v_and_b32_dpp v{x}, v{SP + j//4}, v{MX} quad_perm:[{t},{t},{t},{t}] {dpp}")
        A(f"v_and_b32_dpp v{x+1}, v{SP + j//4}, v{MY} quad_perm:[{t},{t},{t},{t}] {dpp}")
    def vload(j):
        x = XY + 2 * (j % 2); r = ring(32 + j)
        for eh in range(2):
            o = OA + 4 * eh
            c = "0" if j == 0 else f"v[{o}:{o+3}]"
            A(f"v_mfma_f32_16x16x16_bf16 v[{o}:{o+3}], v[{r+2*eh}:{r+2*eh+1}], v[{x}:{x+1}], {c}")

    HF = KD
    W2F = 128
    def ffn2_reads(wa, wb):
        for u in range(2):
            for hf in range(2):
                A(f"ds_read_b64_tr_b16 v[{wa+4*u+2*hf}:{wa+4*u+2*hf+1}], v{VTRW2} offset:{L_W2 + u*8192 + hf*1024}")
        if SPL:
            for u in range(2):
                for hf in range(2):
                    A(f"ds_read_b64_tr_b16 v[{wb+4*u+2*hf}:{wb+4*u+2*hf+1}], v{VTRW2B} offset:{L_W2 + u*8192 + hf*1024}")
    def ffn2_mfma(wa, wb):
        A(f"""
        v_mfma_f32_16x16x32_bf16 v[{D2}:{D2+3}], v[{HF}:{HF+3}], v[{wa}:{wa+3}], 0
        v_mfma_f32_16x16x32_bf16 v[{D2}:{D2+3}], v[{HF+4}:{HF+7}], v[{wa+4}:{wa+7}], v[{D2}:{D2+3}]
        """)
        if SPL:
            A(f"""
            v_mfma_f32_16x16x32_bf16 v[{D2B}:{D2B+3}], v[{HF}:{HF+3}], v[{wb}:{wb+3}], 0
            v_mfma_f32_16x16x32_bf16 v[{D2B}:{D2B+3}], v[{HF+4}:{HF+7}], v[{wb+4}:{wb+7}], v[{D2B}:{D2B+3}]
            """)
    def wo_reads():
        for u in range(2):
            for hf in range(2):
                A(f"ds_read_b64_tr_b16 v[{WF+4*u+2*hf}:{WF+4*u+2*hf+1}], v{VTRWO} offset:{L_WO + u*8192 + hf*256}")
            if SPL:
                for hf in range(2):
                    A(f"ds_read_b64_tr_b16 v[{WF2+4*u+2*hf}:{WF2+4*u+2*hf+1}], v{VTRWOB} offset:{L_WO + u*8192 + hf*256}")
    VTRW2B, VTRWOB = B1, B1 + 1
    def mid():
        assert P["late"] >= 2 or "W2b" in arrived
        m = TT
        GF = TT + 24
        A(f"""
        v_xor_b32 v{VTRW2B}, 32, v{VTRW2}
        v_xor_b32 v{VTRWOB}, 32, v{VTRWO}
        s_waitcnt lgkmcnt(0)
        s_barrier
        v_lshlrev_b32 v{T0}, 5, v{VR}
        v_add_u32 v{T0}, {L_ML}, v{T0}
        ds_read_b128 v[{m}:{m+3}], v{T0}
        ds_read_b128 v[{m+4}:{m+7}], v{T0} offset:16
        ds_read_b128 v[{m+8}:{m+11}], v{T0} offset:128
        ds_read_b128 v[{m+12}:{m+15}], v{T0} offset:144
        ds_read_b128 v[{HF}:{HF+3}], v{VAF}
        ds_read_b128 v[{HF+4}:{HF+7}], v{VAF} offset:64
        ds_read_b32 v{GF}, v{VQA}
        """)
        if P["race"]:
            A(f"v_mov_b32 v{GF+1}, {L_LF}")
            A(f"ds_read_b32 v{GF+1}, v{GF+1}")
        if P["late"] < 2: ffn2_reads(WF, WF2)
        M = T0 + 1
        A("s_waitcnt lgkmcnt(0)")
        if P["late"] < 2: ffn2_mfma(WF, WF2)
        if P["race"]:
            A(f"v_xor_b32 v{VPGS}, v{GF+1}, v{VPGS}")
            A(f"v_xor_b32 v{VPGL}, v{GF+1}, v{VPGL}")
        A(f"""
        v_max3_f32 v{M}, v{m}, v{m+1}, v{m+2}
        v_max3_f32 v{M}, v{M}, v{m+3}, v{m+4}
        v_max3_f32 v{M}, v{M}, v{m+5}, v{m+6}
        v_max_f32 v{M}, v{M}, v{m+7}
        """)
        for w in range(8):
            A(f"v_sub_f32 v{m+w}, v{m+w}, v{M}")
        A(f"v_sub_f32 v{FAC}, v{MREG}, v{M}")
        for w in range(8):
            A(f"v_exp_f32 v{m+w}, v{m+w}")
        A(f"v_exp_f32 v{FAC}, v{FAC}")
        A(f"v_mul_f32 v{m}, v{m}, v{m+8}")
        for w in range(1, 8):
            A(f"v_fmac_f32 v{m}, v{m+w}, v{m+8+w}")
        A(f"""
        v_rcp_f32 v{m+1}, v{m}
        v_log_f32 v{m+2}, v{m}
        v_mul_f32 v{FAC}, v{FAC}, v{m+1}
        v_add_f32 v{m+2}, v{m+2}, v{M}
        v_lshlrev_b32 v{m+3}, 2, v{VR}
        v_add_u32 v{m+3}, {L_LSE}, v{m+3}
        ds_write_b32 v{m+3}, v{m+2}
        v_sub_f32 v{GF}, 1.0, v{GF}
        v_lshlrev_b32 v{B2}, 16, v{B2}
        v_mul_f32 v{B2}, v{B2}, v{GF}
        """)

    def tailaddr():
        m = TT; BI = TT + 8
        A(f"""
        v_and_b32 v{T0}, 1, v{VS}
        v_lshlrev_b32 v{T0}, 1, v{T0}
        v_lshrrev_b32 v{BI}, 1, v{VS}
        v_or_b32 v{BI}, v{BI}, v{T0}
        s_lshr_b32 s3, s{RR}, 4
        s_lshl_b32 s3, s3, 2
        v_add_u32 v{BI}, s3, v{BI}
        v_lshlrev_b32 v{T0}, 2, v{BI}
        v_add_u32 v{VQA}, {L_GT}, v{T0}
        v_mov_b32 v{VRK}, v{VQT}
        """)
        if P["late"] and P["lw"] == 4:
            A(f"v_and_b32 v{VWOA}, 0x7fff, v{VWOA}")
            if P["late"] >= 2: A(f"v_and_b32 v{VW2A}, 0x7fff, v{VW2A}")
        A(f"""
        s_mul_i32 s3, s{WV}, {OPS}
        s_add_u32 s3, s3, {L_OP}
        v_add_u32 v{VOPW}, s3, v{VLIN}
        s_lshr_b32 s3, s{WV}, 1
        s_lshl_b32 s28, s3, 6
        s_lshl_b32 s3, s3, 2
        s_add_u32 s3, s3, {L_LSE}
        v_mov_b32 v{VLSE}, s3
        s_and_b32 s3, s{WV}, 1
        s_lshl_b32 s3, s3, 9
        s_add_u32 s3, s3, s28
        s_add_u32 s3, s3, {L_OP}
        v_lshl_add_u32 v{VOPR}, v{VC}, 4, s3
        v_mul_u32_u24 v{m}, {2 * OPS}, v{VR}
        v_add_u32 v{VOPR}, v{m}, v{VOPR}
        v_lshrrev_b32 v{m}, 1, v{VS}
        v_lshl_add_u32 v{VOPR}, v{m}, 8, v{VOPR}
        v_and_b32 v{m}, 1, v{VS}
        v_lshl_add_u32 v{VOPR}, v{m}, 10, v{VOPR}
        s_lshl_b32 s3, s{KG}, 13
        s_add_u32 s3, s3, {WS_OG}
        v_add_u32 v{VOGL}, s3, v{VHA}
        ; og store: OG + (hkv*8+wv)*8192 + r*256 + (slab*4+c)*16
        s_lshl_b32 s3, s{XI}, 3
        s_add_u32 s3, s3, s{WV}
        s_lshl_b32 s3, s3, 13
        s_lshl_b32 s28, s{RR}, 8
        s_add_u32 s3, s3, s28
        s_add_u32 s3, s3, {WS_OG}
        v_lshl_add_u32 v{VOGS}, v{VC}, 4, s3
        v_lshl_add_u32 v{VOGS}, v{VS}, 6, v{VOGS}
        ; pg store: PG + kg*PGS + (ng*8+wv)*512 + l*16 (lanes<32)
        s_lshl_b32 s3, s{SS}, 3
        s_add_u32 s3, s3, s{CB}
        s_lshl_b32 s3, s3, 9
        s_mul_i32 s28, s{KG}, {PGS}
        s_add_u32 s3, s3, s28
        s_add_u32 s3, s3, {WS_PG}
        v_add_u32 v{VPGS}, s3, v{VLIN}
        ; pg load (lanes<32): PG + (((l>>2)&7)*8 + wv)*PGS + (cq>>2)*512 + bh*256 + (cq&3)*64 + c*16
        s_lshl_b32 s3, s{XI}, 2
        s_bfe_u32 s28, s{RR}, 0x20002
        s_add_u32 s3, s3, s28
        s_lshl_b32 s3, s3, 9
        s_lshr_b32 s28, s{RR}, 4
        s_lshl_b32 s28, s28, 8
        s_add_u32 s3, s3, s28
        s_lshl_b32 s28, s{SS}, 6
        s_add_u32 s3, s3, s28
        s_mul_i32 s28, s{CB}, {PGS}
        s_add_u32 s3, s3, s28
        s_add_u32 s3, s3, {WS_PG}
        v_bfe_u32 v{m+1}, v{LANE}, 2, 3
        v_mul_u32_u24 v{m+1}, {8*PGS}, v{m+1}
        v_lshl_add_u32 v{VPGL}, v{VC}, 4, s3
        v_add_u32 v{VPGL}, v{VPGL}, v{m+1}
        v_lshrrev_b32 v{m+1}, 5, v{LANE}
        v_mul_u32_u24 v{m+1}, {PGS if SPL else 0}, v{m+1}
        v_add_u32 v{VPGL}, v{VPGL}, v{m+1}
        """)
        if P["pgflip"] >= 0:
            A(f"""
            s_add_u32 s3, s30, {WS_PG}
            s_lshr_b32 s3, s3, 8
            s_xor_b32 s3, s3, {P["pgflip"] << 13}
            s_and_b32 s3, s3, 0x2000
            v_xor_b32 v{VPGS}, s3, v{VPGS}
            v_xor_b32 v{VPGL}, s3, v{VPGL}
            """)
        A(f"""
        s_lshl_b32 s3, s{CB}, 9
        s_add_u32 s3, s3, {L_PF}
        v_add_u32 v{VPFW}, s3, v{VLIN}
        v_add_u32 v{VPFR}, {L_PF}, v{VLIN}
        s_and_b32 s3, s{RR}, 15
        s_lshl_b32 s28, s{XI}, 4
        s_add_u32 s3, s3, s28
        s_lshl_b32 s3, s3, 3
        v_lshl_add_u32 v{VOUT}, v{VC}, 1, s3
        v_lshl_add_u32 v{VOUT}, v{BI}, 10, v{VOUT}
        """)

    qstep = [0]; mstep = [0]
    def nbig(): return sum(1 for n in issued if isbig(n))
    def next_work(force=False):
        if "PB" not in done:
            return "PB" if nbig() >= N0 + P["pdelay"] else None
        if "PS" not in done and "ID" in arrived: return "PS"
        if "GT" not in done and "B2" in arrived: return "GT"
        if "PS" not in done: return None
        if "QC" not in done:
            return "QC" if "Q" in arrived else None
        if "QB" not in done:
            return "QB" if (force or nbig() >= qstep[0] + qdelay) else None
        for i in range(32):
            if f"KL{i}" not in done:
                if f"K{i}" in arrived: return f"KL{i}"
                return "TA" if "TA" not in done else None
        if "SM" not in done: return "SM"
        if "TA" not in done: return "TA"
        if "HC" not in done and "H" in arrived: return "HC"
        if "HC" in done and "MD" not in done and (force or nbig() >= mstep[0] + P["middelay"]): return "MD"
        for j in range(32):
            if f"VL{j}" not in done:
                return f"VL{j}" if f"V{j}" in arrived else None
        return None
    def run(w):
        if w[:2] in P["skip"].split(","):
            if w == "QC": qstep[0] = nbig()
        elif w == "PB": pbar()
        elif w == "PS": qpub()
        elif w == "GT": gate()
        elif w == "QC": qcomb(); qstep[0] = nbig()
        elif w == "QB": qbar()
        elif w == "HC": hcomb(); mstep[0] = nbig()
        elif w == "MD": mid()
        elif w == "TA": tailaddr()
        elif w[:2] == "KL": kload(int(w[2:]))
        elif w == "SM": softmax()
        elif w[:2] == "VL":
            j = int(w[2:]); vprep(j); vload(j)
        done.add(w)

    def can_issue(nm):
        if nm[0] == "V": return 32 + int(nm[1:]) - NR < 0 or slot_free(32 + int(nm[1:]) - NR)
        if nm == "H": return "QC" in done
        if nm in ("XG", "GW"): return "PB" in done
        return True
    if P["pdelay"] == 0: run("PB")
    while pos < len(stream):
        nm = stream[pos]
        assert nm not in ("XG", "GW") or "PB" in done
        if isbig(nm):
            prev = [n for n in stream[:pos] if isbig(n)]
            Nc = P["Nend"] if len(prev) >= P["endpos"] else N
            if len(prev) >= Nc: wait(prev[-Nc])
        if nm[0] == "V" and 32 + int(nm[1:]) - NR >= 0:
            while not slot_free(32 + int(nm[1:]) - NR):
                w = next_work(force=True)
                assert w is not None, "stream stalls on processing"
                run(w)
        issue(nm); pos += 1
        stamp("i" + nm)
        for k in (1, 2):
            if nm == P[f"pg{k}"]:
                A(f"s_branch L_pg{k}_cont")
                A.raw(".p2align 12")
                A(f"""
                L_pg{k}_stub:
                s_branch L_pg_ret
                L_pg{k}_cont:
                """)
        if nm in P["sync"].split(","): A("s_barrier")
        if pos < len(stream) and not isbig(stream[pos]): continue
        w = next_work()
        if w in ("PB", "QB", "MD", "SM", "HC", "TA"):
            nb = 0
            while nb < P["boost"] and pos < len(stream) and can_issue(stream[pos]):
                nb += isbig(stream[pos])
                issue(stream[pos]); stamp("i" + stream[pos]); pos += 1
        if w:
            run(w)
            k = 1
            while w and w[:2] in ("VL", "KL") and k < P["kburst"]:
                w = next_work()
                if w and w[:2] in ("VL", "KL"): run(w); k += 1
    while True:
        w = next_work(force=True)
        if not w: break
        run(w)
    assert {"SM", "HC", "GT", "MD", "TA"} <= done
    stamp("allissued")
    A(f"v_mov_b32 v{TT+3}, s{OTAG}")
    def late_loads(cnt):
        A(f"s_lshl_b32 s28, s{CB}, 10")
        assert SPL
        for (va, srd, lb) in ([(VWOA, SWO, L_WO)] + ([(VW2A, SW2, L_W2)] if P["late"] >= 2 else [])):
            for k in range(4):
                A(f"s_add_u32 m0, s28, {lb + (k >> 1) * 8192 + (k & 1) * 1024}")
                A(f"s_mov_b32 s3, {(k >> 1) * 32768 + (k & 1) * 4096}")
                A(f"buffer_load_dwordx4 v{va}, s[{srd}:{srd+3}], s3 offen {wflag} lds", "wl" if cnt else False)
    rest = [j for j in range(32) if f"VL{j}" not in done]
    def drain():
        for j in rest:
            vprep(j); A.wait_vm(f"V{j}"); vload(j)
    if P["rank"]:
        assert "rl" in arrived and P["late"] and P["lw"] == 4
        A(f"""
        v_cmp_eq_u32 vcc, s{TAG}, v{RK}
        s_bcnt1_i32_b32 s3, vcc_lo
        {"s_cmp_lt_u32" if P["lhalf"] else "s_cmp_gt_u32"} s{WV}, {4 if P["lhalf"] else 3}
        s_cselect_b32 s3, 0, s3
        s_cmp_ge_u32 s3, {P["rank"]}
        s_cbranch_scc0 L_drain_a
        """)
        save = list(A.vm)
        late_loads(True)
        drain()
        A("s_branch L_nolate")
        A.vm = save
        A("L_drain_a:")
    drain()
    if P["late"]:
        if P["lw"] == 8:
            for nm in (["WOa", "WOb"] + (["W2a", "W2b"] if P["late"] >= 2 else [])): issue(nm)
        else:
            A(f"""
            {"s_cmp_lt_u32" if P["lhalf"] else "s_cmp_gt_u32"} s{WV}, {4 if P["lhalf"] else 3}
            s_cbranch_scc1 L_nolate
            """)
            late_loads(False)
            A("L_nolate:")
            A("s_nop 5")
    for j in rest: done.add(f"VL{j}"); arrived.add(f"V{j}")
    if not P["late"] and P["wopos"] < 32: arrived.add("WOb")
    stamp("vdone")
    for i in range(8):
        A(f"v_mul_f32 v{OA+i}, v{OA+i}, v{FAC}")
    R0 = TT + 16
    wo_in = "WOb" in arrived
    A(f"""
    ds_write_b128 v{VOPW}, v[{OA}:{OA+3}]
    ds_write_b128 v{VOPW}, v[{OA+4}:{OA+7}] offset:1024
    s_waitcnt lgkmcnt(0)
    s_barrier
    """)
    stamp("obar")
    if stamps and "obar" in stamps: A("s_waitcnt lgkmcnt(0)")
    A(f"""
    ds_read_b128 v[{R0}:{R0+3}], v{VOPR}
    ds_read_b128 v[{R0+4}:{R0+7}], v{VOPR} offset:{OPS}
    ds_read_b32 v{TT+2}, v{VLSE}
    s_cmp_eq_u32 s{LOCAL}, 0
    s_waitcnt lgkmcnt(1)
    """)
    for r in range(4):
        A(f"v_add_f32 v{R0+r}, v{R0+r}, v{R0+4+r}")
    for ror in (8, 4):
        for r in range(4):
            A(f"v_add_f32_dpp v{R0+r}, v{R0+r}, v{R0+r} row_ror:{ror} {dpp}")
    A(f"""
    v_cvt_pk_bf16_f32 v{TT}, v{R0}, v{R0+1}
    v_cvt_pk_bf16_f32 v{TT+1}, v{R0+2}, v{R0+3}
    s_mov_b32 exec_lo, 0x000f000f
    s_mov_b32 exec_hi, 0x000f000f
    s_waitcnt lgkmcnt(0)
    s_cbranch_scc0 L_og_glob
    """)
    A.optional(f"global_store_dwordx4 v{VOGS}, v[{TT}:{TT+3}], s[30:31] {P['ogl']}")
    A("L_og_done:")
    A("s_mov_b64 exec, -1")
    stamp("ogpub")
    A.optional(f"global_load_dwordx4 v[{G}:{G+3}], v{VOGL}, s[30:31] sc1")
    if not P["late"]:
        if not wo_in:
            A(f"""
            s_waitcnt vmcnt(2)
            s_barrier
            """)
        stamp("wobar")
        wo_reads()
    C = TT + 8
    A(f"""
    s_mov_b32 s{CNT}, {spin}
    s_waitcnt vmcnt(0)
    L_o_chk:
    v_cmp_ne_u32 vcc, s{OTAG}, v{G+3}
    s_cbranch_vccz L_o_ok
    s_sub_u32 s{CNT}, s{CNT}, 1
    s_cbranch_scc1 L_o_ok
    s_mov_b64 exec, vcc
    """)
    if P["osleep"]: A(f"s_sleep {P['osleep']}")
    A.optional(f"global_load_dwordx4 v[{G}:{G+3}], v{VOGL}, s[30:31] sc1")
    A(f"""
    s_mov_b64 exec, -1
    s_waitcnt vmcnt(0)
    s_branch L_o_chk
    L_og_glob:
    """)
    A.optional(f"global_store_dwordx4 v{VOGS}, v[{TT}:{TT+3}], s[30:31] sc1")
    A(f"""
    s_branch L_og_done
    L_o_ok:
    """)
    stamp("ogot")
    A(f"""
    v_max_f32_dpp v{C}, v{G+2}, v{G+2} row_ror:8 {dpp}
    v_lshlrev_b32 v{C+4}, 16, v{G}
    v_and_b32 v{C+5}, 0xffff0000, v{G}
    v_max_f32_dpp v{C+1}, v{C}, v{C} row_ror:4 {dpp}
    v_lshlrev_b32 v{C+6}, 16, v{G+1}
    v_sub_f32 v{C+1}, v{G+2}, v{C+1}
    v_exp_f32 v{C+1}, v{C+1}
    v_and_b32 v{C+7}, 0xffff0000, v{G+1}
    v_mul_f32 v{C+4}, v{C+4}, v{C+1}
    v_mul_f32 v{C+5}, v{C+5}, v{C+1}
    v_add_f32_dpp v{C}, v{C+1}, v{C+1} row_ror:8 {dpp}
    v_mul_f32 v{C+6}, v{C+6}, v{C+1}
    v_mul_f32 v{C+7}, v{C+7}, v{C+1}
    v_add_f32_dpp v{C+2}, v{C}, v{C} row_ror:4 {dpp}
    v_add_f32_dpp v{C+4}, v{C+4}, v{C+4} row_ror:8 {dpp}
    v_rcp_f32 v{C+2}, v{C+2}
    v_add_f32_dpp v{C+5}, v{C+5}, v{C+5} row_ror:8 {dpp}
    v_add_f32_dpp v{C+6}, v{C+6}, v{C+6} row_ror:8 {dpp}
    v_add_f32_dpp v{C+7}, v{C+7}, v{C+7} row_ror:8 {dpp}
    v_mul_f32 v{C+2}, v{C+2}, v{GV}
    v_add_f32_dpp v{C+4}, v{C+4}, v{C+4} row_ror:4 {dpp}
    v_add_f32_dpp v{C+5}, v{C+5}, v{C+5} row_ror:4 {dpp}
    v_add_f32_dpp v{C+6}, v{C+6}, v{C+6} row_ror:4 {dpp}
    v_add_f32_dpp v{C+7}, v{C+7}, v{C+7} row_ror:4 {dpp}
    v_mul_f32 v{C+4}, v{C+4}, v{C+2}
    v_mul_f32 v{C+5}, v{C+5}, v{C+2}
    v_mul_f32 v{C+6}, v{C+6}, v{C+2}
    v_mul_f32 v{C+7}, v{C+7}, v{C+2}
    v_cvt_pk_bf16_f32 v{C}, v{C+4}, v{C+5}
    v_cvt_pk_bf16_f32 v{C+1}, v{C+6}, v{C+7}
    ds_write_b64 v{VCW}, v[{C}:{C+1}] offset:{L_OC - L_HC}
    s_cmp_gt_u32 s{WV}, 3
    s_waitcnt lgkmcnt(0)
    s_barrier
    """)
    stamp("ocbar")
    if stamps and "ocbar" in stamps: A("s_waitcnt lgkmcnt(0)")
    PP = TT + 16
    if SPL:
        A(f"""
        s_cbranch_scc1 L_poll
        """)
        if P["late"] >= 2:
            ffn2_reads(W2F, W2F + 8)
        A(f"""
        ds_read_b128 v[{R0}:{R0+3}], v{VAF} offset:{L_OC - L_HC}
        ds_read_b128 v[{R0+4}:{R0+7}], v{VAF} offset:{L_OC - L_HC + 64}
        """)
        if P["late"]: wo_reads()
        if P["late"] >= 2:
            A("s_waitcnt lgkmcnt(10)")
            ffn2_mfma(W2F, W2F + 8)
        A(f"""
        s_waitcnt lgkmcnt({4 if P["late"] else 1})
        v_mfma_f32_16x16x32_bf16 v[{D2}:{D2+3}], v[{R0}:{R0+3}], v[{WF}:{WF+3}], v[{D2}:{D2+3}]
        v_mfma_f32_16x16x32_bf16 v[{D2B}:{D2B+3}], v[{R0}:{R0+3}], v[{WF2}:{WF2+3}], v[{D2B}:{D2B+3}]
        s_waitcnt lgkmcnt(0)
        v_mfma_f32_16x16x32_bf16 v[{D2}:{D2+3}], v[{R0+4}:{R0+7}], v[{WF+4}:{WF+7}], v[{D2}:{D2+3}]
        v_mfma_f32_16x16x32_bf16 v[{D2B}:{D2B+3}], v[{R0+4}:{R0+7}], v[{WF2+4}:{WF2+7}], v[{D2B}:{D2B+3}]
        """)
        for r in range(4):
            A(f"v_and_or_b32 v{D2+r}, v{D2+r}, s{SMASK}, v{TB+r}")
        A("s_mov_b32 exec_lo, 0")
        for r in range(4):
            A(f"v_and_or_b32 v{D2+r}, v{D2B+r}, s{SMASK}, v{TB+r}")
        A("s_mov_b32 exec_lo, -1")
        A.optional(f"global_store_dwordx4 v{VPGS}, v[{D2}:{D2+3}], s[30:31] {P['pgst']}")
        k0 = len(stnames)
        stamp("pgpub")
        if stamps and P["allwaves"]:
            A("s_waitcnt vmcnt(0)")
            for nm in ("pgack", "pg1", "pgot"): stamp(nm)
            del stnames[k0:]
            A("s_branch L_pjoin")
        else:
            del stnames[k0:]
            if P["ackbar"]:
                A("s_waitcnt vmcnt(0)")
                A("s_barrier")
            if P["wb"]:
                A(f"""
                s_cmp_lg_u32 s{WV}, 0
                s_cbranch_scc1 L_nowb
                """)
                if "1" in P["wb"]:
                    A(f"""
                    s_cmp_lg_u32 s{RR}, 0
                    s_cbranch_scc1 L_nowb
                    """)
                if "a" in P["wb"]: A("s_waitcnt vmcnt(0)")
                A.raw("  buffer_wbl2 sc1")
                A("L_nowb:")
            A("s_barrier")
            A("s_endpgm")
        A("L_poll:")
        stamp("pgpub")
        if P["ackbar"]: A("s_barrier")
        elif P["psleep0"]: A(f"s_sleep {P['psleep0']}")
        stamp("pgack")
        A.optional(f"global_load_dwordx4 v[{G}:{G+3}], v{VPGL}, s[30:31] sc1")
    else:
        A(f"""
        ds_read_b128 v[{R0}:{R0+3}], v{VAF} offset:{L_OC - L_HC}
        ds_read_b128 v[{R0+4}:{R0+7}], v{VAF} offset:{L_OC - L_HC + 64}
        s_waitcnt lgkmcnt(1)
        v_mfma_f32_16x16x32_bf16 v[{D2}:{D2+3}], v[{R0}:{R0+3}], v[{WF}:{WF+3}], v[{D2}:{D2+3}]
        s_waitcnt lgkmcnt(0)
        v_mfma_f32_16x16x32_bf16 v[{D2}:{D2+3}], v[{R0+4}:{R0+7}], v[{WF+4}:{WF+7}], v[{D2}:{D2+3}]
        s_mov_b32 exec_hi, 0
        """)
        for r in range(4):
            A(f"v_and_or_b32 v{D2+r}, v{D2+r}, s{SMASK}, v{TB+r}")
        A.optional(f"global_store_dwordx4 v{VPGS}, v[{D2}:{D2+3}], s[30:31] {P['pgst']}")
        stamp("pgpub")
        if P["pgdelay"]: A(f"s_sleep {P['pgdelay']}")
        elif P["ackwait"]: A("s_waitcnt vmcnt(0)")
        stamp("pgack")
        A.optional(f"global_load_dwordx4 v[{G}:{G+3}], v{VPGL}, s[30:31] sc1")
    A(f"""
    s_mov_b32 s{CNT}, {P["pspin"] or spin}
    s_waitcnt vmcnt(0)
    """)
    stamp("pg1")
    A(f"""
    L_p_chk:
    v_perm_b32 v{C}, v{G+1}, v{G}, s{SEL1}
    v_perm_b32 v{C+1}, v{G+3}, v{G+2}, s{SEL1}
    v_perm_b32 v{C}, v{C+1}, v{C}, s{SEL2}
    v_cmp_ne_u32 vcc, s{TAG}, v{C}
    s_cbranch_vccz L_p_ok
    s_sub_u32 s{CNT}, s{CNT}, 1
    s_cbranch_scc1 L_p_ok
    s_mov_b64 exec, vcc
    """)
    if sleep: A(f"s_sleep {sleep}")
    A.optional(f"global_load_dwordx4 v[{G}:{G+3}], v{VPGL}, s[30:31] sc1")
    A(f"""
    {"s_mov_b64 exec, -1" if SPL else "s_mov_b32 exec_lo, -1"}
    s_waitcnt vmcnt(0)
    s_branch L_p_chk
    L_p_ok:
    """)
    stamp("pgot")
    for r in range(4):
        A(f"v_and_b32 v{G+r}, s{SMASK}, v{G+r}")
    A(f"""
    ds_write_b128 v{VPFW}, v[{G}:{G+3}]
    s_mov_b64 exec, -1
    L_pjoin:
    s_waitcnt lgkmcnt(0)
    s_barrier
    """)
    if P["allwaves"]:
        stamp("pbar2")
        A("s_waitcnt lgkmcnt(0)")
        n = len(stnames)
        A(f"""
        s_lshl_b32 s3, s2, 3
        s_add_u32 s3, s3, s{WV}
        s_mul_i32 s3, s3, {8*n}
        s_add_u32 s3, s3, {WS_STAMP}
        v_mov_b32 v{C}, s3
        s_mov_b64 exec, 1
        """)
        for k in range(n):
            A(f"v_mov_b32 v{C+2}, s{STREGS[k]}")
            A(f"v_mov_b32 v{C+3}, s{STREGS[k]+1}")
            A.optional(f"global_store_dwordx2 v{C}, v[{C+2}:{C+3}], s[30:31] offset:{8*k}")
            A("s_nop 1")
        A("s_mov_b64 exec, -1")
        stamps = None
    A(f"""
    s_cmp_lg_u32 s{WV}, {4 if SPL else 0}
    s_cbranch_scc1 L_end
    """)
    stamp("pbar")
    for i in range(4):
        A(f"ds_read_b128 v[{PP+4*i}:{PP+4*i+3}], v{VPFR} offset:{i*1024}")
    A("s_waitcnt lgkmcnt(0)")
    for (a, b) in ((0, 1), (2, 3), (0, 2)):
        for r in range(4):
            A(f"v_add_f32 v{PP+4*a+r}, v{PP+4*a+r}, v{PP+4*b+r}")
    A(f"""
    v_permlane32_swap_b32 v{PP}, v{PP+1}
    v_permlane32_swap_b32 v{PP+2}, v{PP+3}
    v_add_f32 v{PP}, v{PP}, v{PP+1}
    v_add_f32 v{PP+2}, v{PP+2}, v{PP+3}
    v_permlane16_swap_b32 v{PP}, v{PP+2}
    v_add_f32 v{PP}, v{PP}, v{PP+2}
    v_add_f32_dpp v{PP}, v{PP}, v{PP} row_ror:8 {dpp}
    v_add_f32_dpp v{PP}, v{PP}, v{PP} row_ror:4 {dpp}
    v_add_f32 v{PP}, v{PP}, v{B2}
    v_cvt_pk_bf16_f32 v{PP}, v{PP}, v{PP}
    s_mov_b32 exec_lo, 0x000f000f
    s_mov_b32 exec_hi, 0x000f000f
    """)
    A.optional(f"global_store_short v{VOUT}, v{PP}, s[26:27]")
    A(f"""
    s_mov_b64 exec, 1
    s_cmp_lg_u32 s2, 0
    s_cbranch_scc1 L_noep
    v_mov_b32 v{C}, 0
    v_mov_b32 v{C+1}, s{TAG}
    """)
    A.optional(f"global_store_dword v{C}, v{C+1}, s[30:31] {P['epst']}")
    A("L_noep:")
    if stamps:
        stamp("outst")
        A("s_waitcnt vmcnt(0)")
        stamp("end")
        n = len(stnames)
        A(f"""
        s_waitcnt lgkmcnt(0)
        s_mul_i32 s3, s2, {8*n}
        s_add_u32 s3, s3, {WS_STAMP}
        v_mov_b32 v{C}, s3
        """)
        for k in range(n):
            A(f"v_mov_b32 v{C+2}, s{STREGS[k]}")
            A(f"v_mov_b32 v{C+3}, s{STREGS[k]+1}")
            A.optional(f"global_store_dwordx2 v{C}, v[{C+2}:{C+3}], s[30:31] offset:{8*k}")
            A("s_nop 1")
        if P["amp"]:
            a_, b_ = P["amp"].split(":")
            ka, kb, ke = stnames.index(a_), stnames.index(b_), stnames.index("end")
            A(f"""
            s_sub_u32 s14, s{STREGS[kb]}, s{STREGS[ka]}
            s_mul_i32 s14, s14, {P['ampm']}
            s_add_u32 s14, s14, s{STREGS[ke]}
            L_probe:
            s_memrealtime s[4:5]
            s_waitcnt lgkmcnt(0)
            s_sub_u32 s3, s4, s14
            s_cmp_lt_i32 s3, 0
            s_cbranch_scc1 L_probe
            """)
        if P["probe"]:
            k = stnames.index(P["probe"])
            A(f"""
            s_add_u32 s14, s{STREGS[k]}, 10000
            L_probe:
            s_sleep 4
            s_memrealtime s[4:5]
            s_waitcnt lgkmcnt(0)
            s_sub_u32 s3, s4, s14
            s_cmp_lt_i32 s3, 0
            s_cbranch_scc1 L_probe
            """)
    A.raw("L_end:")
    A.raw("  s_endpgm")
    A.raw('.section .rodata,"a"')
    A.raw(".p2align 6")
    A.raw(f".amdhsa_kernel {NAME}_kernel")
    A.raw("  .amdhsa_next_free_vgpr 256")
    A.raw("  .amdhsa_next_free_sgpr 102")
    A.raw("  .amdhsa_accum_offset 256")
    A.raw("  .amdhsa_group_segment_fixed_size 0")
    A.raw("  .amdhsa_kernarg_size 112")
    A.raw("  .amdhsa_user_sgpr_count 2")
    A.raw("  .amdhsa_user_sgpr_kernarg_segment_ptr 1")
    A.raw("  .amdhsa_system_sgpr_workgroup_id_x 1")
    A.raw(".end_amdhsa_kernel")
    return A.text(), stnames

if __name__ == "__main__":
    out = f"cdna_kernels/{NAME}.s"
    kw = {}
    for a in sys.argv[1:]:
        k, v = a.split("=", 1)
        if k == "o": out = v
        elif k == "stamps": kw[k] = v.split(",")
        elif isinstance(DEF[k], bool): kw[k] = bool(int(v))
        elif isinstance(DEF[k], int): kw[k] = int(v)
        else: kw[k] = v
    t, n = gen(**kw)
    open(out, "w").write(t)
    print("wrote", out, "stamps", len(n), n)
```

```python
import sys, argparse, struct, math
sys.path.insert(0, "tools")
from asmlib import Asm
NAME = "gated_mix__gqa_block_cached__dense_activation_gelu__decode"
HDR = open("cdna_kernels/%s.s.ref" % NAME).read().split("; Override")[0]

def f2u(x): return struct.unpack("<I", struct.pack("<f", x))[0]
LOG2E = 1.4426950408889634

WS_ID = 0x1000
WS_VT = 0x2000
WS_RC = 0x8000
WS_HG = 0x40000
WS_QG = 0x80000
WS_OG0 = 0x300000
WS_PG = 0x100000
WS_STAMP = 0x8000000
L_WQ = 0
L_W1 = 16384
L_WO = 32768
L_W2 = 49152
OPS = 2048 + 32
CRS = 160
L_OP = 65536
L_X = L_OP + 8 * OPS
L_QC = L_X + 2048
L_HC = L_QC + 1024
L_OC = L_HC + 8 * CRS
L_ML = L_OC + 8 * CRS
L_GT = L_ML + 256
L_LSE = L_GT + 32
L_LF = L_LSE + 32
L_PF = L_LF + 32
L_END = L_PF + 4096

DEF = dict(N=3, N0=1, idpos=9, hpos=4, gpos=14, qpos=19, qdelay=2, vpos=8, stamps=None, kflag="nt", vflag="nt", wflag="nt",
           spin=4000000, sleep=0, dbg=False, probe=None, p0bar=True, pgpad=0, skip="", wopos=32, local=True, ackwait=True, allwaves=False, prio=0, sync="", kburst=4, middelay=3, nring=32, Nend=6, endpos=58, alo=0, adelta=290, at0=30, boost=0, pdelay=0, osleep=0, rot=0, cntst=False, qst="sc1", pgst="sc1", hst="sc1", pspin=0, pgdelay=0, split=True, psleep0=18, kfirst=False, late=1, latepos=31, lw=4, warm="", warmpos=22, pgflip=-1, pad=0x400, pg1="", pg2="", pgw=True, amp="", rank=0, rpos=25, lhalf=0, forcelocal=False, idlate=True, ogl="", qhl="", wb="", alias=True, race=1, racedbg=False, raceinv=False, onew=True, racelate=True, ampm=50, epst="", pt="", ackbar=True, wb2=-1, trot="", w2k=-1, wpre=False, wfirst=1, bal=0, npat="", vx=0)

def gen(**kw):
    P = dict(DEF); P.update(kw)
    N, N0, hpos, gpos, qpos, qdelay, vpos = (P[k] for k in ("N", "N0", "hpos", "gpos", "qpos", "qdelay", "vpos"))
    stamps, kflag, vflag, wflag, spin, sleep = (P[k] for k in ("stamps", "kflag", "vflag", "wflag", "spin", "sleep"))
    PGS = 16384 + P["pgpad"]
    WS_OG = WS_QG if P["alias"] else WS_OG0
    OTAG = 80
    A = Asm()
    stnames = []
    STREGS = [90, 92, 94, 96, 98, 100, 6, 8, 10, 12, 16, 18]
    def stamp(nm):
        if stamps and nm in stamps:
            r = STREGS[len(stnames)]
            stnames.append(nm)
            A(f"s_memrealtime s[{r}:{r+1}]")
    LANE, VLIN, VKP, MX, MY, VC, VR, VS = 1, 2, 3, 4, 5, 6, 7, 8
    TB = 9; GV = 13; FAC = 14; MREG = 15
    QF = 16
    CM = 20
    YA = 24
    KD = 28
    SP = 36
    OA = 44; D2 = 52; G = 56; XY = 60
    TT = 64
    WF = 96
    WF2 = QF
    D2B = YA
    SPL = P["split"]
    CB = 81
    VQA, VHA, VW2A, VWOA, VW1A, VTRP, VXA, VPERM, VCW, VAF, VTRWO, VTRW2, B2, VQP, VQT = range(104, 119)
    T0 = 119
    B1 = 122
    XG = TT + 16
    VOPW, VOPR, VOGS, VOGL = 124, 125, 126, 127
    VPGS, VPGL, VLSE, VOUT, VPFW, VPFR = VTRP, VXA, VPERM, VQP, VQT, VW1A
    VRK, RK = 0, 121
    VKK, VVV = (FAC, VW2A) if P['bal'] else (VKP, VLIN)
    joff = (lambda j: (j & 1) * 1024 + (j >> 1) * 512) if P['bal'] else (lambda j: j * 1024)
    VX = P['vx']
    RING = 128
    NR = P["nring"]
    def ring(i): return RING + (i % NR) * 4
    WV, XI, RR, BB, SS, TAG, KG, FG, FP, HTAG, SMASK, ST = 32, 33, 34, 35, 36, 37, 38, 39, 40, 41, 42, 43
    SK, SV, SWQ, SW1, SWO, SW2, SHS, SHL, SB1 = 44, 48, 52, 56, 60, 64, 68, 72, 76
    SOFF, SC = 88, 89
    XCC2, LOCAL = 83, 82
    SEL1, SEL2 = 14, 15
    CNT = 3
    dpp = "row_mask:0xf bank_mask:0xf"

    A.raw(HDR.rstrip("\n"))
    A.raw(f"; @launch grid=(256,1,1) block=(512,1,1) lds={L_END}")
    A.raw('.amdgcn_target "amdgcn-amd-amdhsa--gfx950"')
    A.raw("""; ---------------------------------------------------------------------------------------------------------
; One persistent launch, 256 workgroups (one per CU) x 8 waves.  Workgroup w: xi = w&7 (kv head / hand-off
; group), r = w>>3 = (batch b, key quarter s).  Every wave streams 128 K rows then 128 V rows straight into a
;   q      : wg (xi,r) computes x @ wq for 64 columns x 128 k-rows, hands fp32 partials to its group
;   out    : 64 partials per output gathered across groups, + (1-g)*b2, bf16 store
; the end).  Loads of handed-off data are sc1.  Stores are write-through (sc1) unless this workgroup has seen,
; in this launch, that all 32 members of its group report its own XCC id; then they stay in the shared L2.
; race two scalar loads to learn which half of the page is near and publish the bit; it only moves addresses.
; ---------------------------------------------------------------------------------------------------------""")
    A.raw(".text")
    if P["pg1"]:
        A.raw(".p2align 12")
    elif P["pad"]:
        A.raw("; keep 4 KiB code-page crossings out of the prologue and of the tail")
        A.raw(".p2align 12")
        A.raw(f".fill {P['pad'] // 4}, 4, 0xbf810000")
    A.raw(f".globl {NAME}_kernel")
    A.raw(".p2align 8")
    A.raw(f".type {NAME}_kernel,@function")
    A.raw(f"{NAME}_kernel:")
    stamp("entry")
    trot = {"": "", "x": f"s_lshl_b32 s3, s{XI}, 15\ns_xor_b32 s{SOFF}, s{SOFF}, s3",
            "b": f"s_lshl_b32 s3, s{BB}, 15\ns_xor_b32 s{SOFF}, s{SOFF}, s3",
            "s": f"s_lshl_b32 s3, s{SS}, 16\ns_xor_b32 s{SOFF}, s{SOFF}, s3",
            "xb": f"s_xor_b32 s3, s{XI}, s{BB}\ns_lshl_b32 s3, s3, 15\ns_xor_b32 s{SOFF}, s{SOFF}, s3",
            "xbs": f"s_lshl1_add_u32 s3, s{SS}, s{XI}\ns_add_u32 s3, s3, s{BB}\ns_and_b32 s3, s3, 7\ns_lshl_b32 s3, s3, 15\ns_xor_b32 s{SOFF}, s{SOFF}, s3",
            }[P["trot"]]
    KBAL = f"""
    ; a load covers rows {{0,1,8,9}} (+2,+4,+6): address bits 8 and 11 pick memory channels, keep them balanced
    v_bfe_u32 v{T0}, v0, 3, 1
    v_mul_u32_u24 v{T0}, {2048 - 512}, v{T0}
    v_add_u32 v{VKK}, v{T0}, v{VKP}
    """ if P["bal"] else ""
    assert not P["bal"] or (P["wfirst"] and P["late"] < 2 and not P["kfirst"])
    PRO1 = f"""
    s_load_dwordx16 s[4:19], s[0:1], 0
    s_cmp_ge_u32 s2, 256
    s_cbranch_scc1 L_end
    s_load_dwordx8 s[20:27], s[0:1], 64
    s_load_dwordx4 s[28:31], s[0:1], 96
    v_lshrrev_b32 v{T0}, 6, v0
    v_and_b32 v{VC}, 3, v0
    v_readfirstlane_b32 s{WV}, v{T0}
    v_bfe_u32 v{VR}, v0, 2, 2
    v_bfe_u32 v{VS}, v0, 4, 2
    s_and_b32 s{XI}, s2, 7
    s_lshr_b32 s{BB}, s2, 5
    s_bfe_u32 s{SS}, s2, 0x20003
    v_lshlrev_b32 v{VKP}, 4, v{VC}
    v_lshl_add_u32 v{VKP}, v{VR}, 8, v{VKP}
    v_lshl_add_u32 v{VKP}, v{VS}, 6, v{VKP}
    s_lshl3_add_u32 s{ST}, s{BB}, s{XI}
    s_lshl2_add_u32 s{ST}, s{ST}, s{SS}
    s_lshl_b32 s{ST}, s{ST}, 18
    s_lshl_b32 s{SOFF}, s{WV}, 12
    {trot}
    s_mov_b32 s{SK+3}, 0x20000
    s_mov_b32 s{SK+2}, 0x40000
    """
    PRO2 = f"""
    s_lshr_b32 s{RR}, s2, 3
    v_and_b32 v{LANE}, 63, v0
    v_lshlrev_b32 v{VLIN}, 4, v{LANE}
    {KBAL}
    s_lshl_b32 s3, s{WV}, 4
    v_lshrrev_b32 v{T0}, 3, v{LANE}
    v_add_u32 v{T0}, s3, v{T0}
    v_and_b32 v{T0+1}, 1, v{VS}
    v_lshlrev_b32 v{T0+1}, 1, v{T0+1}
    v_and_b32 v{T0+2}, 7, v{LANE}
    v_xor_b32 v{T0+1}, v{T0+1}, v{T0+2}
    v_lshlrev_b32 v{T0+1}, 4, v{T0+1}
    v_mul_u32_u24 v{VW1A}, 3584, v{T0}
    v_add_u32 v{VW1A}, v{VW1A}, v{T0+1}
    v_lshl_add_u32 v{G}, v{T0}, 13, v{T0+1}
    v_xor_b32 v{G+1}, 64, v{G}
    s_lshl_b32 s3, s{WV}, 12
    s_lshl_b32 s{SMASK}, s{SS}, 8
    s_add_u32 s3, s3, s{SMASK}
    v_and_b32 v{T0}, 15, v{LANE}
    v_lshl_add_u32 v{G+2}, v{T0}, 4, s3
    v_lshl_add_u32 v{G+2}, v{VS}, 10, v{G+2}
    s_lshl_b32 s{KG}, s{SS}, 20
    s_lshl_b32 s3, s{XI}, 10
    s_add_u32 s{KG}, s{KG}, s3
    s_lshl_b32 s3, s{BB}, 7
    s_add_u32 s{KG}, s{KG}, s3
    s_mov_b32 s{SWQ+3}, 0x20000
    s_sub_u32 s{SWQ+2}, 0x400000, s{KG}
    s_lshl_b32 s3, s{WV}, 10
    s_add_u32 m0, s3, {L_X}
    s_mov_b32 s{FG}, 0x10000
    """
    WROLE = f"""
    s_mov_b32 s{SW1+3}, 0x20000
    s_mov_b32 s{SWO+3}, 0x20000
    s_mov_b32 s{SW2+3}, 0x20000
    s_mov_b32 s{SHS+3}, 0x20000
    s_mov_b32 s{SHL+3}, 0x20000
    s_mov_b32 s{SB1+3}, 0x20000
    s_lshl_b32 s{FG}, s{BB}, 3
    s_add_u32 s{FG}, s{FG}, s{XI}
    s_lshl_b32 s{KG}, s{XI}, 3
    s_add_u32 s{KG}, s{KG}, s{BB}
    s_sub_u32 s{FP}, s{FG}, 32
    s_cmp_lt_u32 s{FP}, 28
    s_cselect_b32 s{FP}, s{FP}, 0
    s_cselect_b32 s{SW1+2}, {128*3584}, 0
    s_cselect_b32 s{SHS+2}, 8192, 0
    s_mul_i32 s3, s{SS}, {128*3584}
    s_lshl_b32 s28, s{FP}, 7
    s_add_u32 s3, s3, s28
    s_add_u32 s{SW1}, s16, s3
    s_addc_u32 s{SW1+1}, s17, 0
    s_lshl_b32 s3, s{FP}, 13
    s_add_u32 s3, s3, {WS_HG}
    s_add_u32 s{SHS}, s30, s3
    s_addc_u32 s{SHS+1}, s31, 0
    s_lshl_b32 s3, s{KG}, 16
    s_lshl_b32 s28, s{SS}, 8
    s_add_u32 s3, s3, s28
    s_add_u32 s{SWO}, s12, s3
    s_addc_u32 s{SWO+1}, s13, 0
    s_sub_u32 s{SWO+2}, 0x400000, s3
    s_cmp_lt_u32 s{FG}, 28
    s_cselect_b32 s{FG}, s{FG}, 0
    s_cselect_b32 s{SW2+2}, {63*1024+256}, 0
    s_cselect_b32 s{SHL+2}, 8192, 0
    s_cselect_b32 s{SB1+2}, 128, 0
    {'' if P['wfirst'] else f's_cselect_b32 s{HTAG}, s{TAG}, 0'}
    s_lshl_b32 s3, s{FG}, 16
    s_add_u32 s3, s3, s28
    s_add_u32 s{SW2}, s20, s3
    s_addc_u32 s{SW2+1}, s21, 0
    s_lshl_b32 s3, s{FG}, 13
    s_add_u32 s3, s3, {WS_HG}
    s_add_u32 s{SHL}, s30, s3
    s_addc_u32 s{SHL+1}, s31, 0
    s_lshl_b32 s3, s{FG}, 7
    s_add_u32 s{SB1}, s18, s3
    s_addc_u32 s{SB1+1}, s19, 0
    """
    WADDR = f"""
    s_and_b32 s3, s{WV}, 3
    s_lshl_b32 s3, s3, 2
    v_lshrrev_b32 v{T0}, 5, v{LANE}
    v_lshl_or_b32 v{T0}, v{T0}, 1, s3
    v_and_b32 v{T0+1}, 15, v{LANE}
    v_xor_b32 v{T0}, v{T0}, v{T0+1}
    s_lshl_b32 s3, s{WV}, 13
    v_lshl_add_u32 v{VW2A}, v{VS}, 10, s3
    v_lshl_add_u32 v{VWOA}, v{T0}, 4, v{VW2A}
    s_and_b32 s3, s{WV}, 1
    s_lshl_b32 s3, s3, 3
    v_lshl_or_b32 v{T0}, v{VS}, 1, s3
    v_xor_b32 v{T0}, v{T0}, v{T0+1}
    v_lshl_add_u32 v{VW2A}, v{T0}, 4, v{VW2A}
    """
    HSEL = f"""
    s_cmp_lg_u32 s{SHL+2}, 0
    s_cselect_b32 s{HTAG}, s{TAG}, 0
    """
    def wq_issue():
        A(f"""
        s_cmp_gt_u32 s{WV}, 1
        s_cbranch_scc1 L_nox
        """)
        A.optional(f"global_load_lds_dwordx4 v{G+2}, s[4:5]")
        A(f"""
        L_nox:
        s_lshl_b32 m0, s{WV}, 11
        s_add_u32 s{SWQ}, s10, s{KG}
        s_addc_u32 s{SWQ+1}, s11, 0
        """)
        A(f"buffer_load_dwordx4 v{G}, s[{SWQ}:{SWQ+3}], 0 offen {wflag} lds", "wq0")
        A(f"s_add_u32 m0, m0, 1024")
        A(f"buffer_load_dwordx4 v{G+1}, s[{SWQ}:{SWQ+3}], s{FG} offen {wflag} lds", "wq1")
        issued.extend(["wq0", "wq1"])
    A(PRO1)
    if not P["kfirst"]: A(PRO2)
    A(f"""
    s_waitcnt lgkmcnt(0)
    s_add_u32 s{SK}, s6, s{ST}
    s_addc_u32 s{SK+1}, s7, 0
    """)
    stamp("karg")

    stream = []
    for i in range(32):
        if i == P["idpos"]: stream += ["ID"]
        if i == hpos and not (P["wpre"] or P["wfirst"]): stream += ["W10", "W11"]
        if i == P["w2k"] and not P["wpre"]: stream += ["W2a", "W2b"]
        if i == gpos: stream += ["XG", "GW", "B1", "B2"]
        if i == qpos: stream += ["I2", "Q"]
        stream.append(f"K{i}")
    for j in range(32):
        if j == vpos: stream += (["H"] if (P["late"] >= 2 or P["w2k"] >= 0 or P["wpre"] or P["wfirst"]) else ["W2a", "W2b", "H"])
        if j == vpos and P["alias"]: stream.insert(len(stream) - 1, "rl")
        if j == vpos and P["race"]: stream.insert(len(stream) - 1, "vl")
        if j == P["rpos"] and P["rank"]: stream += ["rl", "rs"]
        if j == P["warmpos"]: stream += ["t" + c for c in P["warm"]]
        if j == P["wopos"] and not P["late"]: stream += ["WOa", "WOb"]
        stream.append(f"V{j}")
    if P["wopos"] >= 32 and not P["late"] and P["wfirst"] < 2: stream += ["WOa", "WOb"]
    done = set(); arrived = set(); issued = []
    isbig = lambda n: n[0] in "KV" or n[:2] == "WO"

    def tcode(t):
        m = {0: 0, 1: ((t & 1) << 1) | ((t >> 1) & 1) | (t & 4), 2: (t & 1) << 1, 3: t}[P["rot"]]
        if P["bal"] == 2: t = (t & 4) | ((t & 1) << 1) | ((t >> 1) & 1)
        return (t << 15) | (m << 12)
    def slot_free(i):
        return (f"KL{i}" if i < 32 else f"VL{i-32}") in done
    def issue(nm):
        if "L" + nm[:2] in P["skip"].split(","):
            arrived.add(nm)
        elif nm[0] == "K":
            i = int(nm[1:]); r = ring(i)
            A(f"buffer_load_dwordx4 v[{r}:{r+3}], v{VKK}, s[{SK}:{SK+3}], s{SOFF} offen offset:{joff(i%4)} {kflag}", nm)
            if i % 4 == 3:
                nx = tcode(i//4) ^ (tcode(i//4+1) if i < 31 else tcode(VX))
                if nx: A(f"s_xor_b32 s{SOFF}, s{SOFF}, {nx}")
        elif nm[0] == "V":
            j = int(nm[1:]); r = ring(32 + j)
            assert 32 + j - NR < 0 or slot_free(32 + j - NR), nm
            A(f"buffer_load_dwordx4 v[{r}:{r+3}], v{VVV}, s[{SV}:{SV+3}], s{SOFF} offen offset:{joff(j%4)} {vflag}", nm)
            if j % 4 == 3 and j != 31: A(f"s_xor_b32 s{SOFF}, s{SOFF}, {tcode((j//4) ^ VX) ^ tcode((j//4+1) ^ VX)}")
        elif nm == "W10":
            A(f"s_lshl_b32 s3, s{WV}, 11")
            A(f"s_add_u32 m0, s3, {L_W1}")
            A(f"buffer_load_dwordx4 v{VW1A}, s[{SW1}:{SW1+3}], 0 offen {wflag} lds", nm)
        elif nm == "W11":
            A(f"s_add_u32 m0, m0, 1024")
            A(f"v_xor_b32 v{VW1A}, 64, v{VW1A}")
            A(f"s_movk_i32 s3, {8*3584}")
            A(f"buffer_load_dwordx4 v{VW1A}, s[{SW1}:{SW1+3}], s3 offen {wflag} lds", nm)
        elif nm == "XG":
            A(f"s_lshl_b32 s3, s{WV}, 10")
            A(f"v_add_u32 v{T0}, s3, v{VLIN}")
            A(f"global_load_dwordx4 v[{XG}:{XG+3}], v{T0}, s[4:5]", nm)
        elif nm == "GW":
            A(f"global_load_dwordx4 v[{XG+4}:{XG+7}], v{VLIN}, s[24:25]", nm)
        elif nm == "B1":
            A(f"v_lshlrev_b32 v{T0}, 3, v{VC}")
            A(f"v_lshl_add_u32 v{T0}, v{VS}, 5, v{T0}")
            A(f"buffer_load_dwordx2 v[{B1}:{B1+1}], v{T0}, s[{SB1}:{SB1+3}], 0 offen", nm)
        elif nm == "B2":
            A(f"""
            s_and_b32 s3, s{RR}, 15
            s_lshl_b32 s28, s{XI}, 4
            s_add_u32 s3, s3, s28
            s_lshl_b32 s3, s3, 3
            v_lshl_add_u32 v{T0}, v{VC}, 1, s3
            """)
            A(f"global_load_ushort v{B2}, v{T0}, s[22:23]", nm)
        elif nm[0] == "t":
            assert "TA" in done and "MD" in done
            d = T0 + 2
            if nm == "tw":
                A("s_mov_b64 exec, 1")
                A(f"buffer_load_dword v{d}, v{VWOA}, s[{SWO}:{SWO+3}], 0 offen {wflag}", nm)
                A("s_mov_b64 exec, -1")
            elif nm == "to":
                A("s_mov_b64 exec, 1")
                A(f"global_load_ushort v{d}, v{VOUT}, s[26:27]", nm)
                A("s_mov_b64 exec, -1")
            elif nm == "tp":
                A(f"v_mul_u32_u24 v{T0}, {PGS}, v{LANE}")
                A(f"v_add_u32 v{T0}, {WS_PG + 16384}, v{T0}")
                A(f"s_lshl_b64 exec, 0x0101, s{WV}")
                A(f"s_lshl_b32 exec_hi, exec_lo, 16")
                A(f"s_or_b32 exec_lo, exec_lo, exec_hi")
                A(f"s_mov_b32 exec_hi, exec_lo")
                A(f"global_load_dword v{d}, v{T0}, s[30:31]", nm)
                A("s_mov_b64 exec, -1")
            elif nm == "tg":
                A(f"global_load_dword v{d}, v{VOGL}, s[30:31] sc1", nm)
            elif nm == "ts":
                A(f"global_load_dword v{d}, v{VOGS}, s[30:31] sc1", nm)
        elif nm == "rl":
            assert "TA" in done
            if P["onew"]:
                A(f"s_cmp_lg_u32 s{WV}, 2\ns_cbranch_scc1 L_norl")
                A.optional(f"global_load_dword v{RK}, v{VRK}, s[30:31] offset:128 sc1")
                A("L_norl:")
            else:
                A(f"global_load_dword v{RK}, v{VRK}, s[30:31] offset:128 sc1", nm)
        elif nm == "vl":
            assert "SM" in done and "MD" not in done
            A(f"s_cmp_lg_u32 s{WV}, 1\ns_cbranch_scc1 L_novl")
            A(f"v_lshlrev_b32 v{QF+2}, 3, v{VC}")
            A(f"v_add_u32 v{QF+2}, {WS_VT}, v{QF+2}")
            A.optional(f"global_load_dwordx2 v[{QF}:{QF+1}], v{QF+2}, s[30:31] sc1")
            A("L_novl:")
        elif nm == "rs":
            A(f"s_add_u32 s84, s84, 128")
            A(f"s_addc_u32 s85, s85, 0")
            A(f"v_mov_b32 v{T0}, s{TAG}")
            A(f"buffer_store_dword v{T0}, v{VLIN}, s[84:87], 0 offen", nm)
        elif nm == "ID":
            A(f"global_load_dword v{YA}, v{VQT}, s[30:31] sc1", nm)
        elif nm == "I2":
            assert "PS" in done
            A(f"global_load_dword v{YA}, v{VQT}, s[30:31] sc1", nm)
        elif nm == "Q":
            A(f"global_load_dwordx4 v[{G}:{G+3}], v{VQA}, s[30:31] sc1", nm)
        elif nm == "W2a":
            A(f"s_lshl_b32 s3, s{WV}, 11")
            A(f"s_add_u32 m0, s3, {L_W2}")
            A(f"buffer_load_dwordx4 v{VW2A}, s[{SW2}:{SW2+3}], 0 offen {wflag} lds", nm)
        elif nm == "W2b":
            A(f"s_add_u32 m0, m0, 1024")
            A(f"s_movk_i32 s3, 4096")
            A(f"buffer_load_dwordx4 v{VW2A}, s[{SW2}:{SW2+3}], s3 offen {wflag} lds", nm)
        elif nm == "H":
            assert "QC" in done
            A(f"buffer_load_dwordx4 v[{G}:{G+3}], v{VHA}, s[{SHL}:{SHL+3}], 0 offen sc1", nm)
        elif nm == "WOa":
            A(f"s_lshl_b32 s3, s{WV}, 11")
            A(f"s_add_u32 m0, s3, {L_WO}")
            A(f"buffer_load_dwordx4 v{VWOA}, s[{SWO}:{SWO+3}], 0 offen {wflag} lds", nm)
        elif nm == "WOb":
            A(f"s_add_u32 m0, m0, 1024")
            A(f"s_movk_i32 s3, 4096")
            A(f"buffer_load_dwordx4 v{VWOA}, s[{SWO}:{SWO+3}], s3 offen {wflag} lds", nm)
        issued.append(nm)

    def wait(nm):
        if nm in arrived or nm not in A.vm: return
        A.wait_vm(nm)
        for x in issued[:issued.index(nm) + 1]: arrived.add(x)

    if not P["kfirst"]:
        A(f"s_load_dword s{TAG}, s[30:31], 0")
        wq_issue()
        if P["wfirst"]:
            A(WROLE); A(WADDR)
            for nm in ("W10", "W11", "W2a", "W2b") + (("WOa", "WOb") if P["wfirst"] >= 2 else ()): issue(nm)
        if P["p0bar"]: A("s_barrier")
    pos = 0
    while pos < N0:
        assert isbig(stream[pos])
        issue(stream[pos]); pos += 1
    stamp("kiss")
    if P["kfirst"]:
        A(f"s_load_dword s{TAG}, s[30:31], 0")
        A(PRO2)
        wq_issue()
    if P["pg1"]:
        if P["pgw"]:
            A(f"""
            ; touch the later code pages once while the first loads are in flight
            s_cmp_eq_u32 s{WV}, 6
            s_cbranch_scc1 L_pg1_stub
            s_cmp_eq_u32 s{WV}, 7
            s_cbranch_scc1 L_pg2_stub
            """)
        A("L_pg_ret:")
    if P["bal"]:
        A(f"""
        v_bfe_u32 v{T0}, v0, 5, 1
        v_mul_u32_u24 v{T0}, {2048 - 512}, v{T0}
        v_add_u32 v{VVV}, v{T0}, v{VLIN}
        """)
    A(f"""
    v_and_b32 v{T0}, 1, v{VS}
    v_lshrrev_b32 v{T0+1}, 1, v{VR}
    v_lshl_or_b32 v{T0+1}, v{T0}, 1, v{T0+1}
    s_and_b32 s{FP}, s{WV}, 3
    v_xor_b32 v{T0+1}, s{FP}, v{T0+1}
    v_lshlrev_b32 v{VTRP}, 3, v{VC}
    v_lshl_add_u32 v{VTRP}, v{T0+1}, 5, v{VTRP}
    v_lshl_add_u32 v{VTRP}, v{VR}, 7, v{VTRP}
    v_lshl_add_u32 v{VTRP}, v{VS}, 10, v{VTRP}
    v_and_b32 v{T0+2}, 7, v{LANE}
    v_lshlrev_b32 v{VXA}, 8, v{T0+2}
    v_lshl_add_u32 v{VXA}, v{VS}, 4, v{VXA}
    v_add_u32 v{VXA}, {L_X}, v{VXA}
    v_bfe_u32 v{TT}, v{LANE}, 2, 3
    v_lshl_add_u32 v{VPERM}, v{VC}, 4, v{TT}
    v_lshlrev_b32 v{VPERM}, 2, v{VPERM}
    s_lshl_b32 s3, s{XI}, 16
    s_lshl_b32 s{SMASK}, s{RR}, 8
    s_add_u32 s3, s3, s{SMASK}
    s_lshl_b32 s{SMASK}, s{FP}, 6
    s_add_u32 s3, s3, s{SMASK}
    s_add_u32 s3, s3, {WS_QG}
    v_lshl_add_u32 v{VQP}, v{VC}, 4, s3
    v_lshl_add_u32 v{VQP}, v{TT}, 13, v{VQP}
    s_mov_b32 s{SMASK}, 0xffffff00
    s_mov_b32 s{SEL1}, 0x0c0c0400
    s_mov_b32 s{SEL2}, 0x05040100
    s_waitcnt lgkmcnt(0)
    s_add_u32 s{TAG}, s{TAG}, 0x9e3779b9
    v_mov_b32 v{TB+3}, s{TAG}
    v_bfe_u32 v{TB}, v{TB+3}, 0, 8
    v_bfe_u32 v{TB+1}, v{TB+3}, 8, 8
    v_bfe_u32 v{TB+2}, v{TB+3}, 16, 8
    v_lshrrev_b32 v{TB+3}, 24, v{TB+3}
    """)
    SETUP2 = f"""
    ; A frag address: L_HC + (l&7)*CRS + slab*16
    v_and_b32 v{T0+2}, 7, v{LANE}
    v_mul_u32_u24 v{VAF}, {CRS}, v{T0+2}
    v_lshl_add_u32 v{VAF}, v{VS}, 4, v{VAF}
    v_add_u32 v{VAF}, {L_HC}, v{VAF}
    ; compact write address: L_QC + wv*128 + slab*32 + c*8
    s_lshl_b32 s3, s{WV}, 7
    s_add_u32 s3, s3, {L_QC}
    v_lshl_add_u32 v{VCW}, v{VC}, 3, s3
    v_lshl_add_u32 v{VCW}, v{VS}, 5, v{VCW}
    s_add_u32 s{SV}, s8, s{ST}
    s_addc_u32 s{SV+1}, s9, 0
    s_mov_b32 s{SV+2}, 0x40000
    s_mov_b32 s{SV+3}, 0x20000
    {HSEL if P['wfirst'] else WROLE}
    s_mov_b32 s{SC}, {hex(f2u(LOG2E * 128 ** -0.5))}
    v_and_b32 v{T0}, 1, v{LANE}
    v_lshlrev_b32 v{T0}, 4, v{T0}
    v_mov_b32 v{T0+1}, 0xffff
    v_lshlrev_b32 v{T0}, v{T0}, v{T0+1}
    v_bfe_i32 v{T0+1}, v{LANE}, 1, 1
    v_and_b32 v{MY}, v{T0}, v{T0+1}
    v_xor_b32 v{MX}, v{T0}, v{MY}
    v_mov_b32 v{T0}, s{SC}
    v_cmp_eq_u32 vcc, 0, v{VC}
    v_cndmask_b32 v{CM}, 0, v{T0}, vcc
    v_cmp_eq_u32 vcc, 1, v{VC}
    v_cndmask_b32 v{CM+1}, 0, v{T0}, vcc
    v_cmp_eq_u32 vcc, 2, v{VC}
    v_cndmask_b32 v{CM+2}, 0, v{T0}, vcc
    v_cmp_eq_u32 vcc, 3, v{VC}
    v_cndmask_b32 v{CM+3}, 0, v{T0}, vcc
    s_and_b32 s{CB}, s{WV}, {3 if SPL else 7}
    s_lshl_b32 s{CB}, s{CB}, {1 if SPL else 0}
    v_and_b32 v{T0}, 1, v{VS}
    v_lshl_or_b32 v{T0+1}, v{VR}, 1, v{T0}
    v_xor_b32 v{T0+1}, s{CB}, v{T0+1}
    v_lshlrev_b32 v{VTRWO}, 3, v{VC}
    v_lshl_add_u32 v{VTRWO}, v{T0+1}, 5, v{VTRWO}
    v_lshl_add_u32 v{VTRWO}, v{VR}, 11, v{VTRWO}
    v_lshl_add_u32 v{VTRWO}, v{VS}, 9, v{VTRWO}
    v_lshl_or_b32 v{T0+1}, v{T0}, 2, v{VR}
    v_xor_b32 v{T0+1}, s{CB}, v{T0+1}
    v_lshlrev_b32 v{VTRW2}, 3, v{VC}
    v_lshl_add_u32 v{VTRW2}, v{T0+1}, 5, v{VTRW2}
    v_lshl_add_u32 v{VTRW2}, v{VR}, 8, v{VTRW2}
    v_lshl_add_u32 v{VTRW2}, v{VS}, 11, v{VTRW2}
    ; gather offsets: h: wv*1024 + VKP ; q: QG + (hkv*8+b)*8192 + wv*1024 + VKP
    s_lshl_b32 s3, s{WV}, 10
    v_add_u32 v{VHA}, s3, v{VKP}
    s_lshl_b32 s3, s{XI}, 3
    s_add_u32 s3, s3, s{BB}
    s_lshl_b32 s3, s3, 13
    s_add_u32 s3, s3, {WS_QG}
    v_add_u32 v{VQA}, s3, v{VHA}
    {'' if P['wfirst'] else WADDR}
    """
    IDPUB = f"""
    s_lshr_b32 s3, s{TAG}, 24
    s_add_u32 s3, s3, 0x40
    s_and_b32 s3, s3, 0xff
    s_and_b32 s{OTAG}, s{TAG}, s{SMASK}
    s_or_b32 s{OTAG}, s{OTAG}, s3
    s_getreg_b32 s{XCC2}, hwreg(HW_REG_XCC_ID, 0, 4)
    s_lshl_b32 s3, s{XI}, 8
    s_add_u32 s3, s3, {WS_ID}
    v_and_b32 v{T0}, 31, v{LANE}
    v_lshl_add_u32 v{VQT}, v{T0}, 2, s3
    s_xor_b32 s{XCC2}, s{XCC2}, s{TAG}
    s_lshl_b32 s28, s{RR}, 2
    s_add_u32 s3, s3, s28
    s_add_u32 s84, s30, s3
    s_addc_u32 s85, s31, 0
    s_mov_b32 s86, 4
    s_mov_b32 s87, 0x20000
    v_mov_b32 v{T0+1}, s{XCC2}
    """
    A(IDPUB)
    VOTE = 43
    DEC = 89
    def racepre():
        assert P["race"] == 1
        A(f"""
        s_sub_u32 s{DEC}, s2, {28*8+4}
        s_lshr_b32 s3, s{DEC}, 3
        s_and_b32 s{DEC}, s{DEC}, 7
        s_cmp_eq_u32 s{DEC}, 0
        s_cselect_b32 s{DEC}, s3, 99
        s_cmp_gt_u32 s{DEC}, 3
        s_cbranch_scc1 L_nopre
        s_lshl3_add_u32 s{VOTE}, s{DEC}, s{WV}
        s_lshl_b32 s{VOTE}, s{VOTE}, 7
        s_add_u32 s{VOTE}, s{VOTE}, {WS_RC}
        v_lshl_add_u32 v{T0}, v{LANE}, 13, s{VOTE}
        v_mov_b32 v{T0+1}, s{TAG}
        s_mov_b64 exec, 3
        """)
        A.optional(f"global_store_dword v{T0}, v{T0+1}, s[30:31] sc1")
        A(f"""
        s_mov_b64 exec, -1
        L_nopre:
        """)
    def race():
        A(f"""
        s_cmp_gt_u32 s{DEC}, 3
        s_cbranch_scc1 L_norace
        s_and_b32 s28, s{WV}, 1
        s_lshl_b32 s28, s28, 13
        s_add_u32 s28, s28, s{VOTE}
        s_xor_b32 s29, s28, 0x2000
        s_not_b32 s17, s{TAG}
        s_load_dword s16, s[30:31], s28
        s_load_dword s17, s[30:31], s29
        s_waitcnt lgkmcnt(1)
        s_cmp_lg_u32 s17, s{TAG}
        s_cselect_b32 s{VOTE}, 1, 0
        s_waitcnt lgkmcnt(0)
        """)
        A(f"""
        s_sub_u32 s3, 0, s{VOTE}
        s_bitcmp1_b32 s{WV}, 0
        s_cselect_b32 s{VOTE}, s3, s{VOTE}
        s_lshl_b32 s3, s{WV}, 2
        s_add_u32 s3, s3, {L_LF}
        v_mov_b32 v{T0}, s3
        v_mov_b32 v{T0+1}, s{VOTE}
        ds_write_b32 v{T0}, v{T0+1}
        s_waitcnt lgkmcnt(0)
        L_norace:
        """)
    def votepub():
        A(f"""
        s_cmp_lg_u32 s{WV}, 5
        s_cbranch_scc1 L_novote
        s_cmp_gt_u32 s{DEC}, 3
        s_cbranch_scc1 L_novote
        v_mov_b32 v{T0}, {L_LF}
        ds_read_b128 v[{TT}:{TT+3}], v{T0}
        ds_read_b128 v[{TT+4}:{TT+7}], v{T0} offset:16
        s_lshl_b32 s3, s{DEC}, 3
        s_add_u32 s3, s3, {WS_VT}
        v_mov_b32 v{T0}, s3
        s_waitcnt lgkmcnt(0)
        v_add3_u32 v{TT+1}, v{TT}, v{TT+1}, v{TT+2}
        v_add3_u32 v{TT+3}, v{TT+3}, v{TT+4}, v{TT+5}
        v_add3_u32 v{TT+1}, v{TT+1}, v{TT+6}, v{TT+7}
        v_add_u32 v{TT+1}, v{TT+1}, v{TT+3}
        v_mov_b32 v{TT}, s{TAG}
        s_mov_b64 exec, 1
        """)
        A.optional(f"global_store_dwordx2 v{T0}, v[{TT}:{TT+1}], s[30:31] sc1")
        A("""
        s_mov_b64 exec, -1
        L_novote:
        """)
    if not P["idlate"]:
        A(f"buffer_store_dword v{T0+1}, v{VLIN}, s[84:87], 0 offen", "idst")
        issued.append("idst")
    A(SETUP2)
    if P["prio"]:
        A(f"""
        s_cmp_lt_u32 s{WV}, 4
        s_cbranch_scc1 L_prio
        s_setprio {P["prio"]}
        L_prio:
        """)
    if P["wpre"]:
        for nm in ("W10", "W11", "W2a", "W2b"): issue(nm)
    stamp("setup")

    def p0tile(lw):
        W = TT; XR = TT + 16; D = KD
        for u in range(4):
            A(f"ds_read_b128 v[{XR+4*u}:{XR+4*u+3}], v{VXA} offset:{u*64}")
            for hf in range(2):
                A(f"ds_read_b64_tr_b16 v[{W+4*u+hf*2}:{W+4*u+hf*2+1}], v{VTRP} offset:{lw + u*4096 + hf*512}")
        for u in range(4):
            A(f"s_waitcnt lgkmcnt({9-3*u})")
            c = "0" if u == 0 else f"v[{D}:{D+3}]"
            A(f"v_mfma_f32_16x16x32_bf16 v[{D}:{D+3}], v[{W+4*u}:{W+4*u+3}], v[{XR+4*u}:{XR+4*u+3}], {c}")
        for r in range(4):
            A(f"v_and_or_b32 v{D+r}, v{D+r}, s{SMASK}, v{TB+r}")
        for r in range(4):
            A(f"ds_bpermute_b32 v{D+4+r}, v{VPERM}, v{D+r}")
        A("s_waitcnt lgkmcnt(0)")

    def pubstore(lbl, ins):
        A(f"""
        s_mov_b32 exec_hi, 0
        s_cmp_eq_u32 s{LOCAL}, 0
        s_cbranch_scc1 L_{lbl}_loc
        """)
        A.optional(ins + " sc1")
        A(f"""
        s_branch L_{lbl}_st
        L_{lbl}_loc:
        """)
        A.optional(ins + " " + P["qhl"])
        A(f"""
        L_{lbl}_st:
        s_mov_b32 exec_hi, -1
        s_nop 1
        """)

    def pbar():
        wait("wq1")
        stamp("x1")
        if P["idlate"]:
            A(f"""
            s_cmp_lg_u32 s{WV}, 4
            s_cbranch_scc1 L_noid
            v_mov_b32 v{T0+1}, s{XCC2}
            """)
            A.optional(f"buffer_store_dword v{T0+1}, v{VLIN}, s[84:87], 0 offen")
            A("L_noid:")
        A("s_barrier")
        stamp("bar1")
        if stamps: A("s_waitcnt lgkmcnt(0)")
        A(f"""
        s_cmp_gt_u32 s{WV}, 3
        s_cbranch_scc1 L_p0_done
        """)
        p0tile(L_WQ)
        A("L_p0_done:")
        if P["race"]: racepre()
        if P["pt"]:
            A(f"""
            s_cmp_lg_u32 s{WV}, 7
            s_cbranch_scc1 L_nopt
            s_mov_b64 exec, 1
            """)
            for c in P["pt"]:
                srd = dict(v=SV, o=SWO, w=SW2, u=SW1, b=SB1).get(c)
                if srd: A.optional(f"buffer_load_dword v{T0+2}, v{VLIN}, s[{srd}:{srd+3}], 0 offen nt")
                else:
                    p = dict(g=24, c=22, d=26)[c]
                    A.optional(f"global_load_dword v{T0+2}, v{VLIN}, s[{p}:{p+1}]")
            A(f"""
            s_mov_b64 exec, -1
            L_nopt:
            """)
        stamp("p0done")

    def qpub():
        A(f"""
        v_cmp_ne_u32 vcc, s{XCC2}, v{YA}
        {"s_and_b32" if P["forcelocal"] else "s_or_b32"} s{LOCAL}, vcc_lo, {0 if P["local"] else 1}
        s_cmp_gt_u32 s{WV}, 3
        s_cbranch_scc1 L_qp_done
        """)
        pubstore("qp", f"global_store_dwordx4 v{VQP}, v[{KD+4}:{KD+7}], s[30:31]")
        A("L_qp_done:")
        if P["race"] and P["racelate"]:
            A("s_waitcnt lgkmcnt(0)")
            race()
        stamp("qpub")

    def tagcheck(lbl, tagreg, reload):
        C = TT
        A(f"""
        s_mov_b32 s{CNT}, {spin}
        L_{lbl}_chk:
        v_perm_b32 v{C}, v{G+1}, v{G}, s{SEL1}
        v_perm_b32 v{C+1}, v{G+3}, v{G+2}, s{SEL1}
        v_perm_b32 v{C}, v{C+1}, v{C}, s{SEL2}
        v_cmp_ne_u32 vcc, s{tagreg}, v{C}
        s_cbranch_vccz L_{lbl}_ok
        s_sub_u32 s{CNT}, s{CNT}, 1
        s_cbranch_scc1 L_{lbl}_ok
        """)
        A.optional(reload)
        A(f"""
        s_waitcnt vmcnt(0)
        s_branch L_{lbl}_chk
        L_{lbl}_ok:
        """)
        for r in range(4):
            A(f"v_and_b32 v{G+r}, s{SMASK}, v{G+r}")
        for ror in (8, 4):
            for r in range(4):
                A(f"v_add_f32_dpp v{G+r}, v{G+r}, v{G+r} row_ror:{ror} {dpp}")

    def qcomb():
        stamp("qarr")
        tagcheck("q", TAG, f"global_load_dwordx4 v[{G}:{G+3}], v{VQA}, s[30:31] sc1")
        A(f"""
        v_cvt_pk_bf16_f32 v{G}, v{G}, v{G+1}
        v_cvt_pk_bf16_f32 v{G+1}, v{G+2}, v{G+3}
        v_cmp_ne_u32 vcc, s{XCC2}, v{YA}
        ds_write_b64 v{VCW}, v[{G}:{G+1}]
        {"s_and_b32" if P["forcelocal"] else "s_or_b32"} s{LOCAL}, vcc_lo, {0 if P["local"] else 1}
        s_mul_i32 s3, s{WV}, {CRS - 128}
        s_add_u32 s3, s3, {L_HC - L_QC}
        v_add_u32 v{VCW}, s3, v{VCW}
        """)
        stamp("qgot")

    def qbar():
        assert "W11" in arrived
        A(f"""
        s_waitcnt lgkmcnt(0)
        s_barrier
        v_add_u32 v{T0}, {L_QC}, v{VKP}
        ds_read_b128 v[{QF}:{QF+3}], v{T0}
        """)
        if P["alias"]:
            A(f"""
            ; this workgroup has read its q granules: their slots may now be reused
            s_cmp_lg_u32 s{WV}, 3
            s_cbranch_scc1 L_ct_done
            s_add_u32 s84, s84, 128
            s_addc_u32 s85, s85, 0
            v_mov_b32 v{T0+1}, s{TAG}
            """)
            pubstore("ct", f"buffer_store_dword v{T0+1}, v{VLIN}, s[84:87], 0 offen")
            A("L_ct_done:")
        A(f"""
        s_cmp_lt_u32 s{WV}, 4
        s_cselect_b32 s3, 0, s{SHS+2}
        s_waitcnt lgkmcnt(0)
        s_cmp_eq_u32 s3, 0
        s_cbranch_scc1 L_h_done
        s_lshl_b32 s3, s{SS}, 8
        s_and_b32 s28, s{WV}, 3
        s_lshl_b32 s28, s28, 6
        s_add_u32 s3, s3, s28
        v_bfe_u32 v{T0+1}, v{LANE}, 2, 3
        v_lshl_add_u32 v{T0}, v{VC}, 4, s3
        v_lshl_add_u32 v{T0}, v{T0+1}, 10, v{T0}
        """)
        p0tile(L_W1)
        pubstore("hp", f"buffer_store_dwordx4 v[{KD+4}:{KD+7}], v{T0}, s[{SHS}:{SHS+3}], 0 offen")
        A("L_h_done:")
        if P["race"] and P["racelate"]: votepub()
        stamp("qready")

    def xreduce(reg, tmp, op):
        A(f"""
        v_mov_b32 v{tmp}, v{reg}
        v_permlane32_swap_b32 v{reg}, v{tmp}
        {op} v{reg}, v{reg}, v{tmp}
        v_mov_b32 v{tmp}, v{reg}
        v_permlane16_swap_b32 v{reg}, v{tmp}
        {op} v{reg}, v{reg}, v{tmp}
        """)

    def gate():
        A(f"v_dot2_f32_bf16 v{GV}, v{XG}, v{XG+4}, 0")
        for i in range(1, 4):
            A(f"v_dot2_f32_bf16 v{GV}, v{XG+i}, v{XG+4+i}, v{GV}")
        A(f"""
        v_add_f32_dpp v{GV}, v{GV}, v{GV} quad_perm:[1,0,3,2] {dpp}
        v_add_f32_dpp v{GV}, v{GV}, v{GV} quad_perm:[2,3,0,1] {dpp}
        v_add_f32_dpp v{GV}, v{GV}, v{GV} row_ror:8 {dpp}
        v_add_f32_dpp v{GV}, v{GV}, v{GV} row_ror:4 {dpp}
        """)
        xreduce(GV, T0, "v_add_f32")
        A(f"""
        v_mul_f32 v{GV}, {hex(f2u(-LOG2E))}, v{GV}
        v_exp_f32 v{GV}, v{GV}
        s_lshl_b32 s3, s{WV}, 2
        s_add_u32 s3, s3, {L_GT}
        v_add_f32 v{GV}, 1.0, v{GV}
        v_mov_b32 v{T0}, s3
        v_rcp_f32 v{GV}, v{GV}
        s_nop 0
        ds_write_b32 v{T0}, v{GV}
        """)

    def hcomb():
        if P["alias"]:
            A(f"""
            {f"s_cmp_lg_u32 s{WV}, 2" if P["onew"] else "s_cmp_lg_u32 s2, s2"}
            s_cbranch_scc1 L_c_ok
            s_mov_b32 s{CNT}, {spin}
            L_c_chk:
            v_cmp_ne_u32 vcc, s{TAG}, v{RK}
            s_cbranch_vccz L_c_ok
            s_sub_u32 s{CNT}, s{CNT}, 1
            s_cbranch_scc1 L_c_ok
            """)
            A.optional(f"global_load_dword v{RK}, v{VRK}, s[30:31] offset:128 sc1")
            A(f"""
            s_waitcnt vmcnt(0)
            s_branch L_c_chk
            L_c_ok:
            """)
        if P["race"]:
            A(f"""
            s_cmp_lg_u32 s{WV}, 1
            s_cbranch_scc1 L_v_done
            s_mov_b32 s{CNT}, {spin}
            L_v_chk:
            v_cmp_ne_u32 vcc, s{TAG}, v{QF}
            s_cbranch_vccz L_v_ok
            s_sub_u32 s{CNT}, s{CNT}, 1
            s_cbranch_scc1 L_v_ok
            """)
            A.optional(f"global_load_dwordx2 v[{QF}:{QF+1}], v{QF+2}, s[30:31] sc1")
            A(f"""
            s_waitcnt vmcnt(0)
            s_branch L_v_chk
            L_v_ok:
            v_add_u32_dpp v{QF+1}, v{QF+1}, v{QF+1} quad_perm:[1,0,3,2] {dpp}
            v_add_u32_dpp v{QF+1}, v{QF+1}, v{QF+1} quad_perm:[2,3,0,1] {dpp}
            ; deciders sit in groups 4..7, whose lines have bit13 = 1: flip when that side looked far
            v_sub_u32 v{QF+1}, {1 if P["raceinv"] else 0}, v{QF+1}
            v_lshrrev_b32 v{QF+1}, 31, v{QF+1}
            v_lshlrev_b32 v{QF+1}, 13, v{QF+1}
            """)
            if P["raceinv"]: A(f"v_xor_b32 v{QF+1}, 0x2000, v{QF+1}")
            A(f"""
            v_mov_b32 v{QF}, {L_LF}
            ds_write_b32 v{QF}, v{QF+1}
            L_v_done:
            """)
        tagcheck("h", HTAG, f"buffer_load_dwordx4 v[{G}:{G+3}], v{VHA}, s[{SHL}:{SHL+3}], 0 offen sc1")
        c1 = math.sqrt(2 / math.pi)
        k1 = -2 * c1 * LOG2E; k3 = k1 * 0.044715
        U = TT + 8
        A(f"""
        v_lshlrev_b32 v{TT}, 16, v{B1}
        v_and_b32 v{TT+1}, 0xffff0000, v{B1}
        v_lshlrev_b32 v{TT+2}, 16, v{B1+1}
        v_and_b32 v{TT+3}, 0xffff0000, v{B1+1}
        v_mov_b32 v{TT+4}, {hex(f2u(k1))}
        v_sub_f32 v{TT+5}, 1.0, v{GV}
        """)
        for r in range(4): A(f"v_add_f32 v{G+r}, v{G+r}, v{TT+r}")
        for r in range(4): A(f"v_mul_f32 v{U+r}, v{G+r}, v{G+r}")
        for r in range(4): A(f"v_fmamk_f32 v{U+r}, v{U+r}, {hex(f2u(k3))}, v{TT+4}")
        for r in range(4): A(f"v_mul_f32 v{U+r}, v{U+r}, v{G+r}")
        for r in range(4): A(f"v_exp_f32 v{U+r}, v{U+r}")
        for r in range(4): A(f"v_add_f32 v{U+r}, 1.0, v{U+r}")
        for r in range(4): A(f"v_rcp_f32 v{U+r}, v{U+r}")
        for r in range(4): A(f"v_mul_f32 v{G+r}, v{G+r}, v{TT+5}")
        for r in range(4): A(f"v_mul_f32 v{G+r}, v{G+r}, v{U+r}")
        A(f"""
        v_cvt_pk_bf16_f32 v{G}, v{G}, v{G+1}
        v_cvt_pk_bf16_f32 v{G+1}, v{G+2}, v{G+3}
        ds_write_b64 v{VCW}, v[{G}:{G+1}]
        """)

    pend = []
    def kextract():
        i = pend.pop(0); t = i % 4; d = KD + 4 * (i % 2)
        for c in range(4):
            op = "v_mul_f32_dpp" if t == 0 else "v_fmac_f32_dpp"
            A(f"{op} v{YA+c}, v{d+c}, v{CM+t} quad_perm:[{c},{c},{c},{c}] {dpp}")
        if t == 3:
            A(f"v_add_f32 v{T0}, v{YA}, v{YA+1}")
            A(f"v_add_f32 v{T0+1}, v{YA+2}, v{YA+3}")
            A(f"v_add_f32 v{SP + i//4}, v{T0}, v{T0+1}")
    def kload(i):
        r = ring(i); d = KD + 4 * (i % 2)
        A(f"v_mfma_f32_16x16x32_bf16 v[{d}:{d+3}], v[{r}:{r+3}], v[{QF}:{QF+3}], 0")
        if pend: kextract()
        pend.append(i)

    def qreduce(reg, op):
        A(f"{op}_dpp v{reg}, v{reg}, v{reg} quad_perm:[1,0,3,2] {dpp}")
        A(f"{op}_dpp v{reg}, v{reg}, v{reg} quad_perm:[2,3,0,1] {dpp}")

    def softmax():
        while pend: kextract()
        m = TT
        A(f"""
        v_max3_f32 v{m}, v{SP}, v{SP+1}, v{SP+2}
        v_max3_f32 v{m+1}, v{SP+3}, v{SP+4}, v{SP+5}
        v_max3_f32 v{m}, v{m}, v{SP+6}, v{SP+7}
        v_max_f32 v{MREG}, v{m}, v{m+1}
        """)
        qreduce(MREG, "v_max_f32")
        xreduce(MREG, m, "v_max_f32")
        for i in range(8): A(f"v_sub_f32 v{SP+i}, v{SP+i}, v{MREG}")
        for i in range(8): A(f"v_exp_f32 v{SP+i}, v{SP+i}")
        for i in range(4): A(f"v_add_f32 v{m+i}, v{SP+2*i}, v{SP+2*i+1}")
        A(f"v_add_f32 v{m}, v{m}, v{m+1}")
        A(f"v_add_f32 v{m+2}, v{m+2}, v{m+3}")
        for i in range(4): A(f"v_cvt_pk_bf16_f32 v{SP+i}, v{SP+i}, v{SP+i}")
        A(f"v_add_f32 v{m}, v{m}, v{m+2}")
        for i in range(4, 8): A(f"v_cvt_pk_bf16_f32 v{SP+i}, v{SP+i}, v{SP+i}")
        qreduce(m, "v_add_f32")
        xreduce(m, m + 1, "v_add_f32")
        A(f"""
        s_lshl_b32 s3, s{WV}, 2
        s_add_u32 s3, s3, {L_ML}
        v_lshl_add_u32 v{m+2}, v{VR}, 5, s3
        ds_write_b32 v{m+2}, v{MREG}
        ds_write_b32 v{m+2}, v{m} offset:128
        """)

    def vprep(j):
        x = XY + 2 * (j % 2); t = j % 4
        A(f"v_and_b32_dpp v{x}, v{SP + ((j//4) ^ VX)}, v{MX} quad_perm:[{t},{t},{t},{t}] {dpp}")
        A(f"v_and_b32_dpp v{x+1}, v{SP + ((j//4) ^ VX)}, v{MY} quad_perm:[{t},{t},{t},{t}] {dpp}")
    def vload(j):
        x = XY + 2 * (j % 2); r = ring(32 + j)
        for eh in range(2):
            o = OA + 4 * eh
            c = "0" if j == 0 else f"v[{o}:{o+3}]"
            A(f"v_mfma_f32_16x16x16_bf16 v[{o}:{o+3}], v[{r+2*eh}:{r+2*eh+1}], v[{x}:{x+1}], {c}")

    HF = KD
    W2F = 128
    def ffn2_reads(wa, wb):
        for u in range(2):
            for hf in range(2):
                A(f"ds_read_b64_tr_b16 v[{wa+4*u+2*hf}:{wa+4*u+2*hf+1}], v{VTRW2} offset:{L_W2 + u*8192 + hf*1024}")
        if SPL:
            for u in range(2):
                for hf in range(2):
                    A(f"ds_read_b64_tr_b16 v[{wb+4*u+2*hf}:{wb+4*u+2*hf+1}], v{VTRW2B} offset:{L_W2 + u*8192 + hf*1024}")
    def ffn2_mfma(wa, wb):
        A(f"""
        v_mfma_f32_16x16x32_bf16 v[{D2}:{D2+3}], v[{HF}:{HF+3}], v[{wa}:{wa+3}], 0
        v_mfma_f32_16x16x32_bf16 v[{D2}:{D2+3}], v[{HF+4}:{HF+7}], v[{wa+4}:{wa+7}], v[{D2}:{D2+3}]
        """)
        if SPL:
            A(f"""
            v_mfma_f32_16x16x32_bf16 v[{D2B}:{D2B+3}], v[{HF}:{HF+3}], v[{wb}:{wb+3}], 0
            v_mfma_f32_16x16x32_bf16 v[{D2B}:{D2B+3}], v[{HF+4}:{HF+7}], v[{wb+4}:{wb+7}], v[{D2B}:{D2B+3}]
            """)
    def wo_reads():
        for u in range(2):
            for hf in range(2):
                A(f"ds_read_b64_tr_b16 v[{WF+4*u+2*hf}:{WF+4*u+2*hf+1}], v{VTRWO} offset:{L_WO + u*8192 + hf*256}")
            if SPL:
                for hf in range(2):
                    A(f"ds_read_b64_tr_b16 v[{WF2+4*u+2*hf}:{WF2+4*u+2*hf+1}], v{VTRWOB} offset:{L_WO + u*8192 + hf*256}")
    VTRW2B, VTRWOB = B1, B1 + 1
    def mid():
        assert P["late"] >= 2 or "W2b" in arrived
        m = TT
        GF = TT + 24
        A(f"""
        v_xor_b32 v{VTRW2B}, 32, v{VTRW2}
        v_xor_b32 v{VTRWOB}, 32, v{VTRWO}
        s_waitcnt lgkmcnt(0)
        s_barrier
        v_lshlrev_b32 v{T0}, 5, v{VR}
        v_add_u32 v{T0}, {L_ML}, v{T0}
        ds_read_b128 v[{m}:{m+3}], v{T0}
        ds_read_b128 v[{m+4}:{m+7}], v{T0} offset:16
        ds_read_b128 v[{m+8}:{m+11}], v{T0} offset:128
        ds_read_b128 v[{m+12}:{m+15}], v{T0} offset:144
        ds_read_b128 v[{HF}:{HF+3}], v{VAF}
        ds_read_b128 v[{HF+4}:{HF+7}], v{VAF} offset:64
        ds_read_b32 v{GF}, v{VQA}
        """)
        if P["race"]:
            A(f"v_mov_b32 v{GF+1}, {L_LF}")
            A(f"ds_read_b32 v{GF+1}, v{GF+1}")
        A("s_waitcnt lgkmcnt(4)")
        if P["late"] < 2: ffn2_reads(WF, WF2)
        M = T0 + 1
        A("s_waitcnt lgkmcnt(0)")
        if P["late"] < 2: ffn2_mfma(WF, WF2)
        if P["race"]:
            A(f"v_xor_b32 v{VPGS}, v{GF+1}, v{VPGS}")
            A(f"v_xor_b32 v{VPGL}, v{GF+1}, v{VPGL}")
        A(f"""
        v_max3_f32 v{M}, v{m}, v{m+1}, v{m+2}
        v_max3_f32 v{M}, v{M}, v{m+3}, v{m+4}
        v_max3_f32 v{M}, v{M}, v{m+5}, v{m+6}
        v_max_f32 v{M}, v{M}, v{m+7}
        """)
        for w in range(8):
            A(f"v_sub_f32 v{m+w}, v{m+w}, v{M}")
        A(f"v_sub_f32 v{FAC}, v{MREG}, v{M}")
        for w in range(8):
            A(f"v_exp_f32 v{m+w}, v{m+w}")
        A(f"v_exp_f32 v{FAC}, v{FAC}")
        A(f"v_mul_f32 v{m}, v{m}, v{m+8}")
        for w in range(1, 8):
            A(f"v_fmac_f32 v{m}, v{m+w}, v{m+8+w}")
        A(f"""
        v_rcp_f32 v{m+1}, v{m}
        v_log_f32 v{m+2}, v{m}
        v_mul_f32 v{FAC}, v{FAC}, v{m+1}
        v_add_f32 v{m+2}, v{m+2}, v{M}
        v_lshlrev_b32 v{m+3}, 2, v{VR}
        v_add_u32 v{m+3}, {L_LSE}, v{m+3}
        ds_write_b32 v{m+3}, v{m+2}
        v_sub_f32 v{GF}, 1.0, v{GF}
        v_lshlrev_b32 v{B2}, 16, v{B2}
        v_mul_f32 v{B2}, v{B2}, v{GF}
        """)

    def tailaddr():
        m = TT; BI = TT + 8
        A(f"""
        v_and_b32 v{T0}, 1, v{VS}
        v_lshlrev_b32 v{T0}, 1, v{T0}
        v_lshrrev_b32 v{BI}, 1, v{VS}
        v_or_b32 v{BI}, v{BI}, v{T0}
        s_lshr_b32 s3, s{RR}, 4
        s_lshl_b32 s3, s3, 2
        v_add_u32 v{BI}, s3, v{BI}
        v_lshlrev_b32 v{T0}, 2, v{BI}
        v_add_u32 v{VQA}, {L_GT}, v{T0}
        v_mov_b32 v{VRK}, v{VQT}
        """)
        if P["late"] and P["lw"] == 4:
            A(f"v_and_b32 v{VWOA}, 0x7fff, v{VWOA}")
            if P["late"] >= 2: A(f"v_and_b32 v{VW2A}, 0x7fff, v{VW2A}")
        A(f"""
        s_mul_i32 s3, s{WV}, {OPS}
        s_add_u32 s3, s3, {L_OP}
        v_add_u32 v{VOPW}, s3, v{VLIN}
        s_lshr_b32 s3, s{WV}, 1
        s_lshl_b32 s28, s3, 6
        s_lshl_b32 s3, s3, 2
        s_add_u32 s3, s3, {L_LSE}
        v_mov_b32 v{VLSE}, s3
        s_and_b32 s3, s{WV}, 1
        s_lshl_b32 s3, s3, 9
        s_add_u32 s3, s3, s28
        s_add_u32 s3, s3, {L_OP}
        v_lshl_add_u32 v{VOPR}, v{VC}, 4, s3
        v_mul_u32_u24 v{m}, {2 * OPS}, v{VR}
        v_add_u32 v{VOPR}, v{m}, v{VOPR}
        v_lshrrev_b32 v{m}, 1, v{VS}
        v_lshl_add_u32 v{VOPR}, v{m}, 8, v{VOPR}
        v_and_b32 v{m}, 1, v{VS}
        v_lshl_add_u32 v{VOPR}, v{m}, 10, v{VOPR}
        s_lshl_b32 s3, s{KG}, 13
        s_add_u32 s3, s3, {WS_OG}
        v_add_u32 v{VOGL}, s3, v{VHA}
        ; og store: OG + (hkv*8+wv)*8192 + r*256 + (slab*4+c)*16
        s_lshl_b32 s3, s{XI}, 3
        s_add_u32 s3, s3, s{WV}
        s_lshl_b32 s3, s3, 13
        s_lshl_b32 s28, s{RR}, 8
        s_add_u32 s3, s3, s28
        s_add_u32 s3, s3, {WS_OG}
        v_lshl_add_u32 v{VOGS}, v{VC}, 4, s3
        v_lshl_add_u32 v{VOGS}, v{VS}, 6, v{VOGS}
        ; pg store: PG + kg*PGS + (ng*8+wv)*512 + l*16 (lanes<32)
        s_lshl_b32 s3, s{SS}, 3
        s_add_u32 s3, s3, s{CB}
        s_lshl_b32 s3, s3, 9
        s_mul_i32 s28, s{KG}, {PGS}
        s_add_u32 s3, s3, s28
        s_add_u32 s3, s3, {WS_PG}
        v_add_u32 v{VPGS}, s3, v{VLIN}
        ; pg load (lanes<32): PG + (((l>>2)&7)*8 + wv)*PGS + (cq>>2)*512 + bh*256 + (cq&3)*64 + c*16
        s_lshl_b32 s3, s{XI}, 2
        s_bfe_u32 s28, s{RR}, 0x20002
        s_add_u32 s3, s3, s28
        s_lshl_b32 s3, s3, 9
        s_lshr_b32 s28, s{RR}, 4
        s_lshl_b32 s28, s28, 8
        s_add_u32 s3, s3, s28
        s_lshl_b32 s28, s{SS}, 6
        s_add_u32 s3, s3, s28
        s_mul_i32 s28, s{CB}, {PGS}
        s_add_u32 s3, s3, s28
        s_add_u32 s3, s3, {WS_PG}
        v_bfe_u32 v{m+1}, v{LANE}, 2, 3
        v_mul_u32_u24 v{m+1}, {8*PGS}, v{m+1}
        v_lshl_add_u32 v{VPGL}, v{VC}, 4, s3
        v_add_u32 v{VPGL}, v{VPGL}, v{m+1}
        v_lshrrev_b32 v{m+1}, 5, v{LANE}
        v_mul_u32_u24 v{m+1}, {PGS if SPL else 0}, v{m+1}
        v_add_u32 v{VPGL}, v{VPGL}, v{m+1}
        """)
        if P["pgflip"] >= 0:
            A(f"""
            s_add_u32 s3, s30, {WS_PG}
            s_lshr_b32 s3, s3, 8
            s_xor_b32 s3, s3, {P["pgflip"] << 13}
            s_and_b32 s3, s3, 0x2000
            v_xor_b32 v{VPGS}, s3, v{VPGS}
            v_xor_b32 v{VPGL}, s3, v{VPGL}
            """)
        A(f"""
        s_lshl_b32 s3, s{CB}, 9
        s_add_u32 s3, s3, {L_PF}
        v_add_u32 v{VPFW}, s3, v{VLIN}
        v_add_u32 v{VPFR}, {L_PF}, v{VLIN}
        s_and_b32 s3, s{RR}, 15
        s_lshl_b32 s28, s{XI}, 4
        s_add_u32 s3, s3, s28
        s_lshl_b32 s3, s3, 3
        v_lshl_add_u32 v{VOUT}, v{VC}, 1, s3
        v_lshl_add_u32 v{VOUT}, v{BI}, 10, v{VOUT}
        """)

    qstep = [0]; mstep = [0]
    def nbig(): return sum(1 for n in issued if isbig(n))
    def next_work(force=False):
        if "PB" not in done:
            return "PB" if nbig() >= N0 + P["pdelay"] else None
        if "PS" not in done and "ID" in arrived: return "PS"
        if "GT" not in done and "B2" in arrived: return "GT"
        if "PS" not in done: return None
        if "QC" not in done:
            return "QC" if "Q" in arrived else None
        if "QB" not in done:
            return "QB" if (force or nbig() >= qstep[0] + qdelay) else None
        for i in range(32):
            if f"KL{i}" not in done:
                if f"K{i}" in arrived: return f"KL{i}"
                return "TA" if "TA" not in done else None
        if "SM" not in done: return "SM"
        if "TA" not in done: return "TA"
        if "HC" not in done and "H" in arrived: return "HC"
        if "HC" in done and "MD" not in done and (force or nbig() >= mstep[0] + P["middelay"]): return "MD"
        for j in range(32):
            if f"VL{j}" not in done:
                return f"VL{j}" if f"V{j}" in arrived else None
        return None
    def run(w):
        if w[:2] in P["skip"].split(","):
            if w == "QC": qstep[0] = nbig()
        elif w == "PB": pbar()
        elif w == "PS": qpub()
        elif w == "GT": gate()
        elif w == "QC": qcomb(); qstep[0] = nbig()
        elif w == "QB": qbar()
        elif w == "HC": hcomb(); mstep[0] = nbig()
        elif w == "MD": mid()
        elif w == "TA": tailaddr()
        elif w[:2] == "KL": kload(int(w[2:]))
        elif w == "SM": softmax()
        elif w[:2] == "VL":
            j = int(w[2:]); vprep(j); vload(j)
        done.add(w)

    def can_issue(nm):
        if nm[0] == "V": return 32 + int(nm[1:]) - NR < 0 or slot_free(32 + int(nm[1:]) - NR)
        if nm == "H": return "QC" in done
        if nm in ("XG", "GW"): return "PB" in done
        return True
    if P["pdelay"] == 0: run("PB")
    while pos < len(stream):
        nm = stream[pos]
        assert nm not in ("XG", "GW") or "PB" in done
        if isbig(nm):
            prev = [n for n in stream[:pos] if isbig(n)]
            Nc = P["Nend"] if len(prev) >= P["endpos"] else (int(P["npat"][len(prev) % len(P["npat"])]) if P["npat"] else N)
            if len(prev) >= Nc: wait(prev[-Nc])
        if nm[0] == "V" and 32 + int(nm[1:]) - NR >= 0:
            while not slot_free(32 + int(nm[1:]) - NR):
                w = next_work(force=True)
                assert w is not None, "stream stalls on processing"
                run(w)
        issue(nm); pos += 1
        stamp("i" + nm)
        for k in (1, 2):
            if nm == P[f"pg{k}"]:
                A(f"s_branch L_pg{k}_cont")
                A.raw(".p2align 12")
                A(f"""
                L_pg{k}_stub:
                s_branch L_pg_ret
                L_pg{k}_cont:
                """)
        if nm in P["sync"].split(","): A("s_barrier")
        if pos < len(stream) and not isbig(stream[pos]): continue
        w = next_work()
        if w in ("PB", "QB", "MD", "SM", "HC", "TA"):
            nb = 0
            while nb < P["boost"] and pos < len(stream) and can_issue(stream[pos]):
                nb += isbig(stream[pos])
                issue(stream[pos]); stamp("i" + stream[pos]); pos += 1
        if w:
            run(w)
            k = 1
            while w and w[:2] in ("VL", "KL") and k < P["kburst"]:
                w = next_work()
                if w and w[:2] in ("VL", "KL"): run(w); k += 1
    while True:
        w = next_work(force=True)
        if not w: break
        run(w)
    assert {"SM", "HC", "GT", "MD", "TA"} <= done
    stamp("allissued")
    A(f"v_mov_b32 v{TT+3}, s{OTAG}")
    def late_loads(cnt):
        A(f"s_lshl_b32 s28, s{CB}, 10")
        assert SPL
        for (va, srd, lb) in ([(VWOA, SWO, L_WO)] + ([(VW2A, SW2, L_W2)] if P["late"] >= 2 else [])):
            for k in range(4):
                A(f"s_add_u32 m0, s28, {lb + (k >> 1) * 8192 + (k & 1) * 1024}")
                A(f"s_mov_b32 s3, {(k >> 1) * 32768 + (k & 1) * 4096}")
                A(f"buffer_load_dwordx4 v{va}, s[{srd}:{srd+3}], s3 offen {wflag} lds", "wl" if cnt else False)
    rest = [j for j in range(32) if f"VL{j}" not in done]
    def drain():
        for j in rest:
            vprep(j); A.wait_vm(f"V{j}"); vload(j)
    if P["rank"]:
        assert "rl" in arrived and P["late"] and P["lw"] == 4
        A(f"""
        v_cmp_eq_u32 vcc, s{TAG}, v{RK}
        s_bcnt1_i32_b32 s3, vcc_lo
        {"s_cmp_lt_u32" if P["lhalf"] else "s_cmp_gt_u32"} s{WV}, {4 if P["lhalf"] else 3}
        s_cselect_b32 s3, 0, s3
        s_cmp_ge_u32 s3, {P["rank"]}
        s_cbranch_scc0 L_drain_a
        """)
        save = list(A.vm)
        late_loads(True)
        drain()
        A("s_branch L_nolate")
        A.vm = save
        A("L_drain_a:")
    drain()
    if P["late"]:
        if P["lw"] == 8:
            for nm in (["WOa", "WOb"] + (["W2a", "W2b"] if P["late"] >= 2 else [])): issue(nm)
        else:
            A(f"""
            {"s_cmp_lt_u32" if P["lhalf"] else "s_cmp_gt_u32"} s{WV}, {4 if P["lhalf"] else 3}
            s_cbranch_scc1 L_nolate
            """)
            late_loads(False)
            A("L_nolate:")
            A("s_nop 5")
    for j in rest: done.add(f"VL{j}"); arrived.add(f"V{j}")
    if not P["late"] and P["wopos"] < 32: arrived.add("WOb")
    stamp("vdone")
    for i in range(8):
        A(f"v_mul_f32 v{OA+i}, v{OA+i}, v{FAC}")
    R0 = TT + 16
    wo_in = "WOb" in arrived
    A(f"""
    ds_write_b128 v{VOPW}, v[{OA}:{OA+3}]
    ds_write_b128 v{VOPW}, v[{OA+4}:{OA+7}] offset:1024
    s_waitcnt lgkmcnt(0)
    s_barrier
    """)
    stamp("obar")
    if stamps and "obar" in stamps: A("s_waitcnt lgkmcnt(0)")
    A(f"""
    ds_read_b128 v[{R0}:{R0+3}], v{VOPR}
    ds_read_b128 v[{R0+4}:{R0+7}], v{VOPR} offset:{OPS}
    ds_read_b32 v{TT+2}, v{VLSE}
    s_cmp_eq_u32 s{LOCAL}, 0
    s_waitcnt lgkmcnt(1)
    """)
    for r in range(4):
        A(f"v_add_f32 v{R0+r}, v{R0+r}, v{R0+4+r}")
    for ror in (8, 4):
        for r in range(4):
            A(f"v_add_f32_dpp v{R0+r}, v{R0+r}, v{R0+r} row_ror:{ror} {dpp}")
    A(f"""
    v_cvt_pk_bf16_f32 v{TT}, v{R0}, v{R0+1}
    v_cvt_pk_bf16_f32 v{TT+1}, v{R0+2}, v{R0+3}
    s_mov_b32 exec_lo, 0x000f000f
    s_mov_b32 exec_hi, 0x000f000f
    s_waitcnt lgkmcnt(0)
    s_cbranch_scc0 L_og_glob
    """)
    A.optional(f"global_store_dwordx4 v{VOGS}, v[{TT}:{TT+3}], s[30:31] {P['ogl']}")
    A("L_og_done:")
    A("s_mov_b64 exec, -1")
    stamp("ogpub")
    A.optional(f"global_load_dwordx4 v[{G}:{G+3}], v{VOGL}, s[30:31] sc1")
    if not P["late"]:
        if not wo_in:
            A(f"""
            s_waitcnt vmcnt(2)
            s_barrier
            """)
        stamp("wobar")
        wo_reads()
    C = TT + 8
    A(f"""
    s_mov_b32 s{CNT}, {spin}
    s_waitcnt vmcnt(0)
    L_o_chk:
    v_cmp_ne_u32 vcc, s{OTAG}, v{G+3}
    s_cbranch_vccz L_o_ok
    s_sub_u32 s{CNT}, s{CNT}, 1
    s_cbranch_scc1 L_o_ok
    s_mov_b64 exec, vcc
    """)
    if P["osleep"]: A(f"s_sleep {P['osleep']}")
    A.optional(f"global_load_dwordx4 v[{G}:{G+3}], v{VOGL}, s[30:31] sc1")
    A(f"""
    s_mov_b64 exec, -1
    s_waitcnt vmcnt(0)
    s_branch L_o_chk
    L_og_glob:
    """)
    A.optional(f"global_store_dwordx4 v{VOGS}, v[{TT}:{TT+3}], s[30:31] sc1")
    A(f"""
    s_branch L_og_done
    L_o_ok:
    """)
    stamp("ogot")
    A(f"""
    v_max_f32_dpp v{C}, v{G+2}, v{G+2} row_ror:8 {dpp}
    v_lshlrev_b32 v{C+4}, 16, v{G}
    v_and_b32 v{C+5}, 0xffff0000, v{G}
    v_max_f32_dpp v{C+1}, v{C}, v{C} row_ror:4 {dpp}
    v_lshlrev_b32 v{C+6}, 16, v{G+1}
    v_sub_f32 v{C+1}, v{G+2}, v{C+1}
    v_exp_f32 v{C+1}, v{C+1}
    v_and_b32 v{C+7}, 0xffff0000, v{G+1}
    v_mul_f32 v{C+4}, v{C+4}, v{C+1}
    v_mul_f32 v{C+5}, v{C+5}, v{C+1}
    v_add_f32_dpp v{C}, v{C+1}, v{C+1} row_ror:8 {dpp}
    v_mul_f32 v{C+6}, v{C+6}, v{C+1}
    v_mul_f32 v{C+7}, v{C+7}, v{C+1}
    v_add_f32_dpp v{C+2}, v{C}, v{C} row_ror:4 {dpp}
    v_add_f32_dpp v{C+4}, v{C+4}, v{C+4} row_ror:8 {dpp}
    v_rcp_f32 v{C+2}, v{C+2}
    v_add_f32_dpp v{C+5}, v{C+5}, v{C+5} row_ror:8 {dpp}
    v_add_f32_dpp v{C+6}, v{C+6}, v{C+6} row_ror:8 {dpp}
    v_add_f32_dpp v{C+7}, v{C+7}, v{C+7} row_ror:8 {dpp}
    v_mul_f32 v{C+2}, v{C+2}, v{GV}
    v_add_f32_dpp v{C+4}, v{C+4}, v{C+4} row_ror:4 {dpp}
    v_add_f32_dpp v{C+5}, v{C+5}, v{C+5} row_ror:4 {dpp}
    v_add_f32_dpp v{C+6}, v{C+6}, v{C+6} row_ror:4 {dpp}
    v_add_f32_dpp v{C+7}, v{C+7}, v{C+7} row_ror:4 {dpp}
    v_mul_f32 v{C+4}, v{C+4}, v{C+2}
    v_mul_f32 v{C+5}, v{C+5}, v{C+2}
    v_mul_f32 v{C+6}, v{C+6}, v{C+2}
    v_mul_f32 v{C+7}, v{C+7}, v{C+2}
    v_cvt_pk_bf16_f32 v{C}, v{C+4}, v{C+5}
    v_cvt_pk_bf16_f32 v{C+1}, v{C+6}, v{C+7}
    ds_write_b64 v{VCW}, v[{C}:{C+1}] offset:{L_OC - L_HC}
    s_cmp_gt_u32 s{WV}, 3
    s_waitcnt lgkmcnt(0)
    s_barrier
    """)
    stamp("ocbar")
    if stamps and "ocbar" in stamps: A("s_waitcnt lgkmcnt(0)")
    PP = TT + 16
    if SPL:
        A(f"""
        s_cbranch_scc1 L_poll
        """)
        if P["late"] >= 2:
            ffn2_reads(W2F, W2F + 8)
        A(f"""
        ds_read_b128 v[{R0}:{R0+3}], v{VAF} offset:{L_OC - L_HC}
        ds_read_b128 v[{R0+4}:{R0+7}], v{VAF} offset:{L_OC - L_HC + 64}
        """)
        if P["late"]: wo_reads()
        if P["late"] >= 2:
            A("s_waitcnt lgkmcnt(10)")
            ffn2_mfma(W2F, W2F + 8)
        A(f"""
        s_waitcnt lgkmcnt({4 if P["late"] else 1})
        v_mfma_f32_16x16x32_bf16 v[{D2}:{D2+3}], v[{R0}:{R0+3}], v[{WF}:{WF+3}], v[{D2}:{D2+3}]
        v_mfma_f32_16x16x32_bf16 v[{D2B}:{D2B+3}], v[{R0}:{R0+3}], v[{WF2}:{WF2+3}], v[{D2B}:{D2B+3}]
        s_waitcnt lgkmcnt(0)
        v_mfma_f32_16x16x32_bf16 v[{D2}:{D2+3}], v[{R0+4}:{R0+7}], v[{WF+4}:{WF+7}], v[{D2}:{D2+3}]
        v_mfma_f32_16x16x32_bf16 v[{D2B}:{D2B+3}], v[{R0+4}:{R0+7}], v[{WF2+4}:{WF2+7}], v[{D2B}:{D2B+3}]
        """)
        for r in range(4):
            A(f"v_and_or_b32 v{D2+r}, v{D2+r}, s{SMASK}, v{TB+r}")
        A("s_mov_b32 exec_lo, 0")
        for r in range(4):
            A(f"v_and_or_b32 v{D2+r}, v{D2B+r}, s{SMASK}, v{TB+r}")
        A("s_mov_b32 exec_lo, -1")
        A.optional(f"global_store_dwordx4 v{VPGS}, v[{D2}:{D2+3}], s[30:31] {P['pgst']}")
        k0 = len(stnames)
        stamp("pgpub")
        if stamps and P["allwaves"]:
            A("s_waitcnt vmcnt(0)")
            for nm in ("pgack", "pg1", "pgot"): stamp(nm)
            del stnames[k0:]
            A("s_branch L_pjoin")
        else:
            del stnames[k0:]
            if P["ackbar"]:
                A("s_waitcnt vmcnt(0)")
                A("s_barrier")
            if P["wb"]:
                A(f"""
                s_cmp_lg_u32 s{WV}, 0
                s_cbranch_scc1 L_nowb
                """)
                if "1" in P["wb"]:
                    A(f"""
                    s_cmp_lg_u32 s{RR}, 0
                    s_cbranch_scc1 L_nowb
                    """)
                if "a" in P["wb"]: A("s_waitcnt vmcnt(0)")
                A.raw("  buffer_wbl2 sc1")
                A("L_nowb:")
            A("s_barrier")
            if P["wb2"] >= 0:
                A(f"""
                s_cmp_lg_u32 s{WV}, 0
                s_cbranch_scc1 L_end
                s_and_b32 s3, s{RR}, {P["wb2"]}
                s_cmp_lg_u32 s3, 0
                s_cbranch_scc1 L_end
                """)
                A.raw("  buffer_wbl2 sc1")
            A("s_endpgm")
        A("L_poll:")
        stamp("pgpub")
        if P["ackbar"]: A("s_barrier")
        elif P["psleep0"]: A(f"s_sleep {P['psleep0']}")
        stamp("pgack")
        A.optional(f"global_load_dwordx4 v[{G}:{G+3}], v{VPGL}, s[30:31] sc1")
    else:
        A(f"""
        ds_read_b128 v[{R0}:{R0+3}], v{VAF} offset:{L_OC - L_HC}
        ds_read_b128 v[{R0+4}:{R0+7}], v{VAF} offset:{L_OC - L_HC + 64}
        s_waitcnt lgkmcnt(1)
        v_mfma_f32_16x16x32_bf16 v[{D2}:{D2+3}], v[{R0}:{R0+3}], v[{WF}:{WF+3}], v[{D2}:{D2+3}]
        s_waitcnt lgkmcnt(0)
        v_mfma_f32_16x16x32_bf16 v[{D2}:{D2+3}], v[{R0+4}:{R0+7}], v[{WF+4}:{WF+7}], v[{D2}:{D2+3}]
        s_mov_b32 exec_hi, 0
        """)
        for r in range(4):
            A(f"v_and_or_b32 v{D2+r}, v{D2+r}, s{SMASK}, v{TB+r}")
        A.optional(f"global_store_dwordx4 v{VPGS}, v[{D2}:{D2+3}], s[30:31] {P['pgst']}")
        stamp("pgpub")
        if P["pgdelay"]: A(f"s_sleep {P['pgdelay']}")
        elif P["ackwait"]: A("s_waitcnt vmcnt(0)")
        stamp("pgack")
        A.optional(f"global_load_dwordx4 v[{G}:{G+3}], v{VPGL}, s[30:31] sc1")
    A(f"""
    s_mov_b32 s{CNT}, {P["pspin"] or spin}
    s_waitcnt vmcnt(0)
    """)
    stamp("pg1")
    A(f"""
    L_p_chk:
    v_perm_b32 v{C}, v{G+1}, v{G}, s{SEL1}
    v_perm_b32 v{C+1}, v{G+3}, v{G+2}, s{SEL1}
    v_perm_b32 v{C}, v{C+1}, v{C}, s{SEL2}
    v_cmp_ne_u32 vcc, s{TAG}, v{C}
    s_cbranch_vccz L_p_ok
    s_sub_u32 s{CNT}, s{CNT}, 1
    s_cbranch_scc1 L_p_ok
    s_mov_b64 exec, vcc
    """)
    if sleep: A(f"s_sleep {sleep}")
    A.optional(f"global_load_dwordx4 v[{G}:{G+3}], v{VPGL}, s[30:31] sc1")
    A(f"""
    {"s_mov_b64 exec, -1" if SPL else "s_mov_b32 exec_lo, -1"}
    s_waitcnt vmcnt(0)
    s_branch L_p_chk
    L_p_ok:
    """)
    stamp("pgot")
    for r in range(4):
        A(f"v_and_b32 v{G+r}, s{SMASK}, v{G+r}")
    A(f"""
    ds_write_b128 v{VPFW}, v[{G}:{G+3}]
    s_mov_b64 exec, -1
    L_pjoin:
    s_waitcnt lgkmcnt(0)
    s_barrier
    """)
    if P["allwaves"]:
        stamp("pbar2")
        A("s_waitcnt lgkmcnt(0)")
        n = len(stnames)
        A(f"""
        s_lshl_b32 s3, s2, 3
        s_add_u32 s3, s3, s{WV}
        s_mul_i32 s3, s3, {8*n}
        s_add_u32 s3, s3, {WS_STAMP}
        v_mov_b32 v{C}, s3
        s_mov_b64 exec, 1
        """)
        for k in range(n):
            A(f"v_mov_b32 v{C+2}, s{STREGS[k]}")
            A(f"v_mov_b32 v{C+3}, s{STREGS[k]+1}")
            A.optional(f"global_store_dwordx2 v{C}, v[{C+2}:{C+3}], s[30:31] offset:{8*k}")
            A("s_nop 1")
        A("s_mov_b64 exec, -1")
        stamps = None
    A(f"""
    s_cmp_lg_u32 s{WV}, {4 if SPL else 0}
    s_cbranch_scc1 L_end
    """)
    stamp("pbar")
    for i in range(4):
        A(f"ds_read_b128 v[{PP+4*i}:{PP+4*i+3}], v{VPFR} offset:{i*1024}")
    A("s_waitcnt lgkmcnt(0)")
    for (a, b) in ((0, 1), (2, 3), (0, 2)):
        for r in range(4):
            A(f"v_add_f32 v{PP+4*a+r}, v{PP+4*a+r}, v{PP+4*b+r}")
    A(f"""
    v_permlane32_swap_b32 v{PP}, v{PP+1}
    v_permlane32_swap_b32 v{PP+2}, v{PP+3}
    v_add_f32 v{PP}, v{PP}, v{PP+1}
    v_add_f32 v{PP+2}, v{PP+2}, v{PP+3}
    v_permlane16_swap_b32 v{PP}, v{PP+2}
    v_add_f32 v{PP}, v{PP}, v{PP+2}
    v_add_f32_dpp v{PP}, v{PP}, v{PP} row_ror:8 {dpp}
    v_add_f32_dpp v{PP}, v{PP}, v{PP} row_ror:4 {dpp}
    v_add_f32 v{PP}, v{PP}, v{B2}
    v_cvt_pk_bf16_f32 v{PP}, v{PP}, v{PP}
    s_mov_b32 exec_lo, 0x000f000f
    s_mov_b32 exec_hi, 0x000f000f
    """)
    A.optional(f"global_store_short v{VOUT}, v{PP}, s[26:27]")
    A(f"""
    s_mov_b64 exec, 1
    s_cmp_lg_u32 s2, 0
    s_cbranch_scc1 L_noep
    v_mov_b32 v{C}, 0
    v_mov_b32 v{C+1}, s{TAG}
    """)
    A.optional(f"global_store_dword v{C}, v{C+1}, s[30:31] {P['epst']}")
    A("L_noep:")
    if stamps:
        stamp("outst")
        A("s_waitcnt vmcnt(0)")
        stamp("end")
        n = len(stnames)
        A(f"""
        s_waitcnt lgkmcnt(0)
        s_mul_i32 s3, s2, {8*n}
        s_add_u32 s3, s3, {WS_STAMP}
        v_mov_b32 v{C}, s3
        """)
        for k in range(n):
            A(f"v_mov_b32 v{C+2}, s{STREGS[k]}")
            A(f"v_mov_b32 v{C+3}, s{STREGS[k]+1}")
            A.optional(f"global_store_dwordx2 v{C}, v[{C+2}:{C+3}], s[30:31] offset:{8*k}")
            A("s_nop 1")
        if P["amp"]:
            a_, b_ = P["amp"].split(":")
            ka, kb, ke = stnames.index(a_), stnames.index(b_), stnames.index("end")
            A(f"""
            s_sub_u32 s14, s{STREGS[kb]}, s{STREGS[ka]}
            s_mul_i32 s14, s14, {P['ampm']}
            s_add_u32 s14, s14, s{STREGS[ke]}
            L_probe:
            s_memrealtime s[4:5]
            s_waitcnt lgkmcnt(0)
            s_sub_u32 s3, s4, s14
            s_cmp_lt_i32 s3, 0
            s_cbranch_scc1 L_probe
            """)
        if P["probe"]:
            k = stnames.index(P["probe"])
            A(f"""
            s_add_u32 s14, s{STREGS[k]}, 10000
            L_probe:
            s_sleep 4
            s_memrealtime s[4:5]
            s_waitcnt lgkmcnt(0)
            s_sub_u32 s3, s4, s14
            s_cmp_lt_i32 s3, 0
            s_cbranch_scc1 L_probe
            """)
    A.raw("L_end:")
    A.raw("  s_endpgm")
    A.raw('.section .rodata,"a"')
    A.raw(".p2align 6")
    A.raw(f".amdhsa_kernel {NAME}_kernel")
    A.raw("  .amdhsa_next_free_vgpr 256")
    A.raw("  .amdhsa_next_free_sgpr 102")
    A.raw("  .amdhsa_accum_offset 256")
    A.raw("  .amdhsa_group_segment_fixed_size 0")
    A.raw("  .amdhsa_kernarg_size 112")
    A.raw("  .amdhsa_user_sgpr_count 2")
    A.raw("  .amdhsa_user_sgpr_kernarg_segment_ptr 1")
    A.raw("  .amdhsa_system_sgpr_workgroup_id_x 1")
    A.raw(".end_amdhsa_kernel")
    return A.text(), stnames

if __name__ == "__main__":
    out = f"cdna_kernels/{NAME}.s"
    kw = {}
    for a in sys.argv[1:]:
        k, v = a.split("=", 1)
        if k == "o": out = v
        elif k == "stamps": kw[k] = v.split(",")
        elif isinstance(DEF[k], bool): kw[k] = bool(int(v))
        elif isinstance(DEF[k], int): kw[k] = int(v)
        else: kw[k] = v
    t, n = gen(**kw)
    open(out, "w").write(t)
    print("wrote", out, "stamps", len(n), n)
```

```python
import sys, argparse, struct, math
sys.path.insert(0, "tools")
from asmlib import Asm
NAME = "gated_mix__gqa_block_cached__dense_activation_gelu__decode"
HDR = open("cdna_kernels/%s.s.ref" % NAME).read().split("; Override")[0]

def f2u(x): return struct.unpack("<I", struct.pack("<f", x))[0]
LOG2E = 1.4426950408889634

WS_ID = 0x1000
WS_VT = 0x2000
WS_RC = 0x8000
WS_HG = 0x40000
WS_QG = 0x80000
WS_OG0 = 0x300000
WS_PG = 0x100000
WS_STAMP = 0x8000000
L_WQ = 0
L_W1 = 16384
L_WO = 32768
L_W2 = 49152
OPS = 2048 + 32
CRS = 160
L_OP = 65536
L_X = L_OP + 8 * OPS
L_QC = L_X + 2048
L_HC = L_QC + 1024
L_OC = L_HC + 8 * CRS
L_ML = L_OC + 8 * CRS
L_GT = L_ML + 256
L_LSE = L_GT + 32
L_LF = L_LSE + 32
L_PF = L_LF + 32
L_END = L_PF + 4096

DEF = dict(N=3, N0=1, idpos=9, hpos=4, gpos=14, qpos=19, qdelay=2, vpos=8, stamps=None, kflag="nt", vflag="nt", wflag="nt",
           spin=4000000, sleep=0, dbg=False, probe=None, p0bar=True, pgpad=0, skip="", wopos=32, local=True, ackwait=True, allwaves=False, prio=0, sync="", kburst=4, middelay=3, nring=32, Nend=6, endpos=58, alo=0, adelta=290, at0=30, boost=0, pdelay=0, osleep=0, rot=0, cntst=False, qst="sc1", pgst="sc1", hst="sc1", pspin=0, pgdelay=0, split=True, psleep0=18, kfirst=False, late=1, latepos=31, lw=4, warm="", warmpos=22, pgflip=-1, pad=0x400, pg1="", pg2="", pgw=True, amp="", rank=0, rpos=25, lhalf=0, forcelocal=False, idlate=True, ogl="", qhl="", wb="", alias=True, race=1, racedbg=False, raceinv=False, onew=True, racelate=True, ampm=50, epst="", pt="", ackbar=True, wb2=-1, trot="", w2k=-1, wpre=False, wfirst=1, bal=0, npat="", vx=0, odelay=-1)

def gen(**kw):
    P = dict(DEF); P.update(kw)
    N, N0, hpos, gpos, qpos, qdelay, vpos = (P[k] for k in ("N", "N0", "hpos", "gpos", "qpos", "qdelay", "vpos"))
    stamps, kflag, vflag, wflag, spin, sleep = (P[k] for k in ("stamps", "kflag", "vflag", "wflag", "spin", "sleep"))
    PGS = 16384 + P["pgpad"]
    WS_OG = WS_QG if P["alias"] else WS_OG0
    OTAG = 80
    A = Asm()
    stnames = []
    STREGS = [90, 92, 94, 96, 98, 100, 6, 8, 10, 12, 16, 18]
    def stamp(nm):
        if stamps and nm in stamps:
            r = STREGS[len(stnames)]
            stnames.append(nm)
            A(f"s_memrealtime s[{r}:{r+1}]")
    LANE, VLIN, VKP, MX, MY, VC, VR, VS = 1, 2, 3, 4, 5, 6, 7, 8
    TB = 9; GV = 13; FAC = 14; MREG = 15
    QF = 16
    CM = 20
    YA = 24
    KD = 28
    SP = 36
    OA = 44; D2 = 52; G = 56; XY = 60
    TT = 64
    WF = 96
    WF2 = QF
    D2B = YA
    SPL = P["split"]
    CB = 81
    VQA, VHA, VW2A, VWOA, VW1A, VTRP, VXA, VPERM, VCW, VAF, VTRWO, VTRW2, B2, VQP, VQT = range(104, 119)
    T0 = 119
    B1 = 122
    XG = TT + 16
    VOPW, VOPR, VOGS, VOGL = 124, 125, 126, 127
    VPGS, VPGL, VLSE, VOUT, VPFW, VPFR = VTRP, VXA, VPERM, VQP, VQT, VW1A
    VRK, RK = 0, 121
    VKK, VVV = (FAC, VW2A) if P['bal'] else (VKP, VLIN)
    joff = (lambda j: (j & 1) * 1024 + (j >> 1) * 512) if P['bal'] else (lambda j: j * 1024)
    VX = P['vx']
    RING = 128
    NR = P["nring"]
    def ring(i): return RING + (i % NR) * 4
    WV, XI, RR, BB, SS, TAG, KG, FG, FP, HTAG, SMASK, ST = 32, 33, 34, 35, 36, 37, 38, 39, 40, 41, 42, 43
    SK, SV, SWQ, SW1, SWO, SW2, SHS, SHL, SB1 = 44, 48, 52, 56, 60, 64, 68, 72, 76
    SOFF, SC = 88, 89
    XCC2, LOCAL = 83, 82
    SEL1, SEL2 = 14, 15
    CNT = 3
    dpp = "row_mask:0xf bank_mask:0xf"

    A.raw(HDR.rstrip("\n"))
    A.raw(f"; @launch grid=(256,1,1) block=(512,1,1) lds={L_END}")
    A.raw('.amdgcn_target "amdgcn-amd-amdhsa--gfx950"')
    A.raw("""; ---------------------------------------------------------------------------------------------------------
; One persistent launch, 256 workgroups (one per CU) x 8 waves.  Workgroup w: xi = w&7 (kv head / hand-off
; group), r = w>>3 = (batch b, key quarter s).  Every wave streams 128 K rows then 128 V rows straight into a
;   q      : wg (xi,r) computes x @ wq for 64 columns x 128 k-rows, hands fp32 partials to its group
;   out    : 64 partials per output gathered across groups, + (1-g)*b2, bf16 store
; the end).  Loads of handed-off data are sc1.  Stores are write-through (sc1) unless this workgroup has seen,
; in this launch, that all 32 members of its group report its own XCC id; then they stay in the shared L2.
; race two scalar loads to learn which half of the page is near and publish the bit; it only moves addresses.
; ---------------------------------------------------------------------------------------------------------""")
    A.raw(".text")
    if P["pg1"]:
        A.raw(".p2align 12")
    elif P["pad"]:
        A.raw("; keep 4 KiB code-page crossings out of the prologue and of the tail")
        A.raw(".p2align 12")
        A.raw(f".fill {P['pad'] // 4}, 4, 0xbf810000")
    A.raw(f".globl {NAME}_kernel")
    A.raw(".p2align 8")
    A.raw(f".type {NAME}_kernel,@function")
    A.raw(f"{NAME}_kernel:")
    stamp("entry")
    trot = {"": "", "x": f"s_lshl_b32 s3, s{XI}, 15\ns_xor_b32 s{SOFF}, s{SOFF}, s3",
            "b": f"s_lshl_b32 s3, s{BB}, 15\ns_xor_b32 s{SOFF}, s{SOFF}, s3",
            "s": f"s_lshl_b32 s3, s{SS}, 16\ns_xor_b32 s{SOFF}, s{SOFF}, s3",
            "xb": f"s_xor_b32 s3, s{XI}, s{BB}\ns_lshl_b32 s3, s3, 15\ns_xor_b32 s{SOFF}, s{SOFF}, s3",
            "xbs": f"s_lshl1_add_u32 s3, s{SS}, s{XI}\ns_add_u32 s3, s3, s{BB}\ns_and_b32 s3, s3, 7\ns_lshl_b32 s3, s3, 15\ns_xor_b32 s{SOFF}, s{SOFF}, s3",
            }[P["trot"]]
    KBAL = f"""
    ; a load covers rows {{0,1,8,9}} (+2,+4,+6): address bits 8 and 11 pick memory channels, keep them balanced
    v_bfe_u32 v{T0}, v0, 3, 1
    v_mul_u32_u24 v{T0}, {2048 - 512}, v{T0}
    v_add_u32 v{VKK}, v{T0}, v{VKP}
    """ if P["bal"] else ""
    assert not P["bal"] or (P["wfirst"] and P["late"] < 2 and not P["kfirst"])
    PRO1 = f"""
    s_load_dwordx16 s[4:19], s[0:1], 0
    s_cmp_ge_u32 s2, 256
    s_cbranch_scc1 L_end
    s_load_dwordx8 s[20:27], s[0:1], 64
    s_load_dwordx4 s[28:31], s[0:1], 96
    v_lshrrev_b32 v{T0}, 6, v0
    v_and_b32 v{VC}, 3, v0
    v_readfirstlane_b32 s{WV}, v{T0}
    v_bfe_u32 v{VR}, v0, 2, 2
    v_bfe_u32 v{VS}, v0, 4, 2
    s_and_b32 s{XI}, s2, 7
    s_lshr_b32 s{BB}, s2, 5
    s_bfe_u32 s{SS}, s2, 0x20003
    v_lshlrev_b32 v{VKP}, 4, v{VC}
    v_lshl_add_u32 v{VKP}, v{VR}, 8, v{VKP}
    v_lshl_add_u32 v{VKP}, v{VS}, 6, v{VKP}
    s_lshl3_add_u32 s{ST}, s{BB}, s{XI}
    s_lshl2_add_u32 s{ST}, s{ST}, s{SS}
    s_lshl_b32 s{ST}, s{ST}, 18
    s_lshl_b32 s{SOFF}, s{WV}, 12
    {trot}
    s_mov_b32 s{SK+3}, 0x20000
    s_mov_b32 s{SK+2}, 0x40000
    """
    PRO2 = f"""
    s_lshr_b32 s{RR}, s2, 3
    v_and_b32 v{LANE}, 63, v0
    v_lshlrev_b32 v{VLIN}, 4, v{LANE}
    {KBAL}
    s_lshl_b32 s3, s{WV}, 4
    v_lshrrev_b32 v{T0}, 3, v{LANE}
    v_add_u32 v{T0}, s3, v{T0}
    v_and_b32 v{T0+1}, 1, v{VS}
    v_lshlrev_b32 v{T0+1}, 1, v{T0+1}
    v_and_b32 v{T0+2}, 7, v{LANE}
    v_xor_b32 v{T0+1}, v{T0+1}, v{T0+2}
    v_lshlrev_b32 v{T0+1}, 4, v{T0+1}
    v_mul_u32_u24 v{VW1A}, 3584, v{T0}
    v_add_u32 v{VW1A}, v{VW1A}, v{T0+1}
    v_lshl_add_u32 v{G}, v{T0}, 13, v{T0+1}
    v_xor_b32 v{G+1}, 64, v{G}
    s_lshl_b32 s3, s{WV}, 12
    s_lshl_b32 s{SMASK}, s{SS}, 8
    s_add_u32 s3, s3, s{SMASK}
    v_and_b32 v{T0}, 15, v{LANE}
    v_lshl_add_u32 v{G+2}, v{T0}, 4, s3
    v_lshl_add_u32 v{G+2}, v{VS}, 10, v{G+2}
    s_lshl_b32 s{KG}, s{SS}, 20
    s_lshl_b32 s3, s{XI}, 10
    s_add_u32 s{KG}, s{KG}, s3
    s_lshl_b32 s3, s{BB}, 7
    s_add_u32 s{KG}, s{KG}, s3
    s_mov_b32 s{SWQ+3}, 0x20000
    s_sub_u32 s{SWQ+2}, 0x400000, s{KG}
    s_lshl_b32 s3, s{WV}, 10
    s_add_u32 m0, s3, {L_X}
    s_mov_b32 s{FG}, 0x10000
    """
    WROLE = f"""
    s_mov_b32 s{SW1+3}, 0x20000
    s_mov_b32 s{SWO+3}, 0x20000
    s_mov_b32 s{SW2+3}, 0x20000
    s_mov_b32 s{SHS+3}, 0x20000
    s_mov_b32 s{SHL+3}, 0x20000
    s_mov_b32 s{SB1+3}, 0x20000
    s_lshl_b32 s{FG}, s{BB}, 3
    s_add_u32 s{FG}, s{FG}, s{XI}
    s_lshl_b32 s{KG}, s{XI}, 3
    s_add_u32 s{KG}, s{KG}, s{BB}
    s_sub_u32 s{FP}, s{FG}, 32
    s_cmp_lt_u32 s{FP}, 28
    s_cselect_b32 s{FP}, s{FP}, 0
    s_cselect_b32 s{SW1+2}, {128*3584}, 0
    s_cselect_b32 s{SHS+2}, 8192, 0
    s_mul_i32 s3, s{SS}, {128*3584}
    s_lshl_b32 s28, s{FP}, 7
    s_add_u32 s3, s3, s28
    s_add_u32 s{SW1}, s16, s3
    s_addc_u32 s{SW1+1}, s17, 0
    s_lshl_b32 s3, s{FP}, 13
    s_add_u32 s3, s3, {WS_HG}
    s_add_u32 s{SHS}, s30, s3
    s_addc_u32 s{SHS+1}, s31, 0
    s_lshl_b32 s3, s{KG}, 16
    s_lshl_b32 s28, s{SS}, 8
    s_add_u32 s3, s3, s28
    s_add_u32 s{SWO}, s12, s3
    s_addc_u32 s{SWO+1}, s13, 0
    s_sub_u32 s{SWO+2}, 0x400000, s3
    s_cmp_lt_u32 s{FG}, 28
    s_cselect_b32 s{FG}, s{FG}, 0
    s_cselect_b32 s{SW2+2}, {63*1024+256}, 0
    s_cselect_b32 s{SHL+2}, 8192, 0
    s_cselect_b32 s{SB1+2}, 128, 0
    {'' if P['wfirst'] else f's_cselect_b32 s{HTAG}, s{TAG}, 0'}
    s_lshl_b32 s3, s{FG}, 16
    s_add_u32 s3, s3, s28
    s_add_u32 s{SW2}, s20, s3
    s_addc_u32 s{SW2+1}, s21, 0
    s_lshl_b32 s3, s{FG}, 13
    s_add_u32 s3, s3, {WS_HG}
    s_add_u32 s{SHL}, s30, s3
    s_addc_u32 s{SHL+1}, s31, 0
    s_lshl_b32 s3, s{FG}, 7
    s_add_u32 s{SB1}, s18, s3
    s_addc_u32 s{SB1+1}, s19, 0
    """
    WADDR = f"""
    s_and_b32 s3, s{WV}, 3
    s_lshl_b32 s3, s3, 2
    v_lshrrev_b32 v{T0}, 5, v{LANE}
    v_lshl_or_b32 v{T0}, v{T0}, 1, s3
    v_and_b32 v{T0+1}, 15, v{LANE}
    v_xor_b32 v{T0}, v{T0}, v{T0+1}
    s_lshl_b32 s3, s{WV}, 13
    v_lshl_add_u32 v{VW2A}, v{VS}, 10, s3
    v_lshl_add_u32 v{VWOA}, v{T0}, 4, v{VW2A}
    s_and_b32 s3, s{WV}, 1
    s_lshl_b32 s3, s3, 3
    v_lshl_or_b32 v{T0}, v{VS}, 1, s3
    v_xor_b32 v{T0}, v{T0}, v{T0+1}
    v_lshl_add_u32 v{VW2A}, v{T0}, 4, v{VW2A}
    """
    HSEL = f"""
    s_cmp_lg_u32 s{SHL+2}, 0
    s_cselect_b32 s{HTAG}, s{TAG}, 0
    """
    def wq_issue():
        A(f"""
        s_cmp_gt_u32 s{WV}, 1
        s_cbranch_scc1 L_nox
        """)
        A.optional(f"global_load_lds_dwordx4 v{G+2}, s[4:5]")
        A(f"""
        L_nox:
        s_lshl_b32 m0, s{WV}, 11
        s_add_u32 s{SWQ}, s10, s{KG}
        s_addc_u32 s{SWQ+1}, s11, 0
        """)
        A(f"buffer_load_dwordx4 v{G}, s[{SWQ}:{SWQ+3}], 0 offen {wflag} lds", "wq0")
        A(f"s_add_u32 m0, m0, 1024")
        A(f"buffer_load_dwordx4 v{G+1}, s[{SWQ}:{SWQ+3}], s{FG} offen {wflag} lds", "wq1")
        issued.extend(["wq0", "wq1"])
    A(PRO1)
    if not P["kfirst"]: A(PRO2)
    A(f"""
    s_waitcnt lgkmcnt(0)
    s_add_u32 s{SK}, s6, s{ST}
    s_addc_u32 s{SK+1}, s7, 0
    """)
    stamp("karg")

    stream = []
    for i in range(32):
        if i == P["idpos"]: stream += ["ID"]
        if i == hpos and not (P["wpre"] or P["wfirst"]): stream += ["W10", "W11"]
        if i == P["w2k"] and not P["wpre"]: stream += ["W2a", "W2b"]
        if i == gpos: stream += ["XG", "GW", "B1", "B2"]
        if i == qpos: stream += ["I2", "Q"]
        stream.append(f"K{i}")
    for j in range(32):
        if j == vpos: stream += (["H"] if (P["late"] >= 2 or P["w2k"] >= 0 or P["wpre"] or P["wfirst"]) else ["W2a", "W2b", "H"])
        if j == vpos and P["alias"]: stream.insert(len(stream) - 1, "rl")
        if j == vpos and P["race"]: stream.insert(len(stream) - 1, "vl")
        if j == P["rpos"] and P["rank"]: stream += ["rl", "rs"]
        if j == P["warmpos"]: stream += ["t" + c for c in P["warm"]]
        if j == P["wopos"] and not P["late"]: stream += ["WOa", "WOb"]
        stream.append(f"V{j}")
    if P["wopos"] >= 32 and not P["late"] and P["wfirst"] < 2: stream += ["WOa", "WOb"]
    done = set(); arrived = set(); issued = []
    isbig = lambda n: n[0] in "KV" or n[:2] == "WO"

    def tcode(t):
        m = {0: 0, 1: ((t & 1) << 1) | ((t >> 1) & 1) | (t & 4), 2: (t & 1) << 1, 3: t}[P["rot"]]
        if P["bal"] == 2: t = (t & 4) | ((t & 1) << 1) | ((t >> 1) & 1)
        return (t << 15) | (m << 12)
    def slot_free(i):
        return (f"KL{i}" if i < 32 else f"VL{i-32}") in done
    def issue(nm):
        if "L" + nm[:2] in P["skip"].split(","):
            arrived.add(nm)
        elif nm[0] == "K":
            i = int(nm[1:]); r = ring(i)
            A(f"buffer_load_dwordx4 v[{r}:{r+3}], v{VKK}, s[{SK}:{SK+3}], s{SOFF} offen offset:{joff(i%4)} {kflag}", nm)
            if i % 4 == 3:
                nx = tcode(i//4) ^ (tcode(i//4+1) if i < 31 else tcode(VX))
                if nx: A(f"s_xor_b32 s{SOFF}, s{SOFF}, {nx}")
        elif nm[0] == "V":
            j = int(nm[1:]); r = ring(32 + j)
            assert 32 + j - NR < 0 or slot_free(32 + j - NR), nm
            A(f"buffer_load_dwordx4 v[{r}:{r+3}], v{VVV}, s[{SV}:{SV+3}], s{SOFF} offen offset:{joff(j%4)} {vflag}", nm)
            if j % 4 == 3 and j != 31: A(f"s_xor_b32 s{SOFF}, s{SOFF}, {tcode((j//4) ^ VX) ^ tcode((j//4+1) ^ VX)}")
        elif nm == "W10":
            A(f"s_lshl_b32 s3, s{WV}, 11")
            A(f"s_add_u32 m0, s3, {L_W1}")
            A(f"buffer_load_dwordx4 v{VW1A}, s[{SW1}:{SW1+3}], 0 offen {wflag} lds", nm)
        elif nm == "W11":
            A(f"s_add_u32 m0, m0, 1024")
            A(f"v_xor_b32 v{VW1A}, 64, v{VW1A}")
            A(f"s_movk_i32 s3, {8*3584}")
            A(f"buffer_load_dwordx4 v{VW1A}, s[{SW1}:{SW1+3}], s3 offen {wflag} lds", nm)
        elif nm == "XG":
            A(f"s_lshl_b32 s3, s{WV}, 10")
            A(f"v_add_u32 v{T0}, s3, v{VLIN}")
            A(f"global_load_dwordx4 v[{XG}:{XG+3}], v{T0}, s[4:5]", nm)
        elif nm == "GW":
            A(f"global_load_dwordx4 v[{XG+4}:{XG+7}], v{VLIN}, s[24:25]", nm)
        elif nm == "B1":
            A(f"v_lshlrev_b32 v{T0}, 3, v{VC}")
            A(f"v_lshl_add_u32 v{T0}, v{VS}, 5, v{T0}")
            A(f"buffer_load_dwordx2 v[{B1}:{B1+1}], v{T0}, s[{SB1}:{SB1+3}], 0 offen", nm)
        elif nm == "B2":
            A(f"""
            s_and_b32 s3, s{RR}, 15
            s_lshl_b32 s28, s{XI}, 4
            s_add_u32 s3, s3, s28
            s_lshl_b32 s3, s3, 3
            v_lshl_add_u32 v{T0}, v{VC}, 1, s3
            """)
            A(f"global_load_ushort v{B2}, v{T0}, s[22:23]", nm)
        elif nm[0] == "t":
            assert "TA" in done and "MD" in done
            d = T0 + 2
            if nm == "tw":
                A("s_mov_b64 exec, 1")
                A(f"buffer_load_dword v{d}, v{VWOA}, s[{SWO}:{SWO+3}], 0 offen {wflag}", nm)
                A("s_mov_b64 exec, -1")
            elif nm == "to":
                A("s_mov_b64 exec, 1")
                A(f"global_load_ushort v{d}, v{VOUT}, s[26:27]", nm)
                A("s_mov_b64 exec, -1")
            elif nm == "tp":
                A(f"v_mul_u32_u24 v{T0}, {PGS}, v{LANE}")
                A(f"v_add_u32 v{T0}, {WS_PG + 16384}, v{T0}")
                A(f"s_lshl_b64 exec, 0x0101, s{WV}")
                A(f"s_lshl_b32 exec_hi, exec_lo, 16")
                A(f"s_or_b32 exec_lo, exec_lo, exec_hi")
                A(f"s_mov_b32 exec_hi, exec_lo")
                A(f"global_load_dword v{d}, v{T0}, s[30:31]", nm)
                A("s_mov_b64 exec, -1")
            elif nm == "tg":
                A(f"global_load_dword v{d}, v{VOGL}, s[30:31] sc1", nm)
            elif nm == "ts":
                A(f"global_load_dword v{d}, v{VOGS}, s[30:31] sc1", nm)
        elif nm == "rl":
            assert "TA" in done
            if P["onew"]:
                A(f"s_cmp_lg_u32 s{WV}, 2\ns_cbranch_scc1 L_norl")
                A.optional(f"global_load_dword v{RK}, v{VRK}, s[30:31] offset:128 sc1")
                A("L_norl:")
            else:
                A(f"global_load_dword v{RK}, v{VRK}, s[30:31] offset:128 sc1", nm)
        elif nm == "vl":
            assert "SM" in done and "MD" not in done
            A(f"s_cmp_lg_u32 s{WV}, 1\ns_cbranch_scc1 L_novl")
            A(f"v_lshlrev_b32 v{QF+2}, 3, v{VC}")
            A(f"v_add_u32 v{QF+2}, {WS_VT}, v{QF+2}")
            A.optional(f"global_load_dwordx2 v[{QF}:{QF+1}], v{QF+2}, s[30:31] sc1")
            A("L_novl:")
        elif nm == "rs":
            A(f"s_add_u32 s84, s84, 128")
            A(f"s_addc_u32 s85, s85, 0")
            A(f"v_mov_b32 v{T0}, s{TAG}")
            A(f"buffer_store_dword v{T0}, v{VLIN}, s[84:87], 0 offen", nm)
        elif nm == "ID":
            A(f"global_load_dword v{YA}, v{VQT}, s[30:31] sc1", nm)
        elif nm == "I2":
            assert "PS" in done
            A(f"global_load_dword v{YA}, v{VQT}, s[30:31] sc1", nm)
        elif nm == "Q":
            A(f"global_load_dwordx4 v[{G}:{G+3}], v{VQA}, s[30:31] sc1", nm)
        elif nm == "W2a":
            A(f"s_lshl_b32 s3, s{WV}, 11")
            A(f"s_add_u32 m0, s3, {L_W2}")
            A(f"buffer_load_dwordx4 v{VW2A}, s[{SW2}:{SW2+3}], 0 offen {wflag} lds", nm)
        elif nm == "W2b":
            A(f"s_add_u32 m0, m0, 1024")
            A(f"s_movk_i32 s3, 4096")
            A(f"buffer_load_dwordx4 v{VW2A}, s[{SW2}:{SW2+3}], s3 offen {wflag} lds", nm)
        elif nm == "H":
            assert "QC" in done
            A(f"buffer_load_dwordx4 v[{G}:{G+3}], v{VHA}, s[{SHL}:{SHL+3}], 0 offen sc1", nm)
        elif nm == "WOa":
            A(f"s_lshl_b32 s3, s{WV}, 11")
            A(f"s_add_u32 m0, s3, {L_WO}")
            A(f"buffer_load_dwordx4 v{VWOA}, s[{SWO}:{SWO+3}], 0 offen {wflag} lds", nm)
        elif nm == "WOb":
            A(f"s_add_u32 m0, m0, 1024")
            A(f"s_movk_i32 s3, 4096")
            A(f"buffer_load_dwordx4 v{VWOA}, s[{SWO}:{SWO+3}], s3 offen {wflag} lds", nm)
        issued.append(nm)

    def wait(nm):
        if nm in arrived or nm not in A.vm: return
        A.wait_vm(nm)
        for x in issued[:issued.index(nm) + 1]: arrived.add(x)

    if not P["kfirst"]:
        A(f"s_load_dword s{TAG}, s[30:31], 0")
        wq_issue()
        if P["wfirst"]:
            A(WROLE); A(WADDR)
            for nm in ("W10", "W11", "W2a", "W2b") + (("WOa", "WOb") if P["wfirst"] >= 2 else ()): issue(nm)
        if P["p0bar"]: A("s_barrier")
    pos = 0
    while pos < N0:
        assert isbig(stream[pos])
        issue(stream[pos]); pos += 1
    stamp("kiss")
    if P["kfirst"]:
        A(f"s_load_dword s{TAG}, s[30:31], 0")
        A(PRO2)
        wq_issue()
    if P["pg1"]:
        if P["pgw"]:
            A(f"""
            ; touch the later code pages once while the first loads are in flight
            s_cmp_eq_u32 s{WV}, 6
            s_cbranch_scc1 L_pg1_stub
            s_cmp_eq_u32 s{WV}, 7
            s_cbranch_scc1 L_pg2_stub
            """)
        A("L_pg_ret:")
    if P["bal"]:
        A(f"""
        v_bfe_u32 v{T0}, v0, 5, 1
        v_mul_u32_u24 v{T0}, {2048 - 512}, v{T0}
        v_add_u32 v{VVV}, v{T0}, v{VLIN}
        """)
    A(f"""
    v_and_b32 v{T0}, 1, v{VS}
    v_lshrrev_b32 v{T0+1}, 1, v{VR}
    v_lshl_or_b32 v{T0+1}, v{T0}, 1, v{T0+1}
    s_and_b32 s{FP}, s{WV}, 3
    v_xor_b32 v{T0+1}, s{FP}, v{T0+1}
    v_lshlrev_b32 v{VTRP}, 3, v{VC}
    v_lshl_add_u32 v{VTRP}, v{T0+1}, 5, v{VTRP}
    v_lshl_add_u32 v{VTRP}, v{VR}, 7, v{VTRP}
    v_lshl_add_u32 v{VTRP}, v{VS}, 10, v{VTRP}
    v_and_b32 v{T0+2}, 7, v{LANE}
    v_lshlrev_b32 v{VXA}, 8, v{T0+2}
    v_lshl_add_u32 v{VXA}, v{VS}, 4, v{VXA}
    v_add_u32 v{VXA}, {L_X}, v{VXA}
    v_bfe_u32 v{TT}, v{LANE}, 2, 3
    v_lshl_add_u32 v{VPERM}, v{VC}, 4, v{TT}
    v_lshlrev_b32 v{VPERM}, 2, v{VPERM}
    s_lshl_b32 s3, s{XI}, 16
    s_lshl_b32 s{SMASK}, s{RR}, 8
    s_add_u32 s3, s3, s{SMASK}
    s_lshl_b32 s{SMASK}, s{FP}, 6
    s_add_u32 s3, s3, s{SMASK}
    s_add_u32 s3, s3, {WS_QG}
    v_lshl_add_u32 v{VQP}, v{VC}, 4, s3
    v_lshl_add_u32 v{VQP}, v{TT}, 13, v{VQP}
    s_mov_b32 s{SMASK}, 0xffffff00
    s_mov_b32 s{SEL1}, 0x0c0c0400
    s_mov_b32 s{SEL2}, 0x05040100
    s_waitcnt lgkmcnt(0)
    s_add_u32 s{TAG}, s{TAG}, 0x9e3779b9
    v_mov_b32 v{TB+3}, s{TAG}
    v_bfe_u32 v{TB}, v{TB+3}, 0, 8
    v_bfe_u32 v{TB+1}, v{TB+3}, 8, 8
    v_bfe_u32 v{TB+2}, v{TB+3}, 16, 8
    v_lshrrev_b32 v{TB+3}, 24, v{TB+3}
    """)
    SETUP2 = f"""
    ; A frag address: L_HC + (l&7)*CRS + slab*16
    v_and_b32 v{T0+2}, 7, v{LANE}
    v_mul_u32_u24 v{VAF}, {CRS}, v{T0+2}
    v_lshl_add_u32 v{VAF}, v{VS}, 4, v{VAF}
    v_add_u32 v{VAF}, {L_HC}, v{VAF}
    ; compact write address: L_QC + wv*128 + slab*32 + c*8
    s_lshl_b32 s3, s{WV}, 7
    s_add_u32 s3, s3, {L_QC}
    v_lshl_add_u32 v{VCW}, v{VC}, 3, s3
    v_lshl_add_u32 v{VCW}, v{VS}, 5, v{VCW}
    s_add_u32 s{SV}, s8, s{ST}
    s_addc_u32 s{SV+1}, s9, 0
    s_mov_b32 s{SV+2}, 0x40000
    s_mov_b32 s{SV+3}, 0x20000
    {HSEL if P['wfirst'] else WROLE}
    s_mov_b32 s{SC}, {hex(f2u(LOG2E * 128 ** -0.5))}
    v_and_b32 v{T0}, 1, v{LANE}
    v_lshlrev_b32 v{T0}, 4, v{T0}
    v_mov_b32 v{T0+1}, 0xffff
    v_lshlrev_b32 v{T0}, v{T0}, v{T0+1}
    v_bfe_i32 v{T0+1}, v{LANE}, 1, 1
    v_and_b32 v{MY}, v{T0}, v{T0+1}
    v_xor_b32 v{MX}, v{T0}, v{MY}
    v_mov_b32 v{T0}, s{SC}
    v_cmp_eq_u32 vcc, 0, v{VC}
    v_cndmask_b32 v{CM}, 0, v{T0}, vcc
    v_cmp_eq_u32 vcc, 1, v{VC}
    v_cndmask_b32 v{CM+1}, 0, v{T0}, vcc
    v_cmp_eq_u32 vcc, 2, v{VC}
    v_cndmask_b32 v{CM+2}, 0, v{T0}, vcc
    v_cmp_eq_u32 vcc, 3, v{VC}
    v_cndmask_b32 v{CM+3}, 0, v{T0}, vcc
    s_and_b32 s{CB}, s{WV}, {3 if SPL else 7}
    s_lshl_b32 s{CB}, s{CB}, {1 if SPL else 0}
    v_and_b32 v{T0}, 1, v{VS}
    v_lshl_or_b32 v{T0+1}, v{VR}, 1, v{T0}
    v_xor_b32 v{T0+1}, s{CB}, v{T0+1}
    v_lshlrev_b32 v{VTRWO}, 3, v{VC}
    v_lshl_add_u32 v{VTRWO}, v{T0+1}, 5, v{VTRWO}
    v_lshl_add_u32 v{VTRWO}, v{VR}, 11, v{VTRWO}
    v_lshl_add_u32 v{VTRWO}, v{VS}, 9, v{VTRWO}
    v_lshl_or_b32 v{T0+1}, v{T0}, 2, v{VR}
    v_xor_b32 v{T0+1}, s{CB}, v{T0+1}
    v_lshlrev_b32 v{VTRW2}, 3, v{VC}
    v_lshl_add_u32 v{VTRW2}, v{T0+1}, 5, v{VTRW2}
    v_lshl_add_u32 v{VTRW2}, v{VR}, 8, v{VTRW2}
    v_lshl_add_u32 v{VTRW2}, v{VS}, 11, v{VTRW2}
    ; gather offsets: h: wv*1024 + VKP ; q: QG + (hkv*8+b)*8192 + wv*1024 + VKP
    s_lshl_b32 s3, s{WV}, 10
    v_add_u32 v{VHA}, s3, v{VKP}
    s_lshl_b32 s3, s{XI}, 3
    s_add_u32 s3, s3, s{BB}
    s_lshl_b32 s3, s3, 13
    s_add_u32 s3, s3, {WS_QG}
    v_add_u32 v{VQA}, s3, v{VHA}
    {'' if P['wfirst'] else WADDR}
    """
    IDPUB = f"""
    s_lshr_b32 s3, s{TAG}, 24
    s_add_u32 s3, s3, 0x40
    s_and_b32 s3, s3, 0xff
    s_and_b32 s{OTAG}, s{TAG}, s{SMASK}
    s_or_b32 s{OTAG}, s{OTAG}, s3
    s_getreg_b32 s{XCC2}, hwreg(HW_REG_XCC_ID, 0, 4)
    s_lshl_b32 s3, s{XI}, 8
    s_add_u32 s3, s3, {WS_ID}
    v_and_b32 v{T0}, 31, v{LANE}
    v_lshl_add_u32 v{VQT}, v{T0}, 2, s3
    s_xor_b32 s{XCC2}, s{XCC2}, s{TAG}
    s_lshl_b32 s28, s{RR}, 2
    s_add_u32 s3, s3, s28
    s_add_u32 s84, s30, s3
    s_addc_u32 s85, s31, 0
    s_mov_b32 s86, 4
    s_mov_b32 s87, 0x20000
    v_mov_b32 v{T0+1}, s{XCC2}
    """
    A(IDPUB)
    VOTE = 43
    DEC = 89
    def racepre():
        assert P["race"] == 1
        A(f"""
        s_sub_u32 s{DEC}, s2, {28*8+4}
        s_lshr_b32 s3, s{DEC}, 3
        s_and_b32 s{DEC}, s{DEC}, 7
        s_cmp_eq_u32 s{DEC}, 0
        s_cselect_b32 s{DEC}, s3, 99
        s_cmp_gt_u32 s{DEC}, 3
        s_cbranch_scc1 L_nopre
        s_lshl3_add_u32 s{VOTE}, s{DEC}, s{WV}
        s_lshl_b32 s{VOTE}, s{VOTE}, 7
        s_add_u32 s{VOTE}, s{VOTE}, {WS_RC}
        v_lshl_add_u32 v{T0}, v{LANE}, 13, s{VOTE}
        v_mov_b32 v{T0+1}, s{TAG}
        s_mov_b64 exec, 3
        """)
        A.optional(f"global_store_dword v{T0}, v{T0+1}, s[30:31] sc1")
        A(f"""
        s_mov_b64 exec, -1
        L_nopre:
        """)
    def race():
        A(f"""
        s_cmp_gt_u32 s{DEC}, 3
        s_cbranch_scc1 L_norace
        s_and_b32 s28, s{WV}, 1
        s_lshl_b32 s28, s28, 13
        s_add_u32 s28, s28, s{VOTE}
        s_xor_b32 s29, s28, 0x2000
        s_not_b32 s17, s{TAG}
        s_load_dword s16, s[30:31], s28
        s_load_dword s17, s[30:31], s29
        s_waitcnt lgkmcnt(1)
        s_cmp_lg_u32 s17, s{TAG}
        s_cselect_b32 s{VOTE}, 1, 0
        s_waitcnt lgkmcnt(0)
        """)
        A(f"""
        s_sub_u32 s3, 0, s{VOTE}
        s_bitcmp1_b32 s{WV}, 0
        s_cselect_b32 s{VOTE}, s3, s{VOTE}
        s_lshl_b32 s3, s{WV}, 2
        s_add_u32 s3, s3, {L_LF}
        v_mov_b32 v{T0}, s3
        v_mov_b32 v{T0+1}, s{VOTE}
        ds_write_b32 v{T0}, v{T0+1}
        s_waitcnt lgkmcnt(0)
        L_norace:
        """)
    def votepub():
        A(f"""
        s_cmp_lg_u32 s{WV}, 5
        s_cbranch_scc1 L_novote
        s_cmp_gt_u32 s{DEC}, 3
        s_cbranch_scc1 L_novote
        v_mov_b32 v{T0}, {L_LF}
        ds_read_b128 v[{TT}:{TT+3}], v{T0}
        ds_read_b128 v[{TT+4}:{TT+7}], v{T0} offset:16
        s_lshl_b32 s3, s{DEC}, 3
        s_add_u32 s3, s3, {WS_VT}
        v_mov_b32 v{T0}, s3
        s_waitcnt lgkmcnt(0)
        v_add3_u32 v{TT+1}, v{TT}, v{TT+1}, v{TT+2}
        v_add3_u32 v{TT+3}, v{TT+3}, v{TT+4}, v{TT+5}
        v_add3_u32 v{TT+1}, v{TT+1}, v{TT+6}, v{TT+7}
        v_add_u32 v{TT+1}, v{TT+1}, v{TT+3}
        v_mov_b32 v{TT}, s{TAG}
        s_mov_b64 exec, 1
        """)
        A.optional(f"global_store_dwordx2 v{T0}, v[{TT}:{TT+1}], s[30:31] sc1")
        A("""
        s_mov_b64 exec, -1
        L_novote:
        """)
    if not P["idlate"]:
        A(f"buffer_store_dword v{T0+1}, v{VLIN}, s[84:87], 0 offen", "idst")
        issued.append("idst")
    A(SETUP2)
    if P["prio"]:
        A(f"""
        s_cmp_lt_u32 s{WV}, 4
        s_cbranch_scc1 L_prio
        s_setprio {P["prio"]}
        L_prio:
        """)
    if P["wpre"]:
        for nm in ("W10", "W11", "W2a", "W2b"): issue(nm)
    stamp("setup")

    def p0tile(lw):
        W = TT; XR = TT + 16; D = KD
        for u in range(4):
            A(f"ds_read_b128 v[{XR+4*u}:{XR+4*u+3}], v{VXA} offset:{u*64}")
            for hf in range(2):
                A(f"ds_read_b64_tr_b16 v[{W+4*u+hf*2}:{W+4*u+hf*2+1}], v{VTRP} offset:{lw + u*4096 + hf*512}")
        for u in range(4):
            A(f"s_waitcnt lgkmcnt({9-3*u})")
            c = "0" if u == 0 else f"v[{D}:{D+3}]"
            A(f"v_mfma_f32_16x16x32_bf16 v[{D}:{D+3}], v[{W+4*u}:{W+4*u+3}], v[{XR+4*u}:{XR+4*u+3}], {c}")
        for r in range(4):
            A(f"v_and_or_b32 v{D+r}, v{D+r}, s{SMASK}, v{TB+r}")
        for r in range(4):
            A(f"ds_bpermute_b32 v{D+4+r}, v{VPERM}, v{D+r}")
        A("s_waitcnt lgkmcnt(0)")

    def pubstore(lbl, ins):
        A(f"""
        s_mov_b32 exec_hi, 0
        s_cmp_eq_u32 s{LOCAL}, 0
        s_cbranch_scc1 L_{lbl}_loc
        """)
        A.optional(ins + " sc1")
        A(f"""
        s_branch L_{lbl}_st
        L_{lbl}_loc:
        """)
        A.optional(ins + " " + P["qhl"])
        A(f"""
        L_{lbl}_st:
        s_mov_b32 exec_hi, -1
        s_nop 1
        """)

    def pbar():
        wait("wq1")
        stamp("x1")
        if P["idlate"]:
            A(f"""
            s_cmp_lg_u32 s{WV}, 4
            s_cbranch_scc1 L_noid
            v_mov_b32 v{T0+1}, s{XCC2}
            """)
            A.optional(f"buffer_store_dword v{T0+1}, v{VLIN}, s[84:87], 0 offen")
            A("L_noid:")
        A("s_barrier")
        stamp("bar1")
        if stamps: A("s_waitcnt lgkmcnt(0)")
        A(f"""
        s_cmp_gt_u32 s{WV}, 3
        s_cbranch_scc1 L_p0_done
        """)
        p0tile(L_WQ)
        A("L_p0_done:")
        if P["race"]: racepre()
        if P["pt"]:
            A(f"""
            s_cmp_lg_u32 s{WV}, 7
            s_cbranch_scc1 L_nopt
            s_mov_b64 exec, 1
            """)
            for c in P["pt"]:
                srd = dict(v=SV, o=SWO, w=SW2, u=SW1, b=SB1).get(c)
                if srd: A.optional(f"buffer_load_dword v{T0+2}, v{VLIN}, s[{srd}:{srd+3}], 0 offen nt")
                else:
                    p = dict(g=24, c=22, d=26)[c]
                    A.optional(f"global_load_dword v{T0+2}, v{VLIN}, s[{p}:{p+1}]")
            A(f"""
            s_mov_b64 exec, -1
            L_nopt:
            """)
        stamp("p0done")

    def qpub():
        A(f"""
        v_cmp_ne_u32 vcc, s{XCC2}, v{YA}
        {"s_and_b32" if P["forcelocal"] else "s_or_b32"} s{LOCAL}, vcc_lo, {0 if P["local"] else 1}
        s_cmp_gt_u32 s{WV}, 3
        s_cbranch_scc1 L_qp_done
        """)
        pubstore("qp", f"global_store_dwordx4 v{VQP}, v[{KD+4}:{KD+7}], s[30:31]")
        A("L_qp_done:")
        if P["race"] and P["racelate"]:
            A("s_waitcnt lgkmcnt(0)")
            race()
        stamp("qpub")

    def tagcheck(lbl, tagreg, reload):
        C = TT
        A(f"""
        s_mov_b32 s{CNT}, {spin}
        L_{lbl}_chk:
        v_perm_b32 v{C}, v{G+1}, v{G}, s{SEL1}
        v_perm_b32 v{C+1}, v{G+3}, v{G+2}, s{SEL1}
        v_perm_b32 v{C}, v{C+1}, v{C}, s{SEL2}
        v_cmp_ne_u32 vcc, s{tagreg}, v{C}
        s_cbranch_vccz L_{lbl}_ok
        s_sub_u32 s{CNT}, s{CNT}, 1
        s_cbranch_scc1 L_{lbl}_ok
        """)
        A.optional(reload)
        A(f"""
        s_waitcnt vmcnt(0)
        s_branch L_{lbl}_chk
        L_{lbl}_ok:
        """)
        for r in range(4):
            A(f"v_and_b32 v{G+r}, s{SMASK}, v{G+r}")
        for ror in (8, 4):
            for r in range(4):
                A(f"v_add_f32_dpp v{G+r}, v{G+r}, v{G+r} row_ror:{ror} {dpp}")

    def qcomb():
        stamp("qarr")
        tagcheck("q", TAG, f"global_load_dwordx4 v[{G}:{G+3}], v{VQA}, s[30:31] sc1")
        A(f"""
        v_cvt_pk_bf16_f32 v{G}, v{G}, v{G+1}
        v_cvt_pk_bf16_f32 v{G+1}, v{G+2}, v{G+3}
        v_cmp_ne_u32 vcc, s{XCC2}, v{YA}
        ds_write_b64 v{VCW}, v[{G}:{G+1}]
        {"s_and_b32" if P["forcelocal"] else "s_or_b32"} s{LOCAL}, vcc_lo, {0 if P["local"] else 1}
        s_mul_i32 s3, s{WV}, {CRS - 128}
        s_add_u32 s3, s3, {L_HC - L_QC}
        v_add_u32 v{VCW}, s3, v{VCW}
        """)
        stamp("qgot")

    def qbar():
        assert "W11" in arrived
        A(f"""
        s_waitcnt lgkmcnt(0)
        s_barrier
        v_add_u32 v{T0}, {L_QC}, v{VKP}
        ds_read_b128 v[{QF}:{QF+3}], v{T0}
        """)
        if P["alias"]:
            A(f"""
            ; this workgroup has read its q granules: their slots may now be reused
            s_cmp_lg_u32 s{WV}, 3
            s_cbranch_scc1 L_ct_done
            s_add_u32 s84, s84, 128
            s_addc_u32 s85, s85, 0
            v_mov_b32 v{T0+1}, s{TAG}
            """)
            pubstore("ct", f"buffer_store_dword v{T0+1}, v{VLIN}, s[84:87], 0 offen")
            A("L_ct_done:")
        A(f"""
        s_cmp_lt_u32 s{WV}, 4
        s_cselect_b32 s3, 0, s{SHS+2}
        s_waitcnt lgkmcnt(0)
        s_cmp_eq_u32 s3, 0
        s_cbranch_scc1 L_h_done
        s_lshl_b32 s3, s{SS}, 8
        s_and_b32 s28, s{WV}, 3
        s_lshl_b32 s28, s28, 6
        s_add_u32 s3, s3, s28
        v_bfe_u32 v{T0+1}, v{LANE}, 2, 3
        v_lshl_add_u32 v{T0}, v{VC}, 4, s3
        v_lshl_add_u32 v{T0}, v{T0+1}, 10, v{T0}
        """)
        p0tile(L_W1)
        pubstore("hp", f"buffer_store_dwordx4 v[{KD+4}:{KD+7}], v{T0}, s[{SHS}:{SHS+3}], 0 offen")
        A("L_h_done:")
        if P["race"] and P["racelate"]: votepub()
        stamp("qready")

    def xreduce(reg, tmp, op):
        A(f"""
        v_mov_b32 v{tmp}, v{reg}
        v_permlane32_swap_b32 v{reg}, v{tmp}
        {op} v{reg}, v{reg}, v{tmp}
        v_mov_b32 v{tmp}, v{reg}
        v_permlane16_swap_b32 v{reg}, v{tmp}
        {op} v{reg}, v{reg}, v{tmp}
        """)

    def gate():
        A(f"v_dot2_f32_bf16 v{GV}, v{XG}, v{XG+4}, 0")
        for i in range(1, 4):
            A(f"v_dot2_f32_bf16 v{GV}, v{XG+i}, v{XG+4+i}, v{GV}")
        A(f"""
        v_add_f32_dpp v{GV}, v{GV}, v{GV} quad_perm:[1,0,3,2] {dpp}
        v_add_f32_dpp v{GV}, v{GV}, v{GV} quad_perm:[2,3,0,1] {dpp}
        v_add_f32_dpp v{GV}, v{GV}, v{GV} row_ror:8 {dpp}
        v_add_f32_dpp v{GV}, v{GV}, v{GV} row_ror:4 {dpp}
        """)
        xreduce(GV, T0, "v_add_f32")
        A(f"""
        v_mul_f32 v{GV}, {hex(f2u(-LOG2E))}, v{GV}
        v_exp_f32 v{GV}, v{GV}
        s_lshl_b32 s3, s{WV}, 2
        s_add_u32 s3, s3, {L_GT}
        v_add_f32 v{GV}, 1.0, v{GV}
        v_mov_b32 v{T0}, s3
        v_rcp_f32 v{GV}, v{GV}
        s_nop 0
        ds_write_b32 v{T0}, v{GV}
        """)

    def hcomb():
        if P["alias"]:
            A(f"""
            {f"s_cmp_lg_u32 s{WV}, 2" if P["onew"] else "s_cmp_lg_u32 s2, s2"}
            s_cbranch_scc1 L_c_ok
            s_mov_b32 s{CNT}, {spin}
            L_c_chk:
            v_cmp_ne_u32 vcc, s{TAG}, v{RK}
            s_cbranch_vccz L_c_ok
            s_sub_u32 s{CNT}, s{CNT}, 1
            s_cbranch_scc1 L_c_ok
            """)
            A.optional(f"global_load_dword v{RK}, v{VRK}, s[30:31] offset:128 sc1")
            A(f"""
            s_waitcnt vmcnt(0)
            s_branch L_c_chk
            L_c_ok:
            """)
        if P["race"]:
            A(f"""
            s_cmp_lg_u32 s{WV}, 1
            s_cbranch_scc1 L_v_done
            s_mov_b32 s{CNT}, {spin}
            L_v_chk:
            v_cmp_ne_u32 vcc, s{TAG}, v{QF}
            s_cbranch_vccz L_v_ok
            s_sub_u32 s{CNT}, s{CNT}, 1
            s_cbranch_scc1 L_v_ok
            """)
            A.optional(f"global_load_dwordx2 v[{QF}:{QF+1}], v{QF+2}, s[30:31] sc1")
            A(f"""
            s_waitcnt vmcnt(0)
            s_branch L_v_chk
            L_v_ok:
            v_add_u32_dpp v{QF+1}, v{QF+1}, v{QF+1} quad_perm:[1,0,3,2] {dpp}
            v_add_u32_dpp v{QF+1}, v{QF+1}, v{QF+1} quad_perm:[2,3,0,1] {dpp}
            ; deciders sit in groups 4..7, whose lines have bit13 = 1: flip when that side looked far
            v_sub_u32 v{QF+1}, {1 if P["raceinv"] else 0}, v{QF+1}
            v_lshrrev_b32 v{QF+1}, 31, v{QF+1}
            v_lshlrev_b32 v{QF+1}, 13, v{QF+1}
            """)
            if P["raceinv"]: A(f"v_xor_b32 v{QF+1}, 0x2000, v{QF+1}")
            A(f"""
            v_mov_b32 v{QF}, {L_LF}
            ds_write_b32 v{QF}, v{QF+1}
            L_v_done:
            """)
        tagcheck("h", HTAG, f"buffer_load_dwordx4 v[{G}:{G+3}], v{VHA}, s[{SHL}:{SHL+3}], 0 offen sc1")
        c1 = math.sqrt(2 / math.pi)
        k1 = -2 * c1 * LOG2E; k3 = k1 * 0.044715
        U = TT + 8
        A(f"""
        v_lshlrev_b32 v{TT}, 16, v{B1}
        v_and_b32 v{TT+1}, 0xffff0000, v{B1}
        v_lshlrev_b32 v{TT+2}, 16, v{B1+1}
        v_and_b32 v{TT+3}, 0xffff0000, v{B1+1}
        v_mov_b32 v{TT+4}, {hex(f2u(k1))}
        v_sub_f32 v{TT+5}, 1.0, v{GV}
        """)
        for r in range(4): A(f"v_add_f32 v{G+r}, v{G+r}, v{TT+r}")
        for r in range(4): A(f"v_mul_f32 v{U+r}, v{G+r}, v{G+r}")
        for r in range(4): A(f"v_fmamk_f32 v{U+r}, v{U+r}, {hex(f2u(k3))}, v{TT+4}")
        for r in range(4): A(f"v_mul_f32 v{U+r}, v{U+r}, v{G+r}")
        for r in range(4): A(f"v_exp_f32 v{U+r}, v{U+r}")
        for r in range(4): A(f"v_add_f32 v{U+r}, 1.0, v{U+r}")
        for r in range(4): A(f"v_rcp_f32 v{U+r}, v{U+r}")
        for r in range(4): A(f"v_mul_f32 v{G+r}, v{G+r}, v{TT+5}")
        for r in range(4): A(f"v_mul_f32 v{G+r}, v{G+r}, v{U+r}")
        A(f"""
        v_cvt_pk_bf16_f32 v{G}, v{G}, v{G+1}
        v_cvt_pk_bf16_f32 v{G+1}, v{G+2}, v{G+3}
        ds_write_b64 v{VCW}, v[{G}:{G+1}]
        """)

    pend = []
    def kextract():
        i = pend.pop(0); t = i % 4; d = KD + 4 * (i % 2)
        for c in range(4):
            op = "v_mul_f32_dpp" if t == 0 else "v_fmac_f32_dpp"
            A(f"{op} v{YA+c}, v{d+c}, v{CM+t} quad_perm:[{c},{c},{c},{c}] {dpp}")
        if t == 3:
            A(f"v_add_f32 v{T0}, v{YA}, v{YA+1}")
            A(f"v_add_f32 v{T0+1}, v{YA+2}, v{YA+3}")
            A(f"v_add_f32 v{SP + i//4}, v{T0}, v{T0+1}")
    def kload(i):
        r = ring(i); d = KD + 4 * (i % 2)
        A(f"v_mfma_f32_16x16x32_bf16 v[{d}:{d+3}], v[{r}:{r+3}], v[{QF}:{QF+3}], 0")
        if pend: kextract()
        pend.append(i)

    def qreduce(reg, op):
        A(f"{op}_dpp v{reg}, v{reg}, v{reg} quad_perm:[1,0,3,2] {dpp}")
        A(f"{op}_dpp v{reg}, v{reg}, v{reg} quad_perm:[2,3,0,1] {dpp}")

    def softmax():
        while pend: kextract()
        m = TT
        A(f"""
        v_max3_f32 v{m}, v{SP}, v{SP+1}, v{SP+2}
        v_max3_f32 v{m+1}, v{SP+3}, v{SP+4}, v{SP+5}
        v_max3_f32 v{m}, v{m}, v{SP+6}, v{SP+7}
        v_max_f32 v{MREG}, v{m}, v{m+1}
        """)
        qreduce(MREG, "v_max_f32")
        xreduce(MREG, m, "v_max_f32")
        for i in range(8): A(f"v_sub_f32 v{SP+i}, v{SP+i}, v{MREG}")
        for i in range(8): A(f"v_exp_f32 v{SP+i}, v{SP+i}")
        for i in range(4): A(f"v_add_f32 v{m+i}, v{SP+2*i}, v{SP+2*i+1}")
        A(f"v_add_f32 v{m}, v{m}, v{m+1}")
        A(f"v_add_f32 v{m+2}, v{m+2}, v{m+3}")
        for i in range(4): A(f"v_cvt_pk_bf16_f32 v{SP+i}, v{SP+i}, v{SP+i}")
        A(f"v_add_f32 v{m}, v{m}, v{m+2}")
        for i in range(4, 8): A(f"v_cvt_pk_bf16_f32 v{SP+i}, v{SP+i}, v{SP+i}")
        qreduce(m, "v_add_f32")
        xreduce(m, m + 1, "v_add_f32")
        A(f"""
        s_lshl_b32 s3, s{WV}, 2
        s_add_u32 s3, s3, {L_ML}
        v_lshl_add_u32 v{m+2}, v{VR}, 5, s3
        ds_write_b32 v{m+2}, v{MREG}
        ds_write_b32 v{m+2}, v{m} offset:128
        """)

    def vprep(j):
        x = XY + 2 * (j % 2); t = j % 4
        A(f"v_and_b32_dpp v{x}, v{SP + ((j//4) ^ VX)}, v{MX} quad_perm:[{t},{t},{t},{t}] {dpp}")
        A(f"v_and_b32_dpp v{x+1}, v{SP + ((j//4) ^ VX)}, v{MY} quad_perm:[{t},{t},{t},{t}] {dpp}")
    def vload(j):
        x = XY + 2 * (j % 2); r = ring(32 + j)
        for eh in range(2):
            o = OA + 4 * eh
            c = "0" if j == 0 else f"v[{o}:{o+3}]"
            A(f"v_mfma_f32_16x16x16_bf16 v[{o}:{o+3}], v[{r+2*eh}:{r+2*eh+1}], v[{x}:{x+1}], {c}")

    HF = KD
    W2F = 128
    def ffn2_reads(wa, wb):
        for u in range(2):
            for hf in range(2):
                A(f"ds_read_b64_tr_b16 v[{wa+4*u+2*hf}:{wa+4*u+2*hf+1}], v{VTRW2} offset:{L_W2 + u*8192 + hf*1024}")
        if SPL:
            for u in range(2):
                for hf in range(2):
                    A(f"ds_read_b64_tr_b16 v[{wb+4*u+2*hf}:{wb+4*u+2*hf+1}], v{VTRW2B} offset:{L_W2 + u*8192 + hf*1024}")
    def ffn2_mfma(wa, wb):
        A(f"""
        v_mfma_f32_16x16x32_bf16 v[{D2}:{D2+3}], v[{HF}:{HF+3}], v[{wa}:{wa+3}], 0
        v_mfma_f32_16x16x32_bf16 v[{D2}:{D2+3}], v[{HF+4}:{HF+7}], v[{wa+4}:{wa+7}], v[{D2}:{D2+3}]
        """)
        if SPL:
            A(f"""
            v_mfma_f32_16x16x32_bf16 v[{D2B}:{D2B+3}], v[{HF}:{HF+3}], v[{wb}:{wb+3}], 0
            v_mfma_f32_16x16x32_bf16 v[{D2B}:{D2B+3}], v[{HF+4}:{HF+7}], v[{wb+4}:{wb+7}], v[{D2B}:{D2B+3}]
            """)
    def wo_reads():
        for u in range(2):
            for hf in range(2):
                A(f"ds_read_b64_tr_b16 v[{WF+4*u+2*hf}:{WF+4*u+2*hf+1}], v{VTRWO} offset:{L_WO + u*8192 + hf*256}")
            if SPL:
                for hf in range(2):
                    A(f"ds_read_b64_tr_b16 v[{WF2+4*u+2*hf}:{WF2+4*u+2*hf+1}], v{VTRWOB} offset:{L_WO + u*8192 + hf*256}")
    VTRW2B, VTRWOB = B1, B1 + 1
    def mid():
        assert P["late"] >= 2 or "W2b" in arrived
        m = TT
        GF = TT + 24
        A(f"""
        v_xor_b32 v{VTRW2B}, 32, v{VTRW2}
        v_xor_b32 v{VTRWOB}, 32, v{VTRWO}
        s_waitcnt lgkmcnt(0)
        s_barrier
        v_lshlrev_b32 v{T0}, 5, v{VR}
        v_add_u32 v{T0}, {L_ML}, v{T0}
        ds_read_b128 v[{m}:{m+3}], v{T0}
        ds_read_b128 v[{m+4}:{m+7}], v{T0} offset:16
        ds_read_b128 v[{m+8}:{m+11}], v{T0} offset:128
        ds_read_b128 v[{m+12}:{m+15}], v{T0} offset:144
        ds_read_b128 v[{HF}:{HF+3}], v{VAF}
        ds_read_b128 v[{HF+4}:{HF+7}], v{VAF} offset:64
        ds_read_b32 v{GF}, v{VQA}
        """)
        if P["race"]:
            A(f"v_mov_b32 v{GF+1}, {L_LF}")
            A(f"ds_read_b32 v{GF+1}, v{GF+1}")
        A("s_waitcnt lgkmcnt(4)")
        if P["late"] < 2: ffn2_reads(WF, WF2)
        M = T0 + 1
        A("s_waitcnt lgkmcnt(0)")
        if P["late"] < 2: ffn2_mfma(WF, WF2)
        if P["race"]:
            A(f"v_xor_b32 v{VPGS}, v{GF+1}, v{VPGS}")
            A(f"v_xor_b32 v{VPGL}, v{GF+1}, v{VPGL}")
        A(f"""
        v_max3_f32 v{M}, v{m}, v{m+1}, v{m+2}
        v_max3_f32 v{M}, v{M}, v{m+3}, v{m+4}
        v_max3_f32 v{M}, v{M}, v{m+5}, v{m+6}
        v_max_f32 v{M}, v{M}, v{m+7}
        """)
        for w in range(8):
            A(f"v_sub_f32 v{m+w}, v{m+w}, v{M}")
        A(f"v_sub_f32 v{FAC}, v{MREG}, v{M}")
        for w in range(8):
            A(f"v_exp_f32 v{m+w}, v{m+w}")
        A(f"v_exp_f32 v{FAC}, v{FAC}")
        A(f"v_mul_f32 v{m}, v{m}, v{m+8}")
        for w in range(1, 8):
            A(f"v_fmac_f32 v{m}, v{m+w}, v{m+8+w}")
        A(f"""
        v_rcp_f32 v{m+1}, v{m}
        v_log_f32 v{m+2}, v{m}
        v_mul_f32 v{FAC}, v{FAC}, v{m+1}
        v_add_f32 v{m+2}, v{m+2}, v{M}
        v_lshlrev_b32 v{m+3}, 2, v{VR}
        v_add_u32 v{m+3}, {L_LSE}, v{m+3}
        ds_write_b32 v{m+3}, v{m+2}
        v_sub_f32 v{GF}, 1.0, v{GF}
        v_lshlrev_b32 v{B2}, 16, v{B2}
        v_mul_f32 v{B2}, v{B2}, v{GF}
        """)

    def tailaddr():
        m = TT; BI = TT + 8
        A(f"""
        v_and_b32 v{T0}, 1, v{VS}
        v_lshlrev_b32 v{T0}, 1, v{T0}
        v_lshrrev_b32 v{BI}, 1, v{VS}
        v_or_b32 v{BI}, v{BI}, v{T0}
        s_lshr_b32 s3, s{RR}, 4
        s_lshl_b32 s3, s3, 2
        v_add_u32 v{BI}, s3, v{BI}
        v_lshlrev_b32 v{T0}, 2, v{BI}
        v_add_u32 v{VQA}, {L_GT}, v{T0}
        v_mov_b32 v{VRK}, v{VQT}
        """)
        if P["late"] and P["lw"] == 4:
            A(f"v_and_b32 v{VWOA}, 0x7fff, v{VWOA}")
            if P["late"] >= 2: A(f"v_and_b32 v{VW2A}, 0x7fff, v{VW2A}")
        A(f"""
        s_mul_i32 s3, s{WV}, {OPS}
        s_add_u32 s3, s3, {L_OP}
        v_add_u32 v{VOPW}, s3, v{VLIN}
        s_lshr_b32 s3, s{WV}, 1
        s_lshl_b32 s28, s3, 6
        s_lshl_b32 s3, s3, 2
        s_add_u32 s3, s3, {L_LSE}
        v_mov_b32 v{VLSE}, s3
        s_and_b32 s3, s{WV}, 1
        s_lshl_b32 s3, s3, 9
        s_add_u32 s3, s3, s28
        s_add_u32 s3, s3, {L_OP}
        v_lshl_add_u32 v{VOPR}, v{VC}, 4, s3
        v_mul_u32_u24 v{m}, {2 * OPS}, v{VR}
        v_add_u32 v{VOPR}, v{m}, v{VOPR}
        v_lshrrev_b32 v{m}, 1, v{VS}
        v_lshl_add_u32 v{VOPR}, v{m}, 8, v{VOPR}
        v_and_b32 v{m}, 1, v{VS}
        v_lshl_add_u32 v{VOPR}, v{m}, 10, v{VOPR}
        s_lshl_b32 s3, s{KG}, 13
        s_add_u32 s3, s3, {WS_OG}
        v_add_u32 v{VOGL}, s3, v{VHA}
        ; og store: OG + (hkv*8+wv)*8192 + r*256 + (slab*4+c)*16
        s_lshl_b32 s3, s{XI}, 3
        s_add_u32 s3, s3, s{WV}
        s_lshl_b32 s3, s3, 13
        s_lshl_b32 s28, s{RR}, 8
        s_add_u32 s3, s3, s28
        s_add_u32 s3, s3, {WS_OG}
        v_lshl_add_u32 v{VOGS}, v{VC}, 4, s3
        v_lshl_add_u32 v{VOGS}, v{VS}, 6, v{VOGS}
        ; pg store: PG + kg*PGS + (ng*8+wv)*512 + l*16 (lanes<32)
        s_lshl_b32 s3, s{SS}, 3
        s_add_u32 s3, s3, s{CB}
        s_lshl_b32 s3, s3, 9
        s_mul_i32 s28, s{KG}, {PGS}
        s_add_u32 s3, s3, s28
        s_add_u32 s3, s3, {WS_PG}
        v_add_u32 v{VPGS}, s3, v{VLIN}
        ; pg load (lanes<32): PG + (((l>>2)&7)*8 + wv)*PGS + (cq>>2)*512 + bh*256 + (cq&3)*64 + c*16
        s_lshl_b32 s3, s{XI}, 2
        s_bfe_u32 s28, s{RR}, 0x20002
        s_add_u32 s3, s3, s28
        s_lshl_b32 s3, s3, 9
        s_lshr_b32 s28, s{RR}, 4
        s_lshl_b32 s28, s28, 8
        s_add_u32 s3, s3, s28
        s_lshl_b32 s28, s{SS}, 6
        s_add_u32 s3, s3, s28
        s_mul_i32 s28, s{CB}, {PGS}
        s_add_u32 s3, s3, s28
        s_add_u32 s3, s3, {WS_PG}
        v_bfe_u32 v{m+1}, v{LANE}, 2, 3
        v_mul_u32_u24 v{m+1}, {8*PGS}, v{m+1}
        v_lshl_add_u32 v{VPGL}, v{VC}, 4, s3
        v_add_u32 v{VPGL}, v{VPGL}, v{m+1}
        v_lshrrev_b32 v{m+1}, 5, v{LANE}
        v_mul_u32_u24 v{m+1}, {PGS if SPL else 0}, v{m+1}
        v_add_u32 v{VPGL}, v{VPGL}, v{m+1}
        """)
        if P["pgflip"] >= 0:
            A(f"""
            s_add_u32 s3, s30, {WS_PG}
            s_lshr_b32 s3, s3, 8
            s_xor_b32 s3, s3, {P["pgflip"] << 13}
            s_and_b32 s3, s3, 0x2000
            v_xor_b32 v{VPGS}, s3, v{VPGS}
            v_xor_b32 v{VPGL}, s3, v{VPGL}
            """)
        A(f"""
        s_lshl_b32 s3, s{CB}, 9
        s_add_u32 s3, s3, {L_PF}
        v_add_u32 v{VPFW}, s3, v{VLIN}
        v_add_u32 v{VPFR}, {L_PF}, v{VLIN}
        s_and_b32 s3, s{RR}, 15
        s_lshl_b32 s28, s{XI}, 4
        s_add_u32 s3, s3, s28
        s_lshl_b32 s3, s3, 3
        v_lshl_add_u32 v{VOUT}, v{VC}, 1, s3
        v_lshl_add_u32 v{VOUT}, v{BI}, 10, v{VOUT}
        """)

    qstep = [0]; mstep = [0]
    def nbig(): return sum(1 for n in issued if isbig(n))
    def next_work(force=False):
        if "PB" not in done:
            return "PB" if nbig() >= N0 + P["pdelay"] else None
        if "PS" not in done and "ID" in arrived: return "PS"
        if "GT" not in done and "B2" in arrived: return "GT"
        if "PS" not in done: return None
        if "QC" not in done:
            return "QC" if "Q" in arrived else None
        if "QB" not in done:
            return "QB" if (force or nbig() >= qstep[0] + qdelay) else None
        for i in range(32):
            if f"KL{i}" not in done:
                if f"K{i}" in arrived: return f"KL{i}"
                return "TA" if "TA" not in done else None
        if "SM" not in done: return "SM"
        if "TA" not in done: return "TA"
        if "HC" not in done and "H" in arrived: return "HC"
        if "HC" in done and "MD" not in done and (force or nbig() >= mstep[0] + P["middelay"]): return "MD"
        for j in range(32):
            if f"VL{j}" not in done:
                return f"VL{j}" if f"V{j}" in arrived else None
        return None
    def run(w):
        if w[:2] in P["skip"].split(","):
            if w == "QC": qstep[0] = nbig()
        elif w == "PB": pbar()
        elif w == "PS": qpub()
        elif w == "GT": gate()
        elif w == "QC": qcomb(); qstep[0] = nbig()
        elif w == "QB": qbar()
        elif w == "HC": hcomb(); mstep[0] = nbig()
        elif w == "MD": mid()
        elif w == "TA": tailaddr()
        elif w[:2] == "KL": kload(int(w[2:]))
        elif w == "SM": softmax()
        elif w[:2] == "VL":
            j = int(w[2:]); vprep(j); vload(j)
        done.add(w)

    def can_issue(nm):
        if nm[0] == "V": return 32 + int(nm[1:]) - NR < 0 or slot_free(32 + int(nm[1:]) - NR)
        if nm == "H": return "QC" in done
        if nm in ("XG", "GW"): return "PB" in done
        return True
    if P["pdelay"] == 0: run("PB")
    while pos < len(stream):
        nm = stream[pos]
        assert nm not in ("XG", "GW") or "PB" in done
        if isbig(nm):
            prev = [n for n in stream[:pos] if isbig(n)]
            Nc = P["Nend"] if len(prev) >= P["endpos"] else (int(P["npat"][len(prev) % len(P["npat"])]) if P["npat"] else N)
            if len(prev) >= Nc: wait(prev[-Nc])
        if nm[0] == "V" and 32 + int(nm[1:]) - NR >= 0:
            while not slot_free(32 + int(nm[1:]) - NR):
                w = next_work(force=True)
                assert w is not None, "stream stalls on processing"
                run(w)
        issue(nm); pos += 1
        stamp("i" + nm)
        for k in (1, 2):
            if nm == P[f"pg{k}"]:
                A(f"s_branch L_pg{k}_cont")
                A.raw(".p2align 12")
                A(f"""
                L_pg{k}_stub:
                s_branch L_pg_ret
                L_pg{k}_cont:
                """)
        if nm in P["sync"].split(","): A("s_barrier")
        if pos < len(stream) and not isbig(stream[pos]): continue
        w = next_work()
        if w in ("PB", "QB", "MD", "SM", "HC", "TA"):
            nb = 0
            while nb < P["boost"] and pos < len(stream) and can_issue(stream[pos]):
                nb += isbig(stream[pos])
                issue(stream[pos]); stamp("i" + stream[pos]); pos += 1
        if w:
            run(w)
            k = 1
            while w and w[:2] in ("VL", "KL") and k < P["kburst"]:
                w = next_work()
                if w and w[:2] in ("VL", "KL"): run(w); k += 1
    while True:
        w = next_work(force=True)
        if not w: break
        run(w)
    assert {"SM", "HC", "GT", "MD", "TA"} <= done
    stamp("allissued")
    A(f"v_mov_b32 v{TT+3}, s{OTAG}")
    def late_loads(cnt):
        A(f"s_lshl_b32 s28, s{CB}, 10")
        assert SPL
        for (va, srd, lb) in ([(VWOA, SWO, L_WO)] + ([(VW2A, SW2, L_W2)] if P["late"] >= 2 else [])):
            for k in range(4):
                A(f"s_add_u32 m0, s28, {lb + (k >> 1) * 8192 + (k & 1) * 1024}")
                A(f"s_mov_b32 s3, {(k >> 1) * 32768 + (k & 1) * 4096}")
                A(f"buffer_load_dwordx4 v{va}, s[{srd}:{srd+3}], s3 offen {wflag} lds", "wl" if cnt else False)
    rest = [j for j in range(32) if f"VL{j}" not in done]
    def drain():
        for j in rest:
            vprep(j); A.wait_vm(f"V{j}"); vload(j)
    if P["rank"]:
        assert "rl" in arrived and P["late"] and P["lw"] == 4
        A(f"""
        v_cmp_eq_u32 vcc, s{TAG}, v{RK}
        s_bcnt1_i32_b32 s3, vcc_lo
        {"s_cmp_lt_u32" if P["lhalf"] else "s_cmp_gt_u32"} s{WV}, {4 if P["lhalf"] else 3}
        s_cselect_b32 s3, 0, s3
        s_cmp_ge_u32 s3, {P["rank"]}
        s_cbranch_scc0 L_drain_a
        """)
        save = list(A.vm)
        late_loads(True)
        drain()
        A("s_branch L_nolate")
        A.vm = save
        A("L_drain_a:")
    drain()
    if P["late"]:
        if P["lw"] == 8:
            for nm in (["WOa", "WOb"] + (["W2a", "W2b"] if P["late"] >= 2 else [])): issue(nm)
        else:
            A(f"""
            {"s_cmp_lt_u32" if P["lhalf"] else "s_cmp_gt_u32"} s{WV}, {4 if P["lhalf"] else 3}
            s_cbranch_scc1 L_nolate
            """)
            late_loads(False)
            A("L_nolate:")
            A("s_nop 5")
    for j in rest: done.add(f"VL{j}"); arrived.add(f"V{j}")
    if not P["late"] and P["wopos"] < 32: arrived.add("WOb")
    stamp("vdone")
    for i in range(8):
        A(f"v_mul_f32 v{OA+i}, v{OA+i}, v{FAC}")
    R0 = TT + 16
    wo_in = "WOb" in arrived
    A(f"""
    ds_write_b128 v{VOPW}, v[{OA}:{OA+3}]
    ds_write_b128 v{VOPW}, v[{OA+4}:{OA+7}] offset:1024
    s_waitcnt lgkmcnt(0)
    s_barrier
    """)
    stamp("obar")
    if stamps and "obar" in stamps: A("s_waitcnt lgkmcnt(0)")
    A(f"""
    ds_read_b128 v[{R0}:{R0+3}], v{VOPR}
    ds_read_b128 v[{R0+4}:{R0+7}], v{VOPR} offset:{OPS}
    ds_read_b32 v{TT+2}, v{VLSE}
    s_cmp_eq_u32 s{LOCAL}, 0
    s_waitcnt lgkmcnt(1)
    """)
    for r in range(4):
        A(f"v_add_f32 v{R0+r}, v{R0+r}, v{R0+4+r}")
    for ror in (8, 4):
        for r in range(4):
            A(f"v_add_f32_dpp v{R0+r}, v{R0+r}, v{R0+r} row_ror:{ror} {dpp}")
    A(f"""
    v_cvt_pk_bf16_f32 v{TT}, v{R0}, v{R0+1}
    v_cvt_pk_bf16_f32 v{TT+1}, v{R0+2}, v{R0+3}
    s_mov_b32 exec_lo, 0x000f000f
    s_mov_b32 exec_hi, 0x000f000f
    s_waitcnt lgkmcnt(0)
    s_cbranch_scc0 L_og_glob
    """)
    A.optional(f"global_store_dwordx4 v{VOGS}, v[{TT}:{TT+3}], s[30:31] {P['ogl']}")
    A("L_og_done:")
    A("s_mov_b64 exec, -1")
    stamp("ogpub")
    if P["odelay"] >= 0:
        A(f"""
        s_cmp_gt_u32 s{WV}, 3
        s_waitcnt vmcnt({P["odelay"]})
        s_cbranch_scc0 L_od
        s_waitcnt vmcnt(0)
        L_od:
        """)
    A.optional(f"global_load_dwordx4 v[{G}:{G+3}], v{VOGL}, s[30:31] sc1")
    if not P["late"]:
        if not wo_in:
            A(f"""
            s_waitcnt vmcnt(2)
            s_barrier
            """)
        stamp("wobar")
        wo_reads()
    C = TT + 8
    A(f"""
    s_mov_b32 s{CNT}, {spin}
    s_waitcnt vmcnt(0)
    L_o_chk:
    v_cmp_ne_u32 vcc, s{OTAG}, v{G+3}
    s_cbranch_vccz L_o_ok
    s_sub_u32 s{CNT}, s{CNT}, 1
    s_cbranch_scc1 L_o_ok
    s_mov_b64 exec, vcc
    """)
    if P["osleep"]: A(f"s_sleep {P['osleep']}")
    A.optional(f"global_load_dwordx4 v[{G}:{G+3}], v{VOGL}, s[30:31] sc1")
    A(f"""
    s_mov_b64 exec, -1
    s_waitcnt vmcnt(0)
    s_branch L_o_chk
    L_og_glob:
    """)
    A.optional(f"global_store_dwordx4 v{VOGS}, v[{TT}:{TT+3}], s[30:31] sc1")
    A(f"""
    s_branch L_og_done
    L_o_ok:
    """)
    stamp("ogot")
    A(f"""
    v_max_f32_dpp v{C}, v{G+2}, v{G+2} row_ror:8 {dpp}
    v_lshlrev_b32 v{C+4}, 16, v{G}
    v_and_b32 v{C+5}, 0xffff0000, v{G}
    v_max_f32_dpp v{C+1}, v{C}, v{C} row_ror:4 {dpp}
    v_lshlrev_b32 v{C+6}, 16, v{G+1}
    v_sub_f32 v{C+1}, v{G+2}, v{C+1}
    v_exp_f32 v{C+1}, v{C+1}
    v_and_b32 v{C+7}, 0xffff0000, v{G+1}
    v_mul_f32 v{C+4}, v{C+4}, v{C+1}
    v_mul_f32 v{C+5}, v{C+5}, v{C+1}
    v_add_f32_dpp v{C}, v{C+1}, v{C+1} row_ror:8 {dpp}
    v_mul_f32 v{C+6}, v{C+6}, v{C+1}
    v_mul_f32 v{C+7}, v{C+7}, v{C+1}
    v_add_f32_dpp v{C+2}, v{C}, v{C} row_ror:4 {dpp}
    v_add_f32_dpp v{C+4}, v{C+4}, v{C+4} row_ror:8 {dpp}
    v_rcp_f32 v{C+2}, v{C+2}
    v_add_f32_dpp v{C+5}, v{C+5}, v{C+5} row_ror:8 {dpp}
    v_add_f32_dpp v{C+6}, v{C+6}, v{C+6} row_ror:8 {dpp}
    v_add_f32_dpp v{C+7}, v{C+7}, v{C+7} row_ror:8 {dpp}
    v_mul_f32 v{C+2}, v{C+2}, v{GV}
    v_add_f32_dpp v{C+4}, v{C+4}, v{C+4} row_ror:4 {dpp}
    v_add_f32_dpp v{C+5}, v{C+5}, v{C+5} row_ror:4 {dpp}
    v_add_f32_dpp v{C+6}, v{C+6}, v{C+6} row_ror:4 {dpp}
    v_add_f32_dpp v{C+7}, v{C+7}, v{C+7} row_ror:4 {dpp}
    v_mul_f32 v{C+4}, v{C+4}, v{C+2}
    v_mul_f32 v{C+5}, v{C+5}, v{C+2}
    v_mul_f32 v{C+6}, v{C+6}, v{C+2}
    v_mul_f32 v{C+7}, v{C+7}, v{C+2}
    v_cvt_pk_bf16_f32 v{C}, v{C+4}, v{C+5}
    v_cvt_pk_bf16_f32 v{C+1}, v{C+6}, v{C+7}
    ds_write_b64 v{VCW}, v[{C}:{C+1}] offset:{L_OC - L_HC}
    s_cmp_gt_u32 s{WV}, 3
    s_waitcnt lgkmcnt(0)
    s_barrier
    """)
    stamp("ocbar")
    if stamps and "ocbar" in stamps: A("s_waitcnt lgkmcnt(0)")
    PP = TT + 16
    if SPL:
        A(f"""
        s_cbranch_scc1 L_poll
        """)
        if P["late"] >= 2:
            ffn2_reads(W2F, W2F + 8)
        A(f"""
        ds_read_b128 v[{R0}:{R0+3}], v{VAF} offset:{L_OC - L_HC}
        ds_read_b128 v[{R0+4}:{R0+7}], v{VAF} offset:{L_OC - L_HC + 64}
        """)
        if P["late"]: wo_reads()
        if P["late"] >= 2:
            A("s_waitcnt lgkmcnt(10)")
            ffn2_mfma(W2F, W2F + 8)
        A(f"""
        s_waitcnt lgkmcnt({4 if P["late"] else 1})
        v_mfma_f32_16x16x32_bf16 v[{D2}:{D2+3}], v[{R0}:{R0+3}], v[{WF}:{WF+3}], v[{D2}:{D2+3}]
        v_mfma_f32_16x16x32_bf16 v[{D2B}:{D2B+3}], v[{R0}:{R0+3}], v[{WF2}:{WF2+3}], v[{D2B}:{D2B+3}]
        s_waitcnt lgkmcnt(0)
        v_mfma_f32_16x16x32_bf16 v[{D2}:{D2+3}], v[{R0+4}:{R0+7}], v[{WF+4}:{WF+7}], v[{D2}:{D2+3}]
        v_mfma_f32_16x16x32_bf16 v[{D2B}:{D2B+3}], v[{R0+4}:{R0+7}], v[{WF2+4}:{WF2+7}], v[{D2B}:{D2B+3}]
        """)
        for r in range(4):
            A(f"v_and_or_b32 v{D2+r}, v{D2+r}, s{SMASK}, v{TB+r}")
        A("s_mov_b32 exec_lo, 0")
        for r in range(4):
            A(f"v_and_or_b32 v{D2+r}, v{D2B+r}, s{SMASK}, v{TB+r}")
        A("s_mov_b32 exec_lo, -1")
        A.optional(f"global_store_dwordx4 v{VPGS}, v[{D2}:{D2+3}], s[30:31] {P['pgst']}")
        k0 = len(stnames)
        stamp("pgpub")
        if stamps and P["allwaves"]:
            A("s_waitcnt vmcnt(0)")
            for nm in ("pgack", "pg1", "pgot"): stamp(nm)
            del stnames[k0:]
            A("s_branch L_pjoin")
        else:
            del stnames[k0:]
            if P["ackbar"]:
                A("s_waitcnt vmcnt(0)")
                A("s_barrier")
            if P["wb"]:
                A(f"""
                s_cmp_lg_u32 s{WV}, 0
                s_cbranch_scc1 L_nowb
                """)
                if "1" in P["wb"]:
                    A(f"""
                    s_cmp_lg_u32 s{RR}, 0
                    s_cbranch_scc1 L_nowb
                    """)
                if "a" in P["wb"]: A("s_waitcnt vmcnt(0)")
                A.raw("  buffer_wbl2 sc1")
                A("L_nowb:")
            A("s_barrier")
            if P["wb2"] >= 0:
                A(f"""
                s_cmp_lg_u32 s{WV}, 0
                s_cbranch_scc1 L_end
                s_and_b32 s3, s{RR}, {P["wb2"]}
                s_cmp_lg_u32 s3, 0
                s_cbranch_scc1 L_end
                """)
                A.raw("  buffer_wbl2 sc1")
            A("s_endpgm")
        A("L_poll:")
        stamp("pgpub")
        if P["ackbar"]: A("s_barrier")
        elif P["psleep0"]: A(f"s_sleep {P['psleep0']}")
        stamp("pgack")
        A.optional(f"global_load_dwordx4 v[{G}:{G+3}], v{VPGL}, s[30:31] sc1")
    else:
        A(f"""
        ds_read_b128 v[{R0}:{R0+3}], v{VAF} offset:{L_OC - L_HC}
        ds_read_b128 v[{R0+4}:{R0+7}], v{VAF} offset:{L_OC - L_HC + 64}
        s_waitcnt lgkmcnt(1)
        v_mfma_f32_16x16x32_bf16 v[{D2}:{D2+3}], v[{R0}:{R0+3}], v[{WF}:{WF+3}], v[{D2}:{D2+3}]
        s_waitcnt lgkmcnt(0)
        v_mfma_f32_16x16x32_bf16 v[{D2}:{D2+3}], v[{R0+4}:{R0+7}], v[{WF+4}:{WF+7}], v[{D2}:{D2+3}]
        s_mov_b32 exec_hi, 0
        """)
        for r in range(4):
            A(f"v_and_or_b32 v{D2+r}, v{D2+r}, s{SMASK}, v{TB+r}")
        A.optional(f"global_store_dwordx4 v{VPGS}, v[{D2}:{D2+3}], s[30:31] {P['pgst']}")
        stamp("pgpub")
        if P["pgdelay"]: A(f"s_sleep {P['pgdelay']}")
        elif P["ackwait"]: A("s_waitcnt vmcnt(0)")
        stamp("pgack")
        A.optional(f"global_load_dwordx4 v[{G}:{G+3}], v{VPGL}, s[30:31] sc1")
    A(f"""
    s_mov_b32 s{CNT}, {P["pspin"] or spin}
    s_waitcnt vmcnt(0)
    """)
    stamp("pg1")
    A(f"""
    L_p_chk:
    v_perm_b32 v{C}, v{G+1}, v{G}, s{SEL1}
    v_perm_b32 v{C+1}, v{G+3}, v{G+2}, s{SEL1}
    v_perm_b32 v{C}, v{C+1}, v{C}, s{SEL2}
    v_cmp_ne_u32 vcc, s{TAG}, v{C}
    s_cbranch_vccz L_p_ok
    s_sub_u32 s{CNT}, s{CNT}, 1
    s_cbranch_scc1 L_p_ok
    s_mov_b64 exec, vcc
    """)
    if sleep: A(f"s_sleep {sleep}")
    A.optional(f"global_load_dwordx4 v[{G}:{G+3}], v{VPGL}, s[30:31] sc1")
    A(f"""
    {"s_mov_b64 exec, -1" if SPL else "s_mov_b32 exec_lo, -1"}
    s_waitcnt vmcnt(0)
    s_branch L_p_chk
    L_p_ok:
    """)
    stamp("pgot")
    for r in range(4):
        A(f"v_and_b32 v{G+r}, s{SMASK}, v{G+r}")
    A(f"""
    ds_write_b128 v{VPFW}, v[{G}:{G+3}]
    s_mov_b64 exec, -1
    L_pjoin:
    s_waitcnt lgkmcnt(0)
    s_barrier
    """)
    if P["allwaves"]:
        stamp("pbar2")
        A("s_waitcnt lgkmcnt(0)")
        n = len(stnames)
        A(f"""
        s_lshl_b32 s3, s2, 3
        s_add_u32 s3, s3, s{WV}
        s_mul_i32 s3, s3, {8*n}
        s_add_u32 s3, s3, {WS_STAMP}
        v_mov_b32 v{C}, s3
        s_mov_b64 exec, 1
        """)
        for k in range(n):
            A(f"v_mov_b32 v{C+2}, s{STREGS[k]}")
            A(f"v_mov_b32 v{C+3}, s{STREGS[k]+1}")
            A.optional(f"global_store_dwordx2 v{C}, v[{C+2}:{C+3}], s[30:31] offset:{8*k}")
            A("s_nop 1")
        A("s_mov_b64 exec, -1")
        stamps = None
    A(f"""
    s_cmp_lg_u32 s{WV}, {4 if SPL else 0}
    s_cbranch_scc1 L_end
    """)
    stamp("pbar")
    for i in range(4):
        A(f"ds_read_b128 v[{PP+4*i}:{PP+4*i+3}], v{VPFR} offset:{i*1024}")
    A("s_waitcnt lgkmcnt(0)")
    for (a, b) in ((0, 1), (2, 3), (0, 2)):
        for r in range(4):
            A(f"v_add_f32 v{PP+4*a+r}, v{PP+4*a+r}, v{PP+4*b+r}")
    A(f"""
    v_permlane32_swap_b32 v{PP}, v{PP+1}
    v_permlane32_swap_b32 v{PP+2}, v{PP+3}
    v_add_f32 v{PP}, v{PP}, v{PP+1}
    v_add_f32 v{PP+2}, v{PP+2}, v{PP+3}
    v_permlane16_swap_b32 v{PP}, v{PP+2}
    v_add_f32 v{PP}, v{PP}, v{PP+2}
    v_add_f32_dpp v{PP}, v{PP}, v{PP} row_ror:8 {dpp}
    v_add_f32_dpp v{PP}, v{PP}, v{PP} row_ror:4 {dpp}
    v_add_f32 v{PP}, v{PP}, v{B2}
    v_cvt_pk_bf16_f32 v{PP}, v{PP}, v{PP}
    s_mov_b32 exec_lo, 0x000f000f
    s_mov_b32 exec_hi, 0x000f000f
    """)
    A.optional(f"global_store_short v{VOUT}, v{PP}, s[26:27]")
    A(f"""
    s_mov_b64 exec, 1
    s_cmp_lg_u32 s2, 0
    s_cbranch_scc1 L_noep
    v_mov_b32 v{C}, 0
    v_mov_b32 v{C+1}, s{TAG}
    """)
    A.optional(f"global_store_dword v{C}, v{C+1}, s[30:31] {P['epst']}")
    A("L_noep:")
    if stamps:
        stamp("outst")
        A("s_waitcnt vmcnt(0)")
        stamp("end")
        n = len(stnames)
        A(f"""
        s_waitcnt lgkmcnt(0)
        s_mul_i32 s3, s2, {8*n}
        s_add_u32 s3, s3, {WS_STAMP}
        v_mov_b32 v{C}, s3
        """)
        for k in range(n):
            A(f"v_mov_b32 v{C+2}, s{STREGS[k]}")
            A(f"v_mov_b32 v{C+3}, s{STREGS[k]+1}")
            A.optional(f"global_store_dwordx2 v{C}, v[{C+2}:{C+3}], s[30:31] offset:{8*k}")
            A("s_nop 1")
        if P["amp"]:
            a_, b_ = P["amp"].split(":")
            ka, kb, ke = stnames.index(a_), stnames.index(b_), stnames.index("end")
            A(f"""
            s_sub_u32 s14, s{STREGS[kb]}, s{STREGS[ka]}
            s_mul_i32 s14, s14, {P['ampm']}
            s_add_u32 s14, s14, s{STREGS[ke]}
            L_probe:
            s_memrealtime s[4:5]
            s_waitcnt lgkmcnt(0)
            s_sub_u32 s3, s4, s14
            s_cmp_lt_i32 s3, 0
            s_cbranch_scc1 L_probe
            """)
        if P["probe"]:
            k = stnames.index(P["probe"])
            A(f"""
            s_add_u32 s14, s{STREGS[k]}, 10000
            L_probe:
            s_sleep 4
            s_memrealtime s[4:5]
            s_waitcnt lgkmcnt(0)
            s_sub_u32 s3, s4, s14
            s_cmp_lt_i32 s3, 0
            s_cbranch_scc1 L_probe
            """)
    A.raw("L_end:")
    A.raw("  s_endpgm")
    A.raw('.section .rodata,"a"')
    A.raw(".p2align 6")
    A.raw(f".amdhsa_kernel {NAME}_kernel")
    A.raw("  .amdhsa_next_free_vgpr 256")
    A.raw("  .amdhsa_next_free_sgpr 102")
    A.raw("  .amdhsa_accum_offset 256")
    A.raw("  .amdhsa_group_segment_fixed_size 0")
    A.raw("  .amdhsa_kernarg_size 112")
    A.raw("  .amdhsa_user_sgpr_count 2")
    A.raw("  .amdhsa_user_sgpr_kernarg_segment_ptr 1")
    A.raw("  .amdhsa_system_sgpr_workgroup_id_x 1")
    A.raw(".end_amdhsa_kernel")
    return A.text(), stnames

if __name__ == "__main__":
    out = f"cdna_kernels/{NAME}.s"
    kw = {}
    for a in sys.argv[1:]:
        k, v = a.split("=", 1)
        if k == "o": out = v
        elif k == "stamps": kw[k] = v.split(",")
        elif isinstance(DEF[k], bool): kw[k] = bool(int(v))
        elif isinstance(DEF[k], int): kw[k] = int(v)
        else: kw[k] = v
    t, n = gen(**kw)
    open(out, "w").write(t)
    print("wrote", out, "stamps", len(n), n)
```
